```python
import torch

def _softmax(x, axis=-1):
    return torch.softmax(x, dim=axis)
def _gelu(x):
    return torch.nn.functional.gelu(x, approximate="tanh")
def _silu(x):
    return torch.nn.functional.silu(x)
def _sigmoid(x):
    return torch.sigmoid(x)
def _layernorm(x, axis=-1, eps=1e-5):
    m = x.mean(dim=axis, keepdim=True)
    v = x.var(dim=axis, keepdim=True, unbiased=False)
    return (x - m) / torch.sqrt(v + eps)
def _scatter_add(tgt, idx, src, axis=0):
    return tgt.clone().index_add_(axis, idx, src)
def _segment_sum(src, seg, n):
    out = torch.zeros((n,) + src.shape[1:], dtype=src.dtype)
    return out.index_add_(0, seg, src)
def _pad(x, pw):
    flat = tuple(v for pair in reversed(pw) for v in pair)
    return torch.nn.functional.pad(x, flat)

kernel_name = 'concat_heads__sliding_block_cached__gqa_block_cached__decode'

def setup_inputs():

    _w = (lambda a: (lambda t: t.to(torch.bfloat16) if t.is_floating_point() else t)(torch.as_tensor(a)))
    def _A_setup():
        B, Sq, D = 1, 1, 640
        Hq, Hkv, Sk, Dh = 32, 32, 4096, 128
        assert Hq % Hkv == 0, (Hq, Hkv)
        return {
            "x": _w((lambda *s: torch.randn(*s, dtype=torch.bfloat16) * 0.2)(B, Sq, D)),
            "k_cache": _w((lambda *s: torch.randn(*s, dtype=torch.bfloat16) * 3.2)(B, Hkv, Sk, Dh)),
            "v_cache": _w((lambda *s: torch.randn(*s, dtype=torch.bfloat16) * 1.6)(B, Hkv, Sk, Dh)),
            "wq": _w((lambda *s: torch.randn(*s, dtype=torch.bfloat16) * 3.2)(D, Hq * Dh) * (D ** -0.5)),
            "wo": _w((lambda *s: torch.randn(*s, dtype=torch.bfloat16) * 1.6)(Hq * Dh, D) * ((Hq * Dh) ** -0.5)),
        }
    _A_in = _A_setup()

    def _B_setup():
        B, Sq, D = 1, 1, 640
        Hq, Hkv, Sk, Dh = 32, 32, 4096, 128
        assert Hq % Hkv == 0, (Hq, Hkv)
        return {
            "x": _w((lambda *s: torch.randn(*s, dtype=torch.bfloat16) * 0.4)(B, Sq, D)),
            "k_cache": _w((lambda *s: torch.randn(*s, dtype=torch.bfloat16) * 3.2)(B, Hkv, Sk, Dh)),
            "v_cache": _w((lambda *s: torch.randn(*s, dtype=torch.bfloat16) * 0.8)(B, Hkv, Sk, Dh)),
            "wq": _w((lambda *s: torch.randn(*s, dtype=torch.bfloat16) * 3.2)(D, Hq * Dh) * (D ** -0.5)),
            "wo": _w((lambda *s: torch.randn(*s, dtype=torch.bfloat16) * 0.8)(Hq * Dh, D) * ((Hq * Dh) ** -0.5)),
        }
    _B_in = _B_setup()

    return {
        "A_x": _A_in["x"],
        "A_k_cache": _A_in["k_cache"],
        "A_v_cache": _A_in["v_cache"],
        "A_wq": _A_in["wq"],
        "A_wo": _A_in["wo"],
        "B_x": _B_in["x"],
        "B_k_cache": _B_in["k_cache"],
        "B_v_cache": _B_in["v_cache"],
        "B_wq": _B_in["wq"],
        "B_wo": _B_in["wo"],
    }

def reference(A_x, A_k_cache, A_v_cache, A_wq, A_wo, B_x, B_k_cache, B_v_cache, B_wq, B_wo):
    def _A_ref(x, k_cache, v_cache, wq, wo):
        B, Sq, D = x.shape
        Hq, Dh = 32, 128
        Hkv, Sk = k_cache.shape[1], k_cache.shape[2]
        W = min(4096, max(256, Sk // 4))
        rep = Hq // Hkv
        q = (lambda x, *d: x.permute(*d))((x @ wq).reshape(B, Sq, Hq, Dh), 0, 2, 1, 3)
        k = (lambda x, n, axis: torch.repeat_interleave(x, n, dim=axis))(k_cache[:, :, Sk - W:, :], rep, axis=1)
        v = (lambda x, n, axis: torch.repeat_interleave(x, n, dim=axis))(v_cache[:, :, Sk - W:, :], rep, axis=1)
        scores = torch.einsum("bhqd,bhkd->bhqk", q, k) * (Dh ** -0.5)
        p = _softmax(scores, axis=-1)
        o = torch.einsum("bhqk,bhkd->bhqd", p, v)
        return (lambda x, *d: x.permute(*d))(o, 0, 2, 1, 3).reshape(B, Sq, Hq * Dh) @ wo

    def _B_ref(x, k_cache, v_cache, wq, wo):
        B, Sq, D = x.shape
        Hq, Dh = 32, 128
        Hkv = k_cache.shape[1]
        rep = Hq // Hkv
        q = (lambda x, *d: x.permute(*d))((x @ wq).reshape(B, Sq, Hq, Dh), 0, 2, 1, 3)
        k = (lambda x, n, axis: torch.repeat_interleave(x, n, dim=axis))(k_cache, rep, axis=1)
        v = (lambda x, n, axis: torch.repeat_interleave(x, n, dim=axis))(v_cache, rep, axis=1)
        scores = torch.einsum("bhqd,bhkd->bhqk", q, k) * (Dh ** -0.5)
        p = _softmax(scores, axis=-1)
        o = torch.einsum("bhqk,bhkd->bhqd", p, v)
        return (lambda x, *d: x.permute(*d))(o, 0, 2, 1, 3).reshape(B, Sq, Hq * Dh) @ wo

    a = _A_ref(A_x, A_k_cache, A_v_cache, A_wq, A_wo)
    b = _B_ref(B_x, B_k_cache, B_v_cache, B_wq, B_wo)
    return torch.concatenate([a, b], axis=-1)
```

```python
import sys

NAME = "concat_heads__sliding_block_cached__gqa_block_cached__decode"

class A:
    def __init__(self):
        self.l = []
    def __call__(self, s):
        for ln in s.strip("\n").split("\n"):
            self.l.append("    " + ln.strip())
    def label(self, s):
        self.l.append(s + ":")
    def text(self):
        return "\n".join(self.l) + "\n"

def vr(b, n=1):
    return f"v{b}" if n == 1 else f"v[{b}:{b+n-1}]"
def sr(b, n=1):
    return f"s{b}" if n == 1 else f"s[{b}:{b+n-1}]"

QPART = 0
QBUF = 4096
MBUF = 4352
LBUF = 4384
OPART = 4608
YPART = 8704
FIN = YPART + 8 * 2560
LDS_BYTES = 32768
Y_OFF = 0
ML_OFF = 256 * 2560

V_TID = 0
V_LANE = 1
V_N = 2
V_G = 3
V_T0 = 4
V_SELLO = 12
V_SELHI = 16
V_X = 20
V_SC = 20
V_B0 = 44
V_B1 = 48
V_ACC = 52
V_OFFA = 56
V_OFFB = 57
V_OFFC = 58
V_OFFD = 59
V_L = 60
V_QF = 64
R3 = 64
R1 = 80
R2 = 160
V_QF = 44
V_OFFA = 60
V_OFFB = 61
V_OFFC = 62
V_OFFD = 63

C_SCALE = 0.08838834764831845 * 1.4426950408889634

import struct
def f32bits(x):
    return struct.unpack("<I", struct.pack("<f", x))[0]

def body(a, nt):
    L = f"L{nt}"
    a(f"""
    s_mul_i32 s76, s11, 160
    v_mul_u32_u24 {vr(V_T0)}, 40, {vr(V_G)}
    v_add_u32 {vr(V_T0)}, s76, {vr(V_T0)}
    buffer_load_dwordx4 {vr(V_X,4)}, {vr(V_T0)}, s[68:71], 0 offen
    buffer_load_dwordx4 {vr(V_X+4,4)}, {vr(V_T0)}, s[68:71], 0 offen offset:16
    buffer_load_dwordx2 {vr(V_X+8,2)}, {vr(V_T0)}, s[68:71], 0 offen offset:32
    """)
    a(f"""
    s_mul_i32 s76, s11, {80*8192}
    s_mov_b32 s77, {20*8192}
    v_mul_lo_u32 {vr(V_OFFA)}, s77, {vr(V_G)}
    v_lshl_add_u32 {vr(V_OFFA)}, {vr(V_N)}, 4, {vr(V_OFFA)}
    v_add_u32 {vr(V_OFFA)}, s76, {vr(V_OFFA)}
    s_mov_b32 s76, 0
    """)
    for t in range(20):
        a(f"buffer_load_dwordx4 {vr(R1+4*t,4)}, {vr(V_OFFA)}, s[52:55], s76 offen")
        if t < 19:
            a("s_add_u32 s76, s76, 8192")
    a(f"""
    v_lshlrev_b32 {vr(V_OFFB)}, 8, {vr(V_N)}
    v_lshl_add_u32 {vr(V_OFFB)}, {vr(V_G)}, 4, {vr(V_OFFB)}
    s_lshl_b32 s76, s11, 12
    """)
    for u in range(nt):
        for j in range(4):
            a(f"buffer_load_dwordx4 {vr(R2+16*u+4*j,4)}, {vr(V_OFFB)}, s[56:59], s76 offen offset:{j*64}")
        if u < nt - 1:
            a("s_add_u32 s76, s76, 32768")
    a(f"""
    v_lshlrev_b32 {vr(V_OFFC)}, 10, {vr(V_G)}
    v_lshl_add_u32 {vr(V_OFFC)}, {vr(V_N)}, 4, {vr(V_OFFC)}
    """)
    a(f"""
    s_mul_i32 s76, s11, {16*1280}
    v_mul_u32_u24 {vr(V_OFFD)}, {4*1280}, {vr(V_G)}
    v_lshl_add_u32 {vr(V_OFFD)}, {vr(V_N)}, 4, {vr(V_OFFD)}
    v_add_u32 {vr(V_OFFD)}, s76, {vr(V_OFFD)}
    """)
    a(f"""
    v_and_b32 {vr(V_T0)}, 1, {vr(V_N)}
    v_cmp_eq_u32 vcc, 1, {vr(V_T0)}
    v_mov_b32 {vr(V_T0+1)}, 0x0c0c0100
    v_mov_b32 {vr(V_T0+2)}, 0x01000c0c
    v_mov_b32 {vr(V_T0+3)}, 0x0c0c0302
    v_mov_b32 {vr(V_T0+4)}, 0x03020c0c
    v_cndmask_b32 {vr(V_T0+1)}, {vr(V_T0+1)}, {vr(V_T0+2)}, vcc
    v_cndmask_b32 {vr(V_T0+3)}, {vr(V_T0+3)}, {vr(V_T0+4)}, vcc
    v_lshrrev_b32 {vr(V_T0)}, 1, {vr(V_N)}
    v_mov_b32 {vr(V_T0+2)}, 0x0c0c0c0c
    """)
    for c in range(4):
        a(f"""
        v_cmp_eq_u32 vcc, {c}, {vr(V_T0)}
        s_nop 1
        v_cndmask_b32 {vr(V_SELLO+c)}, {vr(V_T0+2)}, {vr(V_T0+1)}, vcc
        v_cndmask_b32 {vr(V_SELHI+c)}, {vr(V_T0+2)}, {vr(V_T0+3)}, vcc
        """)
    nK = 4 * nt
    a(f"s_waitcnt vmcnt({20+nK})")
    def buildB(dst, src, hi):
        sel = V_SELHI if hi else V_SELLO
        for c in range(4):
            a(f"v_perm_b32 {vr(dst+c)}, {vr(src)}, {vr(src)}, {vr(sel+c)}")
    buildB(V_B0, V_X, 0)
    for t in range(20):
        cur = V_B0 if t % 2 == 0 else V_B1
        nxt = V_B1 if t % 2 == 0 else V_B0
        if t < 19:
            buildB(nxt, V_X + (t + 1) // 2, (t + 1) % 2)
        else:
            a("s_nop 1")
        a(f"s_waitcnt vmcnt({19-t+nK})")
        c = "0" if t == 0 else vr(V_ACC, 4)
        a(f"v_mfma_f32_16x16x32_bf16 {vr(V_ACC,4)}, {vr(R1+4*t,4)}, {vr(cur,4)}, {c}")
    a("s_lshl_b32 s76, s11, 12")
    for u in range(nt):
        base = R1 + 16 * u if u < 5 else R3
        for r in range(4):
            a(f"buffer_load_dwordx4 {vr(base+4*r,4)}, {vr(V_OFFC)}, s[60:63], s76 offen offset:{r*256}")
        if u < nt - 1:
            a("s_add_u32 s76, s76, 32768")
    a(f"""
    v_lshlrev_b32 {vr(V_T0)}, 3, {vr(V_G)}
    v_add_u32 {vr(V_T0)}, {vr(V_T0)}, {vr(V_N)}
    v_lshlrev_b32 {vr(V_T0)}, 4, {vr(V_T0)}
    s_lshl_b32 s76, s11, 9
    v_add_u32 {vr(V_T0)}, s76, {vr(V_T0)}
    s_mov_b64 exec, s[80:81]
    ds_write_b128 {vr(V_T0)}, {vr(V_ACC,4)} offset:{QPART}
    s_mov_b64 exec, -1
    s_waitcnt lgkmcnt(0)
    s_barrier
    s_cmp_ge_u32 s11, 2
    s_cbranch_scc1 {L}_qskip
    """)
    a(f"""
    v_lshrrev_b32 {vr(V_T0)}, 5, {vr(V_TID)}
    v_lshlrev_b32 {vr(V_T0)}, 7, {vr(V_T0)}
    v_and_b32 {vr(V_T0+1)}, 7, {vr(V_TID)}
    v_lshl_add_u32 {vr(V_T0)}, {vr(V_T0+1)}, 4, {vr(V_T0)}
    v_bfe_u32 {vr(V_T0+1)}, {vr(V_TID)}, 3, 2
    v_lshl_add_u32 {vr(V_T0)}, {vr(V_T0+1)}, 2, {vr(V_T0)}
    """)
    for w in range(8):
        a(f"ds_read_b32 {vr(V_QF+w)}, {vr(V_T0)} offset:{QPART+w*512}")
    a("s_waitcnt lgkmcnt(0)")
    a(f"""
    v_add_f32 {vr(V_QF)}, {vr(V_QF)}, {vr(V_QF+1)}
    v_add_f32 {vr(V_QF+2)}, {vr(V_QF+2)}, {vr(V_QF+3)}
    v_add_f32 {vr(V_QF+4)}, {vr(V_QF+4)}, {vr(V_QF+5)}
    v_add_f32 {vr(V_QF+6)}, {vr(V_QF+6)}, {vr(V_QF+7)}
    v_add_f32 {vr(V_QF)}, {vr(V_QF)}, {vr(V_QF+2)}
    v_add_f32 {vr(V_QF+4)}, {vr(V_QF+4)}, {vr(V_QF+6)}
    v_add_f32 {vr(V_QF)}, {vr(V_QF)}, {vr(V_QF+4)}
    v_cvt_pk_bf16_f32 {vr(V_QF)}, {vr(V_QF)}, {vr(V_QF)}
    v_lshlrev_b32 {vr(V_T0)}, 1, {vr(V_TID)}
    ds_write_b16 {vr(V_T0)}, {vr(V_QF)} offset:{QBUF}
    s_waitcnt lgkmcnt(0)
    """)
    a.label(f"{L}_qskip")
    a(f"""
    s_barrier
    v_lshlrev_b32 {vr(V_T0)}, 4, {vr(V_G)}
    """)
    for j in range(4):
        a(f"ds_read_b128 {vr(V_QF+4*j,4)}, {vr(V_T0)} offset:{QBUF+j*64}")
    a("s_waitcnt lgkmcnt(0)")
    nV = 4 * nt
    for u in range(nt):
        a(f"s_waitcnt vmcnt({4*(nt-1-u)+nV})")
        for j in range(4):
            c = "0" if j == 0 else vr(V_SC + 4 * u, 4)
            a(f"v_mfma_f32_16x16x32_bf16 {vr(V_SC+4*u,4)}, {vr(R2+16*u+4*j,4)}, {vr(V_QF+4*j,4)}, {c}")
    a("s_mov_b32 s76, 0")
    for t in range(4):
        for cb in range(5):
            a(f"buffer_load_dwordx4 {vr(R2+4*(t*5+cb),4)}, {vr(V_OFFD)}, s[64:67], s76 offen offset:{cb*256}")
        if t < 3:
            a("s_add_u32 s76, s76, 1280")
    n = 4 * nt
    a(f"v_max3_f32 {vr(V_T0)}, {vr(V_SC)}, {vr(V_SC+1)}, {vr(V_SC+2)}")
    k = 3
    while k < n:
        if k + 1 < n:
            a(f"v_max3_f32 {vr(V_T0)}, {vr(V_T0)}, {vr(V_SC+k)}, {vr(V_SC+k+1)}")
            k += 2
        else:
            a(f"v_max_f32 {vr(V_T0)}, {vr(V_T0)}, {vr(V_SC+k)}")
            k += 1
    a(f"""
    s_nop 0
    v_readlane_b32 s76, {vr(V_T0)}, 0
    v_readlane_b32 s77, {vr(V_T0)}, 16
    v_readlane_b32 s78, {vr(V_T0)}, 32
    v_readlane_b32 s79, {vr(V_T0)}, 48
    s_nop 1
    v_mov_b32 {vr(V_T0)}, s76
    v_max_f32 {vr(V_T0)}, s77, {vr(V_T0)}
    v_max_f32 {vr(V_T0)}, s78, {vr(V_T0)}
    v_max_f32 {vr(V_T0)}, s79, {vr(V_T0)}
    s_lshl_b32 s76, s11, 2
    v_mov_b32 {vr(V_T0+1)}, s76
    ds_write_b32 {vr(V_T0+1)}, {vr(V_T0)} offset:{MBUF}
    s_waitcnt lgkmcnt(0)
    s_barrier
    v_mov_b32 {vr(V_T0+1)}, 0
    ds_read_b128 {vr(V_QF,4)}, {vr(V_T0+1)} offset:{MBUF}
    ds_read_b128 {vr(V_QF+4,4)}, {vr(V_T0+1)} offset:{MBUF+16}
    s_waitcnt lgkmcnt(0)
    v_max3_f32 {vr(V_T0)}, {vr(V_QF)}, {vr(V_QF+1)}, {vr(V_QF+2)}
    v_max3_f32 {vr(V_T0)}, {vr(V_T0)}, {vr(V_QF+3)}, {vr(V_QF+4)}
    v_max3_f32 {vr(V_T0)}, {vr(V_T0)}, {vr(V_QF+5)}, {vr(V_QF+6)}
    v_max_f32 {vr(V_T0)}, {vr(V_T0)}, {vr(V_QF+7)}
    v_mul_f32 {vr(V_T0+2)}, s82, {vr(V_T0)}
    """)
    for k in range(n):
        a(f"v_fma_f32 {vr(V_SC+k)}, {vr(V_SC+k)}, s82, -{vr(V_T0+2)}")
    for k in range(n):
        a(f"v_exp_f32 {vr(V_SC+k)}, {vr(V_SC+k)}")
    a("s_nop 0")
    a(f"v_add_f32 {vr(V_L)}, {vr(V_SC)}, {vr(V_SC+1)}")
    for k in range(2, n):
        a(f"v_add_f32 {vr(V_L)}, {vr(V_L)}, {vr(V_SC+k)}")
    for k in range(0, n, 2):
        a(f"v_cvt_pk_bf16_f32 {vr(V_SC+k)}, {vr(V_SC+k)}, {vr(V_SC+k+1)}")
    a(f"""
    s_lshl_b32 s76, s11, 4
    v_lshlrev_b32 {vr(V_T0)}, 2, {vr(V_G)}
    v_add_u32 {vr(V_T0)}, s76, {vr(V_T0)}
    s_mov_b64 exec, s[84:85]
    ds_write_b32 {vr(V_T0)}, {vr(V_L)} offset:{LBUF}
    s_mov_b64 exec, -1
    """)
    def psrc(u, r):
        return V_SC + 4 * u + (r // 2) * 2, r % 2
    seq = [(u, r) for u in range(nt) for r in range(4)]
    s0, h0 = psrc(*seq[0])
    buildB(V_B0, s0, h0)
    for idx, (u, r) in enumerate(seq):
        cur = V_B0 if idx % 2 == 0 else V_B1
        nxt = V_B1 if idx % 2 == 0 else V_B0
        if idx + 1 < len(seq):
            s1, h1 = psrc(*seq[idx + 1])
            buildB(nxt, s1, h1)
        else:
            a("s_nop 1")
        a(f"s_waitcnt vmcnt({nV-1-idx+20})")
        base = R1 + 16 * u if u < 5 else R3
        c = "0" if idx == 0 else vr(V_ACC, 4)
        a(f"v_mfma_f32_16x16x32_bf16 {vr(V_ACC,4)}, {vr(base+4*r,4)}, {vr(cur,4)}, {c}")
    a(f"""
    v_lshlrev_b32 {vr(V_T0)}, 5, {vr(V_G)}
    v_add_u32 {vr(V_T0)}, {vr(V_T0)}, {vr(V_N)}
    v_lshlrev_b32 {vr(V_T0)}, 2, {vr(V_T0)}
    s_lshl_b32 s76, s11, 9
    v_add_u32 {vr(V_T0)}, s76, {vr(V_T0)}
    s_nop 4
    s_mov_b64 exec, s[80:81]
    """)
    for r in range(4):
        a(f"ds_write_b32 {vr(V_T0)}, {vr(V_ACC+r)} offset:{OPART+r*32}")
    a(f"""
    s_mov_b64 exec, -1
    s_waitcnt lgkmcnt(0)
    s_barrier
    v_and_b32 {vr(V_T0)}, 7, {vr(V_N)}
    v_lshlrev_b32 {vr(V_T0)}, 9, {vr(V_T0)}
    v_lshl_add_u32 {vr(V_T0)}, {vr(V_G)}, 4, {vr(V_T0)}
    s_lshl_b32 s76, s11, 6
    v_add_u32 {vr(V_T0)}, s76, {vr(V_T0)}
    ds_read_b128 {vr(V_T0+4,4)}, {vr(V_T0)} offset:{OPART}
    s_waitcnt lgkmcnt(0)
    """)
    for dpp in ["quad_perm:[1,0,3,2]", "quad_perm:[2,3,0,1]", "row_half_mirror"]:
        for t in range(4):
            a(f"v_add_f32_dpp {vr(V_T0+4+t)}, {vr(V_T0+4+t)}, {vr(V_T0+4+t)} {dpp} row_mask:0xf bank_mask:0xf")
    a(f"""
    v_cvt_pk_bf16_f32 {vr(V_T0+4)}, {vr(V_T0+4)}, {vr(V_T0+5)}
    v_cvt_pk_bf16_f32 {vr(V_T0+6)}, {vr(V_T0+6)}, {vr(V_T0+7)}
    """)
    VB = 20
    VY = 36
    for t in range(4):
        buildB(VB + 4 * t, V_T0 + 4 + (t // 2) * 2, t % 2)
    a("s_waitcnt vmcnt(0)")
    for t in range(4):
        for cb in range(5):
            c = "0" if t == 0 else vr(VY + 4 * cb, 4)
            a(f"v_mfma_f32_16x16x32_bf16 {vr(VY+4*cb,4)}, {vr(R2+4*(t*5+cb),4)}, {vr(VB+4*t,4)}, {c}")
    a(f"""
    v_lshlrev_b32 {vr(V_T0)}, 3, {vr(V_G)}
    v_add_u32 {vr(V_T0)}, {vr(V_T0)}, {vr(V_N)}
    v_lshlrev_b32 {vr(V_T0)}, 4, {vr(V_T0)}
    s_mul_i32 s76, s11, 2560
    v_add_u32 {vr(V_T0)}, s76, {vr(V_T0)}
    s_nop 4
    s_mov_b64 exec, s[80:81]
    """)
    for cb in range(5):
        a(f"ds_write_b128 {vr(V_T0)}, {vr(VY+4*cb,4)} offset:{YPART+cb*512}")
    a(f"""
    s_mov_b64 exec, -1
    s_waitcnt lgkmcnt(0)
    s_barrier
    s_branch L_tail
    """)

def gen():
    a = A()
    a(f"""
    s_cmp_ge_u32 s2, 256
    s_cbranch_scc1 L_end
    s_load_dwordx16 s[16:31], s[0:1], 0
    s_load_dwordx8 s[32:39], s[0:1], 64
    s_load_dwordx2 s[40:41], s[0:1], 96
    s_and_b32 s3, s2, 7
    s_lshr_b32 s4, s2, 3
    v_lshrrev_b32 v1, 6, v0
    v_and_b32 v0, 0x3ff, v0
    v_readfirstlane_b32 s11, v1
    v_and_b32 {vr(V_LANE)}, 63, v0
    v_and_b32 {vr(V_N)}, 15, {vr(V_LANE)}
    v_lshrrev_b32 {vr(V_G)}, 4, {vr(V_LANE)}
    s_mul_i32 s5, s4, 43
    s_lshr_b32 s5, s5, 8
    s_mul_i32 s6, s5, 6
    s_sub_u32 s6, s4, s6
    s_cmp_lt_u32 s6, 4
    s_cselect_b32 s7, 43, 42
    s_mul_i32 s8, s6, 43
    s_max_u32 s76, s6, 4
    s_sub_u32 s76, s76, 4
    s_sub_u32 s8, s8, s76
    s_lshl_b32 s8, s8, 4
    s_sub_u32 s77, s4, 24
    s_lshr_b32 s78, s77, 1
    s_and_b32 s79, s77, 1
    s_lshl_b32 s80, s79, 9
    s_add_u32 s80, s80, 3072
    s_cmp_lt_u32 s4, 24
    s_cselect_b32 s5, s5, s78
    s_cselect_b32 s6, s6, s79
    s_cselect_b32 s7, s7, 32
    s_cselect_b32 s8, s8, s80
    s_cselect_b32 s12, 1, 0
    s_lshl_b32 s9, s3, 2
    s_add_u32 s9, s9, s5
    s_mul_i32 s10, s9, 6
    s_add_u32 s10, s10, s6
    s_lshl_b32 s76, s9, 1
    s_add_u32 s76, s76, s6
    s_add_u32 s76, s76, 192
    s_cmp_eq_u32 s12, 1
    s_cselect_b32 s10, s10, s76
    s_mov_b32 s80, 0x00ff00ff
    s_mov_b32 s81, 0x00ff00ff
    s_mov_b32 s82, 0x{f32bits(C_SCALE):08x}
    s_mov_b32 s84, 0x00010001
    s_mov_b32 s85, 0x00010001
    s_waitcnt lgkmcnt(0)
    s_cmp_eq_u32 s12, 1
    s_cselect_b64 s[42:43], s[26:27], s[16:17]
    s_cselect_b64 s[44:45], s[28:29], s[18:19]
    s_cselect_b64 s[46:47], s[30:31], s[20:21]
    s_cselect_b64 s[48:49], s[32:33], s[22:23]
    s_cselect_b64 s[50:51], s[34:35], s[24:25]
    s_lshl_b32 s76, s9, 8
    s_add_u32 s52, s48, s76
    s_addc_u32 s53, s49, 0
    s_sub_u32 s54, {640*8192}, s76
    s_mov_b32 s55, 0x00020000
    s_lshl_b32 s76, s9, 20
    s_lshl_b32 s77, s8, 8
    s_add_u32 s76, s76, s77
    s_add_u32 s56, s44, s76
    s_addc_u32 s57, s45, 0
    s_lshl_b32 s58, s7, 12
    s_mov_b32 s59, 0x00020000
    s_add_u32 s60, s46, s76
    s_addc_u32 s61, s47, 0
    s_mov_b32 s62, s58
    s_mov_b32 s63, 0x00020000
    s_mul_i32 s76, s9, 163840
    s_add_u32 s64, s50, s76
    s_addc_u32 s65, s51, 0
    s_mov_b32 s66, 163840
    s_mov_b32 s67, 0x00020000
    ; x SRD
    s_mov_b32 s68, s42
    s_mov_b32 s69, s43
    s_mov_b32 s70, 1280
    s_mov_b32 s71, 0x00020000
    s_mov_b32 s72, s40
    s_mov_b32 s73, s41
    s_mov_b32 s74, {ML_OFF + 256*8}
    s_mov_b32 s75, 0x00020000
    s_sub_u32 s76, s7, s11
    s_add_u32 s76, s76, 7
    s_lshr_b32 s76, s76, 3
    s_cmp_eq_u32 s76, 6
    s_cbranch_scc1 L6_start
    s_cmp_eq_u32 s76, 5
    s_cbranch_scc1 L5_start
    """)
    for nt in (4, 5, 6):
        a.label(f"L{nt}_start")
        body(a, nt)
    a.label("L_tail")
    a(f"""
    s_cmp_gt_u32 s11, 3
    s_cbranch_scc1 L_tail_sync
    s_cmp_eq_u32 s11, 3
    s_cbranch_scc1 L_tail_ml
    v_cmp_gt_u32 vcc, 160, v0
    s_and_saveexec_b64 s[86:87], vcc
    s_cbranch_execz L_tail_y_done
    v_lshlrev_b32 v4, 4, v0
    """)
    for w in range(8):
        a(f"ds_read_b128 {vr(20+4*w,4)}, v4 offset:{YPART+w*2560}")
    a("s_waitcnt lgkmcnt(0)")
    for r in range(4):
        a(f"v_add_f32 v{20+r}, v{20+r}, v{24+r}")
        a(f"v_add_f32 v{28+r}, v{28+r}, v{32+r}")
        a(f"v_add_f32 v{36+r}, v{36+r}, v{40+r}")
        a(f"v_add_f32 v{44+r}, v{44+r}, v{48+r}")
    for r in range(4):
        a(f"v_add_f32 v{20+r}, v{20+r}, v{28+r}")
        a(f"v_add_f32 v{36+r}, v{36+r}, v{44+r}")
    for r in range(4):
        a(f"v_add_f32 v{20+r}, v{20+r}, v{36+r}")
    a(f"""
    s_mul_i32 s76, s10, 2560
    buffer_store_dwordx4 v[20:23], v4, s[72:75], s76 offen sc1
    """)
    a.label("L_tail_y_done")
    a(f"""
    s_mov_b64 exec, s[86:87]
    s_branch L_tail_sync
    """)
    a.label("L_tail_ml")
    a(f"""
    v_lshlrev_b32 v4, 2, {vr(V_LANE)}
    v_and_b32 v4, 127, v4
    ds_read_b32 v5, v4 offset:{LBUF}
    s_waitcnt lgkmcnt(0)
    s_nop 1
    v_add_f32_dpp v5, v5, v5 quad_perm:[1,0,3,2] row_mask:0xf bank_mask:0xf
    s_nop 1
    v_add_f32_dpp v5, v5, v5 quad_perm:[2,3,0,1] row_mask:0xf bank_mask:0xf
    s_nop 1
    v_add_f32_dpp v5, v5, v5 row_half_mirror row_mask:0xf bank_mask:0xf
    s_nop 1
    v_add_f32_dpp v5, v5, v5 row_mirror row_mask:0xf bank_mask:0xf
    s_nop 1
    v_readlane_b32 s76, v5, 16
    s_nop 1
    v_add_f32 v5, s76, v5
    v_mov_b32 v4, {vr(V_T0+2)}
    s_lshl_b32 s76, s10, 3
    s_add_u32 s76, s76, {ML_OFF}
    v_mov_b32 v8, 0
    s_mov_b64 exec, 1
    buffer_store_dwordx2 v[4:5], v8, s[72:75], s76 offen sc1
    s_mov_b64 exec, -1
    """)
    a.label("L_tail_sync")
    a(f"""
    s_waitcnt vmcnt(0)
    s_barrier
    s_cmp_lg_u32 s11, 0
    s_cbranch_scc1 L_after_signal
    v_mov_b32 v4, 0
    v_mov_b32 v5, 1
    s_mov_b64 exec, 1
    global_atomic_add v4, v5, s[38:39]
    s_mov_b64 exec, -1
    """)
    a.label("L_after_signal")
    a(f"""
    s_cmp_ge_u32 s2, 160
    s_cbranch_scc1 L_end
    s_cmp_gt_u32 s11, 3
    s_cbranch_scc1 L_end
    v_mov_b32 v4, 0
    """)
    a.label("L_poll")
    a(f"""
    global_load_dword v5, v4, s[38:39] sc1
    s_waitcnt vmcnt(0)
    v_readfirstlane_b32 s76, v5
    s_nop 3
    s_cmp_ge_u32 s76, 256
    s_cbranch_scc1 L_polled
    s_sleep 2
    s_branch L_poll
    """)
    a.label("L_polled")
    a(f"""
    v_mul_u32_u24 v4, 2560, v0
    s_lshl_b32 s76, s2, 4
    buffer_load_dwordx4 v[20:23], v4, s[72:75], s76 offen sc1
    v_lshlrev_b32 v5, 3, v0
    s_mov_b32 s77, {ML_OFF}
    buffer_load_dwordx2 v[24:25], v5, s[72:75], s77 offen sc1
    s_cmp_eq_u32 s11, 3
    s_cbranch_scc1 L_finA
    ; B: head = k/6
    v_mul_u32_u24 v6, 171, v0
    v_lshrrev_b32 v6, 10, v6
    v_mul_u32_u24 v6, 48, v6
    buffer_load_dwordx4 v[28:31], v6, s[72:75], s77 offen sc1
    buffer_load_dwordx4 v[32:35], v6, s[72:75], s77 offen offset:16 sc1
    buffer_load_dwordx4 v[36:39], v6, s[72:75], s77 offen offset:32 sc1
    s_waitcnt vmcnt(0)
    v_max3_f32 v7, v28, v30, v32
    v_max3_f32 v7, v7, v34, v36
    v_max_f32 v7, v7, v38
    v_sub_f32 v28, v28, v7
    v_sub_f32 v30, v30, v7
    v_sub_f32 v32, v32, v7
    v_sub_f32 v34, v34, v7
    v_sub_f32 v36, v36, v7
    v_sub_f32 v38, v38, v7
    v_sub_f32 v24, v24, v7
    v_exp_f32 v28, v28
    v_exp_f32 v30, v30
    v_exp_f32 v32, v32
    v_exp_f32 v34, v34
    v_exp_f32 v36, v36
    v_exp_f32 v38, v38
    v_exp_f32 v24, v24
    s_nop 0
    v_mul_f32 v8, v28, v29
    v_fmac_f32 v8, v30, v31
    v_fmac_f32 v8, v32, v33
    v_fmac_f32 v8, v34, v35
    v_fmac_f32 v8, v36, v37
    v_fmac_f32 v8, v38, v39
    s_branch L_finW
    """)
    a.label("L_finA")
    a(f"""
    v_and_b32 v6, 0x1fe, v0
    v_lshlrev_b32 v6, 3, v6
    buffer_load_dwordx4 v[28:31], v6, s[72:75], s77 offen sc1
    s_waitcnt vmcnt(0)
    v_max_f32 v7, v28, v30
    v_sub_f32 v28, v28, v7
    v_sub_f32 v30, v30, v7
    v_sub_f32 v24, v24, v7
    v_exp_f32 v28, v28
    v_exp_f32 v30, v30
    v_exp_f32 v24, v24
    s_nop 0
    v_mul_f32 v8, v28, v29
    v_fmac_f32 v8, v30, v31
    """)
    a.label("L_finW")
    a(f"""
    v_rcp_f32 v8, v8
    s_nop 0
    v_mul_f32 v8, v24, v8
    v_mul_f32 v20, v20, v8
    v_mul_f32 v21, v21, v8
    v_mul_f32 v22, v22, v8
    v_mul_f32 v23, v23, v8
    """)
    steps = [("row_shr:1", "0xf"), ("row_shr:2", "0xf"), ("row_shr:4", "0xf"), ("row_shr:8", "0xf"),
             ("row_bcast:15", "0xa"), ("row_bcast:31", "0xc")]
    for dpp, rm in steps:
        for r in range(4):
            a(f"v_add_f32_dpp v{20+r}, v{20+r}, v{20+r} {dpp} row_mask:{rm} bank_mask:0xf bound_ctrl:0")
    a(f"""
    s_lshr_b32 s76, s2, 5
    s_lshl_b32 s76, s76, 7
    s_bfe_u32 s77, s2, 0x20003
    s_lshl_b32 s77, s77, 5
    s_add_u32 s76, s76, s77
    s_and_b32 s77, s2, 7
    s_add_u32 s76, s76, s77
    s_lshl_b32 s76, s76, 1
    s_mov_b32 s88, s36
    s_mov_b32 s89, s37
    s_mov_b32 s90, 2560
    s_mov_b32 s91, 0x00020000
    s_mov_b32 s78, 0
    s_mov_b32 s79, 0x80000000
    s_cmp_eq_u32 s11, 3
    s_cbranch_scc1 L_finA2
    s_lshl_b32 s77, s11, 4
    v_mov_b32 v4, s77
    s_mov_b64 exec, s[78:79]
    ds_write_b128 v4, v[20:23] offset:{FIN}
    s_mov_b64 exec, -1
    s_waitcnt lgkmcnt(0)
    s_barrier
    s_cmp_lg_u32 s11, 0
    s_cbranch_scc1 L_end
    v_mov_b32 v4, 0
    ds_read_b128 v[20:23], v4 offset:{FIN}
    ds_read_b128 v[24:27], v4 offset:{FIN+16}
    ds_read_b128 v[28:31], v4 offset:{FIN+32}
    s_waitcnt lgkmcnt(0)
    """)
    for r in range(4):
        a(f"v_add_f32 v{20+r}, v{20+r}, v{24+r}")
    for r in range(4):
        a(f"v_add_f32 v{20+r}, v{20+r}, v{28+r}")
    a(f"""
    s_add_u32 s76, s76, 1280
    s_mov_b32 s79, 0
    s_mov_b32 s78, 1
    s_branch L_store
    """)
    a.label("L_finA2")
    a("s_barrier")
    a.label("L_store")
    a(f"""
    v_cvt_pk_bf16_f32 v20, v20, v20
    v_cvt_pk_bf16_f32 v21, v21, v21
    v_cvt_pk_bf16_f32 v22, v22, v22
    v_cvt_pk_bf16_f32 v23, v23, v23
    v_mov_b32 v4, 0
    s_mov_b64 exec, s[78:79]
    buffer_store_short v20, v4, s[88:91], s76 offen
    buffer_store_short v21, v4, s[88:91], s76 offen offset:16
    buffer_store_short v22, v4, s[88:91], s76 offen offset:32
    buffer_store_short v23, v4, s[88:91], s76 offen offset:48
    """)
    a.label("L_end")
    a("s_endpgm")

    hdr = open("cdna_kernels/" + NAME + ".s.ref").read().split("\n")
    head = []
    for ln in hdr:
        if ln.startswith("; @launch"):
            head.append(f"; @launch grid=(256,1,1) block=(512,1,1) lds={LDS_BYTES}")
            break
        head.append(ln)
    out = "\n".join(head) + "\n"
    out += f""".amdgcn_target "amdgcn-amd-amdhsa--gfx950"
.text
.globl {NAME}_kernel
.p2align 8
.type {NAME}_kernel,@function
{NAME}_kernel:
"""
    out += a.text()
    out += f""".section .rodata,"a"
.p2align 6
.amdhsa_kernel {NAME}_kernel
  .amdhsa_next_free_vgpr 256
  .amdhsa_next_free_sgpr 102
  .amdhsa_accum_offset 256
  .amdhsa_group_segment_fixed_size 0
  .amdhsa_kernarg_size 104
  .amdhsa_user_sgpr_count 2
  .amdhsa_user_sgpr_kernarg_segment_ptr 1
  .amdhsa_system_sgpr_workgroup_id_x 1
.end_amdhsa_kernel
"""
    return out

if __name__ == "__main__":
    path = sys.argv[1] if len(sys.argv) > 1 else "cdna_kernels/" + NAME + ".s"
    open(path, "w").write(gen())
```

```python
import sys

PROF = False
NT_KV = " nt"
NT_W = " nt"
NAME = "concat_heads__sliding_block_cached__gqa_block_cached__decode"

class A:
    def __init__(self):
        self.l = []
    def __call__(self, s):
        for ln in s.strip("\n").split("\n"):
            self.l.append("    " + ln.strip())
    def stamp(self, i):
        if not PROF: return
        self(f"""
        s_memrealtime s[92:93]
        s_waitcnt lgkmcnt(0)
        s_mov_b32 s{16+i}, s92
        """)
    def label(self, s):
        self.l.append(s + ":")
    def text(self):
        return "\n".join(self.l) + "\n"

def vr(b, n=1):
    return f"v{b}" if n == 1 else f"v[{b}:{b+n-1}]"
def sr(b, n=1):
    return f"s{b}" if n == 1 else f"s[{b}:{b+n-1}]"

QPART = 0
QBUF = 4096
MBUF = 4352
LBUF = 4384
OPART = 4608
YPART = 8704
FIN = YPART + 8 * 2560
LDS_BYTES = 32768
Y_OFF = 0
ML_OFF = 256 * 2560

V_TID = 0
V_LANE = 1
V_N = 2
V_G = 3
V_T0 = 4
V_SELLO = 12
V_SELHI = 16
V_X = 20
V_SC = 20
V_B0 = 44
V_B1 = 48
V_ACC = 52
V_OFFA = 56
V_OFFB = 57
V_OFFC = 58
V_OFFD = 59
V_L = 60
V_QF = 64
R3 = 64
R1 = 80
R2 = 160
V_QF = 44
V_OFFA = 60
V_OFFB = 61
V_OFFC = 62
V_OFFD = 63

C_SCALE = 0.08838834764831845 * 1.4426950408889634

import struct
def f32bits(x):
    return struct.unpack("<I", struct.pack("<f", x))[0]

def body(a, nt):
    L = f"L{nt}"
    a(f"""
    s_mul_i32 s76, s11, 160
    v_mul_u32_u24 {vr(V_T0)}, 40, {vr(V_G)}
    v_add_u32 {vr(V_T0)}, s76, {vr(V_T0)}
    buffer_load_dwordx4 {vr(V_X,4)}, {vr(V_T0)}, s[68:71], 0 offen
    buffer_load_dwordx4 {vr(V_X+4,4)}, {vr(V_T0)}, s[68:71], 0 offen offset:16
    buffer_load_dwordx2 {vr(V_X+8,2)}, {vr(V_T0)}, s[68:71], 0 offen offset:32
    """)
    a(f"""
    s_mul_i32 s76, s11, {80*8192}
    s_mov_b32 s77, {20*8192}
    v_mul_lo_u32 {vr(V_OFFA)}, s77, {vr(V_G)}
    v_lshl_add_u32 {vr(V_OFFA)}, {vr(V_N)}, 4, {vr(V_OFFA)}
    v_add_u32 {vr(V_OFFA)}, s76, {vr(V_OFFA)}
    s_mov_b32 s76, 0
    """)
    for t in range(20):
        a(f"buffer_load_dwordx4 {vr(R1+4*t,4)}, {vr(V_OFFA)}, s[52:55], s76 offen{NT_W}")
        if t < 19:
            a("s_add_u32 s76, s76, 8192")
    a(f"""
    v_lshlrev_b32 {vr(V_OFFB)}, 8, {vr(V_N)}
    v_lshl_add_u32 {vr(V_OFFB)}, {vr(V_G)}, 4, {vr(V_OFFB)}
    s_lshl_b32 s76, s11, 12
    """)
    for u in range(nt):
        for j in range(4):
            a(f"buffer_load_dwordx4 {vr(R2+16*u+4*j,4)}, {vr(V_OFFB)}, s[56:59], s76 offen offset:{j*64}{NT_KV}")
        if u < nt - 1:
            a("s_add_u32 s76, s76, 32768")
    a(f"""
    v_lshlrev_b32 {vr(V_OFFC)}, 10, {vr(V_G)}
    v_lshl_add_u32 {vr(V_OFFC)}, {vr(V_N)}, 4, {vr(V_OFFC)}
    """)
    a(f"""
    s_mul_i32 s76, s11, {16*1280}
    v_mul_u32_u24 {vr(V_OFFD)}, {4*1280}, {vr(V_G)}
    v_lshl_add_u32 {vr(V_OFFD)}, {vr(V_N)}, 4, {vr(V_OFFD)}
    v_add_u32 {vr(V_OFFD)}, s76, {vr(V_OFFD)}
    """)
    a.stamp(1)
    a(f"""
    v_and_b32 {vr(V_T0)}, 1, {vr(V_N)}
    v_cmp_eq_u32 vcc, 1, {vr(V_T0)}
    v_mov_b32 {vr(V_T0+1)}, 0x0c0c0100
    v_mov_b32 {vr(V_T0+2)}, 0x01000c0c
    v_mov_b32 {vr(V_T0+3)}, 0x0c0c0302
    v_mov_b32 {vr(V_T0+4)}, 0x03020c0c
    v_cndmask_b32 {vr(V_T0+1)}, {vr(V_T0+1)}, {vr(V_T0+2)}, vcc
    v_cndmask_b32 {vr(V_T0+3)}, {vr(V_T0+3)}, {vr(V_T0+4)}, vcc
    v_lshrrev_b32 {vr(V_T0)}, 1, {vr(V_N)}
    v_mov_b32 {vr(V_T0+2)}, 0x0c0c0c0c
    """)
    for c in range(4):
        a(f"""
        v_cmp_eq_u32 vcc, {c}, {vr(V_T0)}
        s_nop 1
        v_cndmask_b32 {vr(V_SELLO+c)}, {vr(V_T0+2)}, {vr(V_T0+1)}, vcc
        v_cndmask_b32 {vr(V_SELHI+c)}, {vr(V_T0+2)}, {vr(V_T0+3)}, vcc
        """)
    nK = 4 * nt
    a(f"s_waitcnt vmcnt({20+nK})")
    def buildB(dst, src, hi):
        sel = V_SELHI if hi else V_SELLO
        for c in range(4):
            a(f"v_perm_b32 {vr(dst+c)}, {vr(src)}, {vr(src)}, {vr(sel+c)}")
    buildB(V_B0, V_X, 0)
    for t in range(20):
        cur = V_B0 if t % 2 == 0 else V_B1
        nxt = V_B1 if t % 2 == 0 else V_B0
        if t < 19:
            buildB(nxt, V_X + (t + 1) // 2, (t + 1) % 2)
        else:
            a("s_nop 1")
        a(f"s_waitcnt vmcnt({19-t+nK})")
        c = "0" if t == 0 else vr(V_ACC, 4)
        a(f"v_mfma_f32_16x16x32_bf16 {vr(V_ACC,4)}, {vr(R1+4*t,4)}, {vr(cur,4)}, {c}")
    a.stamp(2)
    a("s_lshl_b32 s76, s11, 12")
    for u in range(nt):
        base = R1 + 16 * u if u < 5 else R3
        for r in range(4):
            a(f"buffer_load_dwordx4 {vr(base+4*r,4)}, {vr(V_OFFC)}, s[60:63], s76 offen offset:{r*256}{NT_KV}")
        if u < nt - 1:
            a("s_add_u32 s76, s76, 32768")
    a(f"""
    v_lshlrev_b32 {vr(V_T0)}, 3, {vr(V_G)}
    v_add_u32 {vr(V_T0)}, {vr(V_T0)}, {vr(V_N)}
    v_lshlrev_b32 {vr(V_T0)}, 4, {vr(V_T0)}
    s_lshl_b32 s76, s11, 9
    v_add_u32 {vr(V_T0)}, s76, {vr(V_T0)}
    s_mov_b64 exec, s[80:81]
    ds_write_b128 {vr(V_T0)}, {vr(V_ACC,4)} offset:{QPART}
    s_mov_b64 exec, -1
    s_waitcnt lgkmcnt(0)
    s_barrier
    s_cmp_ge_u32 s11, 2
    s_cbranch_scc1 {L}_qskip
    """)
    a(f"""
    v_lshrrev_b32 {vr(V_T0)}, 5, {vr(V_TID)}
    v_lshlrev_b32 {vr(V_T0)}, 7, {vr(V_T0)}
    v_and_b32 {vr(V_T0+1)}, 7, {vr(V_TID)}
    v_lshl_add_u32 {vr(V_T0)}, {vr(V_T0+1)}, 4, {vr(V_T0)}
    v_bfe_u32 {vr(V_T0+1)}, {vr(V_TID)}, 3, 2
    v_lshl_add_u32 {vr(V_T0)}, {vr(V_T0+1)}, 2, {vr(V_T0)}
    """)
    for w in range(8):
        a(f"ds_read_b32 {vr(V_QF+w)}, {vr(V_T0)} offset:{QPART+w*512}")
    a("s_waitcnt lgkmcnt(0)")
    a(f"""
    v_add_f32 {vr(V_QF)}, {vr(V_QF)}, {vr(V_QF+1)}
    v_add_f32 {vr(V_QF+2)}, {vr(V_QF+2)}, {vr(V_QF+3)}
    v_add_f32 {vr(V_QF+4)}, {vr(V_QF+4)}, {vr(V_QF+5)}
    v_add_f32 {vr(V_QF+6)}, {vr(V_QF+6)}, {vr(V_QF+7)}
    v_add_f32 {vr(V_QF)}, {vr(V_QF)}, {vr(V_QF+2)}
    v_add_f32 {vr(V_QF+4)}, {vr(V_QF+4)}, {vr(V_QF+6)}
    v_add_f32 {vr(V_QF)}, {vr(V_QF)}, {vr(V_QF+4)}
    v_cvt_pk_bf16_f32 {vr(V_QF)}, {vr(V_QF)}, {vr(V_QF)}
    v_lshlrev_b32 {vr(V_T0)}, 1, {vr(V_TID)}
    ds_write_b16 {vr(V_T0)}, {vr(V_QF)} offset:{QBUF}
    s_waitcnt lgkmcnt(0)
    """)
    a.label(f"{L}_qskip")
    a(f"""
    s_barrier
    v_lshlrev_b32 {vr(V_T0)}, 4, {vr(V_G)}
    """)
    for j in range(4):
        a(f"ds_read_b128 {vr(V_QF+4*j,4)}, {vr(V_T0)} offset:{QBUF+j*64}")
    a("s_waitcnt lgkmcnt(0)")
    a.stamp(3)
    nV = 4 * nt
    for u in range(nt):
        a(f"s_waitcnt vmcnt({4*(nt-1-u)+nV})")
        for j in range(4):
            c = "0" if j == 0 else vr(V_SC + 4 * u, 4)
            a(f"v_mfma_f32_16x16x32_bf16 {vr(V_SC+4*u,4)}, {vr(R2+16*u+4*j,4)}, {vr(V_QF+4*j,4)}, {c}")
    a.stamp(4)
    a("s_mov_b32 s76, 0")
    for t in range(4):
        for cb in range(5):
            a(f"buffer_load_dwordx4 {vr(R2+4*(t*5+cb),4)}, {vr(V_OFFD)}, s[64:67], s76 offen offset:{cb*256}{NT_W}")
        if t < 3:
            a("s_add_u32 s76, s76, 1280")
    n = 4 * nt
    a(f"v_max3_f32 {vr(V_T0)}, {vr(V_SC)}, {vr(V_SC+1)}, {vr(V_SC+2)}")
    k = 3
    while k < n:
        if k + 1 < n:
            a(f"v_max3_f32 {vr(V_T0)}, {vr(V_T0)}, {vr(V_SC+k)}, {vr(V_SC+k+1)}")
            k += 2
        else:
            a(f"v_max_f32 {vr(V_T0)}, {vr(V_T0)}, {vr(V_SC+k)}")
            k += 1
    a(f"""
    s_nop 0
    v_readlane_b32 s76, {vr(V_T0)}, 0
    v_readlane_b32 s77, {vr(V_T0)}, 16
    v_readlane_b32 s78, {vr(V_T0)}, 32
    v_readlane_b32 s79, {vr(V_T0)}, 48
    s_nop 1
    v_mov_b32 {vr(V_T0)}, s76
    v_max_f32 {vr(V_T0)}, s77, {vr(V_T0)}
    v_max_f32 {vr(V_T0)}, s78, {vr(V_T0)}
    v_max_f32 {vr(V_T0)}, s79, {vr(V_T0)}
    s_lshl_b32 s76, s11, 2
    v_mov_b32 {vr(V_T0+1)}, s76
    ds_write_b32 {vr(V_T0+1)}, {vr(V_T0)} offset:{MBUF}
    s_waitcnt lgkmcnt(0)
    s_barrier
    v_mov_b32 {vr(V_T0+1)}, 0
    ds_read_b128 {vr(V_QF,4)}, {vr(V_T0+1)} offset:{MBUF}
    ds_read_b128 {vr(V_QF+4,4)}, {vr(V_T0+1)} offset:{MBUF+16}
    s_waitcnt lgkmcnt(0)
    v_max3_f32 {vr(V_T0)}, {vr(V_QF)}, {vr(V_QF+1)}, {vr(V_QF+2)}
    v_max3_f32 {vr(V_T0)}, {vr(V_T0)}, {vr(V_QF+3)}, {vr(V_QF+4)}
    v_max3_f32 {vr(V_T0)}, {vr(V_T0)}, {vr(V_QF+5)}, {vr(V_QF+6)}
    v_max_f32 {vr(V_T0)}, {vr(V_T0)}, {vr(V_QF+7)}
    v_mul_f32 {vr(V_T0+2)}, s82, {vr(V_T0)}
    """)
    for k in range(n):
        a(f"v_fma_f32 {vr(V_SC+k)}, {vr(V_SC+k)}, s82, -{vr(V_T0+2)}")
    for k in range(n):
        a(f"v_exp_f32 {vr(V_SC+k)}, {vr(V_SC+k)}")
    a("s_nop 0")
    a(f"v_add_f32 {vr(V_L)}, {vr(V_SC)}, {vr(V_SC+1)}")
    for k in range(2, n):
        a(f"v_add_f32 {vr(V_L)}, {vr(V_L)}, {vr(V_SC+k)}")
    for k in range(0, n, 2):
        a(f"v_cvt_pk_bf16_f32 {vr(V_SC+k)}, {vr(V_SC+k)}, {vr(V_SC+k+1)}")
    a(f"""
    s_lshl_b32 s76, s11, 4
    v_lshlrev_b32 {vr(V_T0)}, 2, {vr(V_G)}
    v_add_u32 {vr(V_T0)}, s76, {vr(V_T0)}
    s_mov_b64 exec, s[84:85]
    ds_write_b32 {vr(V_T0)}, {vr(V_L)} offset:{LBUF}
    s_mov_b64 exec, -1
    """)
    a.stamp(5)
    def psrc(u, r):
        return V_SC + 4 * u + (r // 2) * 2, r % 2
    seq = [(u, r) for u in range(nt) for r in range(4)]
    s0, h0 = psrc(*seq[0])
    buildB(V_B0, s0, h0)
    for idx, (u, r) in enumerate(seq):
        cur = V_B0 if idx % 2 == 0 else V_B1
        nxt = V_B1 if idx % 2 == 0 else V_B0
        if idx + 1 < len(seq):
            s1, h1 = psrc(*seq[idx + 1])
            buildB(nxt, s1, h1)
        else:
            a("s_nop 1")
        a(f"s_waitcnt vmcnt({nV-1-idx+20})")
        base = R1 + 16 * u if u < 5 else R3
        c = "0" if idx == 0 else vr(V_ACC, 4)
        a(f"v_mfma_f32_16x16x32_bf16 {vr(V_ACC,4)}, {vr(base+4*r,4)}, {vr(cur,4)}, {c}")
    a.stamp(6)
    a(f"""
    v_lshlrev_b32 {vr(V_T0)}, 5, {vr(V_G)}
    v_add_u32 {vr(V_T0)}, {vr(V_T0)}, {vr(V_N)}
    v_lshlrev_b32 {vr(V_T0)}, 2, {vr(V_T0)}
    s_lshl_b32 s76, s11, 9
    v_add_u32 {vr(V_T0)}, s76, {vr(V_T0)}
    s_nop 4
    s_mov_b64 exec, s[80:81]
    """)
    for r in range(4):
        a(f"ds_write_b32 {vr(V_T0)}, {vr(V_ACC+r)} offset:{OPART+r*32}")
    a(f"""
    s_mov_b64 exec, -1
    s_waitcnt lgkmcnt(0)
    s_barrier
    v_and_b32 {vr(V_T0)}, 7, {vr(V_N)}
    v_lshlrev_b32 {vr(V_T0)}, 9, {vr(V_T0)}
    v_lshl_add_u32 {vr(V_T0)}, {vr(V_G)}, 4, {vr(V_T0)}
    s_lshl_b32 s76, s11, 6
    v_add_u32 {vr(V_T0)}, s76, {vr(V_T0)}
    ds_read_b128 {vr(V_T0+4,4)}, {vr(V_T0)} offset:{OPART}
    s_waitcnt lgkmcnt(0)
    """)
    for dpp in ["quad_perm:[1,0,3,2]", "quad_perm:[2,3,0,1]", "row_half_mirror"]:
        for t in range(4):
            a(f"v_add_f32_dpp {vr(V_T0+4+t)}, {vr(V_T0+4+t)}, {vr(V_T0+4+t)} {dpp} row_mask:0xf bank_mask:0xf")
    a(f"""
    v_cvt_pk_bf16_f32 {vr(V_T0+4)}, {vr(V_T0+4)}, {vr(V_T0+5)}
    v_cvt_pk_bf16_f32 {vr(V_T0+6)}, {vr(V_T0+6)}, {vr(V_T0+7)}
    """)
    VB = 20
    VY = 36
    for t in range(4):
        buildB(VB + 4 * t, V_T0 + 4 + (t // 2) * 2, t % 2)
    a("s_waitcnt vmcnt(0)")
    for t in range(4):
        for cb in range(5):
            c = "0" if t == 0 else vr(VY + 4 * cb, 4)
            a(f"v_mfma_f32_16x16x32_bf16 {vr(VY+4*cb,4)}, {vr(R2+4*(t*5+cb),4)}, {vr(VB+4*t,4)}, {c}")
    a(f"""
    v_lshlrev_b32 {vr(V_T0)}, 3, {vr(V_G)}
    v_add_u32 {vr(V_T0)}, {vr(V_T0)}, {vr(V_N)}
    v_lshlrev_b32 {vr(V_T0)}, 4, {vr(V_T0)}
    s_mul_i32 s76, s11, 2560
    v_add_u32 {vr(V_T0)}, s76, {vr(V_T0)}
    s_nop 4
    s_mov_b64 exec, s[80:81]
    """)
    for cb in range(5):
        a(f"ds_write_b128 {vr(V_T0)}, {vr(VY+4*cb,4)} offset:{YPART+cb*512}")
    a(f"""
    s_mov_b64 exec, -1
    s_waitcnt lgkmcnt(0)
    s_barrier
    s_branch L_tail
    """)

def gen():
    a = A()
    a(f"""
    s_cmp_ge_u32 s2, 256
    s_cbranch_scc1 L_end2
    s_load_dwordx16 s[16:31], s[0:1], 0
    s_load_dwordx8 s[32:39], s[0:1], 64
    s_load_dwordx2 s[40:41], s[0:1], 96
    PROF_T0
    s_and_b32 s3, s2, 7
    s_lshr_b32 s4, s2, 3
    v_lshrrev_b32 v1, 6, v0
    v_and_b32 v0, 0x3ff, v0
    v_readfirstlane_b32 s11, v1
    v_and_b32 {vr(V_LANE)}, 63, v0
    v_and_b32 {vr(V_N)}, 15, {vr(V_LANE)}
    v_lshrrev_b32 {vr(V_G)}, 4, {vr(V_LANE)}
    s_mul_i32 s5, s4, 43
    s_lshr_b32 s5, s5, 8
    s_mul_i32 s6, s5, 6
    s_sub_u32 s6, s4, s6
    s_cmp_lt_u32 s6, 4
    s_cselect_b32 s7, 43, 42
    s_mul_i32 s8, s6, 43
    s_max_u32 s76, s6, 4
    s_sub_u32 s76, s76, 4
    s_sub_u32 s8, s8, s76
    s_lshl_b32 s8, s8, 4
    s_sub_u32 s77, s4, 24
    s_lshr_b32 s78, s77, 1
    s_and_b32 s79, s77, 1
    s_lshl_b32 s80, s79, 9
    s_add_u32 s80, s80, 3072
    s_cmp_lt_u32 s4, 24
    s_cselect_b32 s5, s5, s78
    s_cselect_b32 s6, s6, s79
    s_cselect_b32 s7, s7, 32
    s_cselect_b32 s8, s8, s80
    s_cselect_b32 s12, 1, 0
    s_lshl_b32 s9, s3, 2
    s_add_u32 s9, s9, s5
    s_mul_i32 s10, s9, 6
    s_add_u32 s10, s10, s6
    s_lshl_b32 s76, s9, 1
    s_add_u32 s76, s76, s6
    s_add_u32 s76, s76, 192
    s_cmp_eq_u32 s12, 1
    s_cselect_b32 s10, s10, s76
    s_mov_b32 s80, 0x00ff00ff
    s_mov_b32 s81, 0x00ff00ff
    s_mov_b32 s82, 0x{f32bits(C_SCALE):08x}
    s_mov_b32 s84, 0x00010001
    s_mov_b32 s85, 0x00010001
    s_waitcnt lgkmcnt(0)
    s_cmp_eq_u32 s12, 1
    s_cselect_b64 s[42:43], s[26:27], s[16:17]
    s_cselect_b64 s[44:45], s[28:29], s[18:19]
    s_cselect_b64 s[46:47], s[30:31], s[20:21]
    s_cselect_b64 s[48:49], s[32:33], s[22:23]
    s_cselect_b64 s[50:51], s[34:35], s[24:25]
    s_lshl_b32 s76, s9, 8
    s_add_u32 s52, s48, s76
    s_addc_u32 s53, s49, 0
    s_sub_u32 s54, {640*8192}, s76
    s_mov_b32 s55, 0x00020000
    s_lshl_b32 s76, s9, 20
    s_lshl_b32 s77, s8, 8
    s_add_u32 s76, s76, s77
    s_add_u32 s56, s44, s76
    s_addc_u32 s57, s45, 0
    s_lshl_b32 s58, s7, 12
    s_mov_b32 s59, 0x00020000
    s_add_u32 s60, s46, s76
    s_addc_u32 s61, s47, 0
    s_mov_b32 s62, s58
    s_mov_b32 s63, 0x00020000
    s_mul_i32 s76, s9, 163840
    s_add_u32 s64, s50, s76
    s_addc_u32 s65, s51, 0
    s_mov_b32 s66, 163840
    s_mov_b32 s67, 0x00020000
    ; x SRD
    s_mov_b32 s68, s42
    s_mov_b32 s69, s43
    s_mov_b32 s70, 1280
    s_mov_b32 s71, 0x00020000
    s_mov_b32 s72, s40
    s_mov_b32 s73, s41
    s_mov_b32 s74, {ML_OFF + 256*8}
    s_mov_b32 s75, 0x00020000
    PROF_CLR
    s_sub_u32 s76, s7, s11
    s_add_u32 s76, s76, 7
    s_lshr_b32 s76, s76, 3
    s_cmp_eq_u32 s76, 6
    s_cbranch_scc1 L6_start
    s_cmp_eq_u32 s76, 5
    s_cbranch_scc1 L5_start
    """)
    for nt in (4, 5, 6):
        a.label(f"L{nt}_start")
        body(a, nt)
    a.label("L_tail")
    a.stamp(7)
    a(f"""
    s_cmp_gt_u32 s11, 3
    s_cbranch_scc1 L_tail_sync
    s_cmp_eq_u32 s11, 3
    s_cbranch_scc1 L_tail_ml
    v_cmp_gt_u32 vcc, 160, v0
    s_and_saveexec_b64 s[86:87], vcc
    s_cbranch_execz L_tail_y_done
    v_lshlrev_b32 v4, 4, v0
    """)
    for w in range(8):
        a(f"ds_read_b128 {vr(20+4*w,4)}, v4 offset:{YPART+w*2560}")
    a("s_waitcnt lgkmcnt(0)")
    for r in range(4):
        a(f"v_add_f32 v{20+r}, v{20+r}, v{24+r}")
        a(f"v_add_f32 v{28+r}, v{28+r}, v{32+r}")
        a(f"v_add_f32 v{36+r}, v{36+r}, v{40+r}")
        a(f"v_add_f32 v{44+r}, v{44+r}, v{48+r}")
    for r in range(4):
        a(f"v_add_f32 v{20+r}, v{20+r}, v{28+r}")
        a(f"v_add_f32 v{36+r}, v{36+r}, v{44+r}")
    for r in range(4):
        a(f"v_add_f32 v{20+r}, v{20+r}, v{36+r}")
    a(f"""
    s_mul_i32 s76, s10, 2560
    buffer_store_dwordx4 v[20:23], v4, s[72:75], s76 offen sc1
    """)
    a.label("L_tail_y_done")
    a(f"""
    s_mov_b64 exec, s[86:87]
    s_branch L_tail_sync
    """)
    a.label("L_tail_ml")
    a(f"""
    v_lshlrev_b32 v4, 2, {vr(V_LANE)}
    v_and_b32 v4, 127, v4
    ds_read_b32 v5, v4 offset:{LBUF}
    s_waitcnt lgkmcnt(0)
    s_nop 1
    v_add_f32_dpp v5, v5, v5 quad_perm:[1,0,3,2] row_mask:0xf bank_mask:0xf
    s_nop 1
    v_add_f32_dpp v5, v5, v5 quad_perm:[2,3,0,1] row_mask:0xf bank_mask:0xf
    s_nop 1
    v_add_f32_dpp v5, v5, v5 row_half_mirror row_mask:0xf bank_mask:0xf
    s_nop 1
    v_add_f32_dpp v5, v5, v5 row_mirror row_mask:0xf bank_mask:0xf
    s_nop 1
    v_readlane_b32 s76, v5, 16
    s_nop 1
    v_add_f32 v5, s76, v5
    v_mov_b32 v4, {vr(V_T0+2)}
    s_lshl_b32 s76, s10, 3
    s_add_u32 s76, s76, {ML_OFF}
    v_mov_b32 v8, 0
    s_mov_b64 exec, 1
    buffer_store_dwordx2 v[4:5], v8, s[72:75], s76 offen sc1
    s_mov_b64 exec, -1
    """)
    a.label("L_tail_sync")
    a(f"""
    s_waitcnt vmcnt(0)
    s_barrier
    s_cmp_lg_u32 s11, 0
    s_cbranch_scc1 L_after_signal
    v_mov_b32 v4, 0
    v_mov_b32 v5, 1
    s_mov_b64 exec, 1
    global_atomic_add v4, v5, s[38:39]
    s_mov_b64 exec, -1
    """)
    a.label("L_after_signal")
    a.stamp(8)
    a(f"""
    s_cmp_ge_u32 s2, 160
    s_cbranch_scc1 L_end
    s_cmp_gt_u32 s11, 3
    s_cbranch_scc1 L_end
    v_mov_b32 v4, 0
    """)
    a.label("L_poll")
    a(f"""
    global_load_dword v5, v4, s[38:39] sc1
    s_waitcnt vmcnt(0)
    v_readfirstlane_b32 s76, v5
    s_nop 3
    s_cmp_ge_u32 s76, 256
    s_cbranch_scc1 L_polled
    s_sleep 2
    s_branch L_poll
    """)
    a.label("L_polled")
    a.stamp(9)
    a(f"""
    v_mul_u32_u24 v4, 2560, v0
    s_lshl_b32 s76, s2, 4
    buffer_load_dwordx4 v[20:23], v4, s[72:75], s76 offen sc1
    v_lshlrev_b32 v5, 3, v0
    s_mov_b32 s77, {ML_OFF}
    buffer_load_dwordx2 v[24:25], v5, s[72:75], s77 offen sc1
    s_cmp_eq_u32 s11, 3
    s_cbranch_scc1 L_finA
    ; B: head = k/6
    v_mul_u32_u24 v6, 171, v0
    v_lshrrev_b32 v6, 10, v6
    v_mul_u32_u24 v6, 48, v6
    buffer_load_dwordx4 v[28:31], v6, s[72:75], s77 offen sc1
    buffer_load_dwordx4 v[32:35], v6, s[72:75], s77 offen offset:16 sc1
    buffer_load_dwordx4 v[36:39], v6, s[72:75], s77 offen offset:32 sc1
    s_waitcnt vmcnt(0)
    v_max3_f32 v7, v28, v30, v32
    v_max3_f32 v7, v7, v34, v36
    v_max_f32 v7, v7, v38
    v_sub_f32 v28, v28, v7
    v_sub_f32 v30, v30, v7
    v_sub_f32 v32, v32, v7
    v_sub_f32 v34, v34, v7
    v_sub_f32 v36, v36, v7
    v_sub_f32 v38, v38, v7
    v_sub_f32 v24, v24, v7
    v_exp_f32 v28, v28
    v_exp_f32 v30, v30
    v_exp_f32 v32, v32
    v_exp_f32 v34, v34
    v_exp_f32 v36, v36
    v_exp_f32 v38, v38
    v_exp_f32 v24, v24
    s_nop 0
    v_mul_f32 v8, v28, v29
    v_fmac_f32 v8, v30, v31
    v_fmac_f32 v8, v32, v33
    v_fmac_f32 v8, v34, v35
    v_fmac_f32 v8, v36, v37
    v_fmac_f32 v8, v38, v39
    s_branch L_finW
    """)
    a.label("L_finA")
    a(f"""
    v_and_b32 v6, 0x1fe, v0
    v_lshlrev_b32 v6, 3, v6
    buffer_load_dwordx4 v[28:31], v6, s[72:75], s77 offen sc1
    s_waitcnt vmcnt(0)
    v_max_f32 v7, v28, v30
    v_sub_f32 v28, v28, v7
    v_sub_f32 v30, v30, v7
    v_sub_f32 v24, v24, v7
    v_exp_f32 v28, v28
    v_exp_f32 v30, v30
    v_exp_f32 v24, v24
    s_nop 0
    v_mul_f32 v8, v28, v29
    v_fmac_f32 v8, v30, v31
    """)
    a.label("L_finW")
    a(f"""
    v_rcp_f32 v8, v8
    s_nop 0
    v_mul_f32 v8, v24, v8
    v_mul_f32 v20, v20, v8
    v_mul_f32 v21, v21, v8
    v_mul_f32 v22, v22, v8
    v_mul_f32 v23, v23, v8
    """)
    steps = [("row_shr:1", "0xf"), ("row_shr:2", "0xf"), ("row_shr:4", "0xf"), ("row_shr:8", "0xf"),
             ("row_bcast:15", "0xa"), ("row_bcast:31", "0xc")]
    for dpp, rm in steps:
        for r in range(4):
            a(f"v_add_f32_dpp v{20+r}, v{20+r}, v{20+r} {dpp} row_mask:{rm} bank_mask:0xf bound_ctrl:0")
    a(f"""
    s_lshr_b32 s76, s2, 5
    s_lshl_b32 s76, s76, 7
    s_bfe_u32 s77, s2, 0x20003
    s_lshl_b32 s77, s77, 5
    s_add_u32 s76, s76, s77
    s_and_b32 s77, s2, 7
    s_add_u32 s76, s76, s77
    s_lshl_b32 s76, s76, 1
    s_mov_b32 s88, s36
    s_mov_b32 s89, s37
    s_mov_b32 s90, 2560
    s_mov_b32 s91, 0x00020000
    s_mov_b32 s78, 0
    s_mov_b32 s79, 0x80000000
    s_cmp_eq_u32 s11, 3
    s_cbranch_scc1 L_finA2
    s_lshl_b32 s77, s11, 4
    v_mov_b32 v4, s77
    s_mov_b64 exec, s[78:79]
    ds_write_b128 v4, v[20:23] offset:{FIN}
    s_mov_b64 exec, -1
    s_waitcnt lgkmcnt(0)
    s_barrier
    s_cmp_lg_u32 s11, 0
    s_cbranch_scc1 L_end
    v_mov_b32 v4, 0
    ds_read_b128 v[20:23], v4 offset:{FIN}
    ds_read_b128 v[24:27], v4 offset:{FIN+16}
    ds_read_b128 v[28:31], v4 offset:{FIN+32}
    s_waitcnt lgkmcnt(0)
    """)
    for r in range(4):
        a(f"v_add_f32 v{20+r}, v{20+r}, v{24+r}")
    for r in range(4):
        a(f"v_add_f32 v{20+r}, v{20+r}, v{28+r}")
    a(f"""
    s_add_u32 s76, s76, 1280
    s_mov_b32 s79, 0
    s_mov_b32 s78, 1
    s_branch L_store
    """)
    a.label("L_finA2")
    a("s_barrier")
    a.label("L_store")
    a(f"""
    v_cvt_pk_bf16_f32 v20, v20, v20
    v_cvt_pk_bf16_f32 v21, v21, v21
    v_cvt_pk_bf16_f32 v22, v22, v22
    v_cvt_pk_bf16_f32 v23, v23, v23
    v_mov_b32 v4, 0
    s_mov_b64 exec, s[78:79]
    buffer_store_short v20, v4, s[88:91], s76 offen
    buffer_store_short v21, v4, s[88:91], s76 offen offset:16
    buffer_store_short v22, v4, s[88:91], s76 offen offset:32
    buffer_store_short v23, v4, s[88:91], s76 offen offset:48
    """)
    a.label("L_end")
    if PROF:
        a.stamp(10)
        a(f"""
        s_mov_b64 exec, 1
        s_lshl_b32 s76, s2, 3
        s_add_u32 s76, s76, s11
        s_lshl_b32 s76, s76, 6
        s_add_u32 s76, s76, {4<<20}
        s_add_u32 s92, s40, s76
        s_addc_u32 s93, s41, 0
        v_mov_b32 v4, 0
        """)
        a("v_mov_b32 v20, s13")
        for i in range(1, 12):
            a(f"v_mov_b32 v{20+i}, s{16+i}")
        for q in range(3):
            a(f"global_store_dwordx4 v4, v[{20+4*q}:{23+4*q}], s[92:93] offset:{16*q}")
    a.label("L_end2")
    a("s_endpgm")

    hdr = open("cdna_kernels/" + NAME + ".s.ref").read().split("\n")
    head = []
    for ln in hdr:
        if ln.startswith("; @launch"):
            head.append(f"; @launch grid=(256,1,1) block=(512,1,1) lds={LDS_BYTES}")
            break
        head.append(ln)
    out = "\n".join(head) + "\n"
    out += f""".amdgcn_target "amdgcn-amd-amdhsa--gfx950"
.text
.globl {NAME}_kernel
.p2align 8
.type {NAME}_kernel,@function
{NAME}_kernel:
"""
    t0 = "s_memrealtime s[92:93]\n    s_waitcnt lgkmcnt(0)\n    s_mov_b32 s13, s92" if PROF else ""
    out += a.text().replace("PROF_T0", t0).replace("PROF_CLR", "\n    ".join(f"s_mov_b32 s{16+i}, 0" for i in range(1,12)) if PROF else "")
    out += f""".section .rodata,"a"
.p2align 6
.amdhsa_kernel {NAME}_kernel
  .amdhsa_next_free_vgpr 256
  .amdhsa_next_free_sgpr 102
  .amdhsa_accum_offset 256
  .amdhsa_group_segment_fixed_size 0
  .amdhsa_kernarg_size 104
  .amdhsa_user_sgpr_count 2
  .amdhsa_user_sgpr_kernarg_segment_ptr 1
  .amdhsa_system_sgpr_workgroup_id_x 1
.end_amdhsa_kernel
"""
    return out

if __name__ == "__main__":
    if "prof" in sys.argv[2:]: PROF = True
    if "wplain" in sys.argv[2:]: NT_W = ""
    path = sys.argv[1] if len(sys.argv) > 1 else "cdna_kernels/" + NAME + ".s"
    open(path, "w").write(gen())
```

```python
import sys

PROF = False
DBGPROF = False
NT_KV = " nt"
NT_W = " nt"
NAME = "concat_heads__sliding_block_cached__gqa_block_cached__decode"

class A:
    def __init__(self):
        self.l = []
    def __call__(self, s):
        for ln in s.strip("\n").split("\n"):
            self.l.append("    " + ln.strip())
    def stamp(self, i):
        if not PROF: return
        self(f"""
        s_memrealtime s[92:93]
        s_waitcnt lgkmcnt(0)
        s_mov_b32 s{16+i}, s92
        """)
    def label(self, s):
        self.l.append(s + ":")
    def text(self):
        return "\n".join(self.l) + "\n"

def vr(b, n=1):
    return f"v{b}" if n == 1 else f"v[{b}:{b+n-1}]"
def sr(b, n=1):
    return f"s{b}" if n == 1 else f"s[{b}:{b+n-1}]"

QPART = 0
QBUF = 4096
MBUF = 4352
LBUF = 4384
OPART = 4608
YPART = 8704
FIN = YPART + 8 * 2560
LDS_BYTES = 32768
Y_OFF = 0
ML_OFF = 256 * 2560

V_TID = 0
V_LANE = 1
V_N = 2
V_G = 3
V_T0 = 4
V_SELLO = 12
V_SELHI = 16
V_X = 20
V_SC = 20
V_B0 = 44
V_B1 = 48
V_ACC = 52
V_OFFA = 56
V_OFFB = 57
V_OFFC = 58
V_OFFD = 59
V_L = 60
V_QF = 64
R3 = 64
R1 = 80
R2 = 160
V_QF = 44
V_OFFA = 60
V_OFFB = 61
V_OFFC = 62
V_OFFD = 63

C_SCALE = 0.08838834764831845 * 1.4426950408889634

import struct
def f32bits(x):
    return struct.unpack("<I", struct.pack("<f", x))[0]

def body(a, nt):
    L = f"L{nt}"
    a(f"""
    s_mul_i32 s76, s11, 160
    v_mul_u32_u24 {vr(V_T0)}, 40, {vr(V_G)}
    v_add_u32 {vr(V_T0)}, s76, {vr(V_T0)}
    buffer_load_dwordx4 {vr(V_X,4)}, {vr(V_T0)}, s[68:71], 0 offen
    buffer_load_dwordx4 {vr(V_X+4,4)}, {vr(V_T0)}, s[68:71], 0 offen offset:16
    buffer_load_dwordx2 {vr(V_X+8,2)}, {vr(V_T0)}, s[68:71], 0 offen offset:32
    """)
    a(f"""
    s_mul_i32 s76, s11, {80*8192}
    s_mov_b32 s77, {20*8192}
    v_mul_lo_u32 {vr(V_OFFA)}, s77, {vr(V_G)}
    v_lshl_add_u32 {vr(V_OFFA)}, {vr(V_N)}, 4, {vr(V_OFFA)}
    v_add_u32 {vr(V_OFFA)}, s76, {vr(V_OFFA)}
    s_mov_b32 s76, 0
    """)
    for t in range(20):
        a(f"buffer_load_dwordx4 {vr(R1+4*t,4)}, {vr(V_OFFA)}, s[52:55], s76 offen{NT_W}")
        if t < 19:
            a("s_add_u32 s76, s76, 8192")
    a(f"""
    v_lshlrev_b32 {vr(V_OFFB)}, 8, {vr(V_N)}
    v_lshl_add_u32 {vr(V_OFFB)}, {vr(V_G)}, 4, {vr(V_OFFB)}
    s_lshl_b32 s76, s11, 12
    """)
    for u in range(nt):
        for j in range(4):
            a(f"buffer_load_dwordx4 {vr(R2+16*u+4*j,4)}, {vr(V_OFFB)}, s[56:59], s76 offen offset:{j*64}{NT_KV}")
        if u < nt - 1:
            a("s_add_u32 s76, s76, 32768")
    a(f"""
    v_lshlrev_b32 {vr(V_OFFC)}, 10, {vr(V_G)}
    v_lshl_add_u32 {vr(V_OFFC)}, {vr(V_N)}, 4, {vr(V_OFFC)}
    """)
    a(f"""
    s_mul_i32 s76, s11, {16*1280}
    v_mul_u32_u24 {vr(V_OFFD)}, {4*1280}, {vr(V_G)}
    v_lshl_add_u32 {vr(V_OFFD)}, {vr(V_N)}, 4, {vr(V_OFFD)}
    v_add_u32 {vr(V_OFFD)}, s76, {vr(V_OFFD)}
    """)
    a.stamp(1)
    a(f"""
    v_and_b32 {vr(V_T0)}, 1, {vr(V_N)}
    v_cmp_eq_u32 vcc, 1, {vr(V_T0)}
    v_mov_b32 {vr(V_T0+1)}, 0x0c0c0100
    v_mov_b32 {vr(V_T0+2)}, 0x01000c0c
    v_mov_b32 {vr(V_T0+3)}, 0x0c0c0302
    v_mov_b32 {vr(V_T0+4)}, 0x03020c0c
    v_cndmask_b32 {vr(V_T0+1)}, {vr(V_T0+1)}, {vr(V_T0+2)}, vcc
    v_cndmask_b32 {vr(V_T0+3)}, {vr(V_T0+3)}, {vr(V_T0+4)}, vcc
    v_lshrrev_b32 {vr(V_T0)}, 1, {vr(V_N)}
    v_mov_b32 {vr(V_T0+2)}, 0x0c0c0c0c
    """)
    for c in range(4):
        a(f"""
        v_cmp_eq_u32 vcc, {c}, {vr(V_T0)}
        s_nop 1
        v_cndmask_b32 {vr(V_SELLO+c)}, {vr(V_T0+2)}, {vr(V_T0+1)}, vcc
        v_cndmask_b32 {vr(V_SELHI+c)}, {vr(V_T0+2)}, {vr(V_T0+3)}, vcc
        """)
    nK = 4 * nt
    a(f"s_waitcnt vmcnt({20+nK})")
    def buildB(dst, src, hi):
        sel = V_SELHI if hi else V_SELLO
        for c in range(4):
            a(f"v_perm_b32 {vr(dst+c)}, {vr(src)}, {vr(src)}, {vr(sel+c)}")
    buildB(V_B0, V_X, 0)
    for t in range(20):
        cur = V_B0 if t % 2 == 0 else V_B1
        nxt = V_B1 if t % 2 == 0 else V_B0
        if t < 19:
            buildB(nxt, V_X + (t + 1) // 2, (t + 1) % 2)
        else:
            a("s_nop 1")
        a(f"s_waitcnt vmcnt({19-t+nK})")
        c = "0" if t == 0 else vr(V_ACC, 4)
        a(f"v_mfma_f32_16x16x32_bf16 {vr(V_ACC,4)}, {vr(R1+4*t,4)}, {vr(cur,4)}, {c}")
    a.stamp(2)
    a("s_lshl_b32 s76, s11, 12")
    for u in range(nt):
        base = R1 + 16 * u if u < 5 else R3
        for r in range(4):
            a(f"buffer_load_dwordx4 {vr(base+4*r,4)}, {vr(V_OFFC)}, s[60:63], s76 offen offset:{r*256}{NT_KV}")
        if u < nt - 1:
            a("s_add_u32 s76, s76, 32768")
    a(f"""
    v_lshlrev_b32 {vr(V_T0)}, 3, {vr(V_G)}
    v_add_u32 {vr(V_T0)}, {vr(V_T0)}, {vr(V_N)}
    v_lshlrev_b32 {vr(V_T0)}, 4, {vr(V_T0)}
    s_lshl_b32 s76, s11, 9
    v_add_u32 {vr(V_T0)}, s76, {vr(V_T0)}
    s_mov_b64 exec, s[80:81]
    ds_write_b128 {vr(V_T0)}, {vr(V_ACC,4)} offset:{QPART}
    s_mov_b64 exec, -1
    s_waitcnt lgkmcnt(0)
    s_barrier
    s_cmp_ge_u32 s11, 2
    s_cbranch_scc1 {L}_qskip
    """)
    a(f"""
    v_lshrrev_b32 {vr(V_T0)}, 5, {vr(V_TID)}
    v_lshlrev_b32 {vr(V_T0)}, 7, {vr(V_T0)}
    v_and_b32 {vr(V_T0+1)}, 7, {vr(V_TID)}
    v_lshl_add_u32 {vr(V_T0)}, {vr(V_T0+1)}, 4, {vr(V_T0)}
    v_bfe_u32 {vr(V_T0+1)}, {vr(V_TID)}, 3, 2
    v_lshl_add_u32 {vr(V_T0)}, {vr(V_T0+1)}, 2, {vr(V_T0)}
    """)
    for w in range(8):
        a(f"ds_read_b32 {vr(V_QF+w)}, {vr(V_T0)} offset:{QPART+w*512}")
    a("s_waitcnt lgkmcnt(0)")
    a(f"""
    v_add_f32 {vr(V_QF)}, {vr(V_QF)}, {vr(V_QF+1)}
    v_add_f32 {vr(V_QF+2)}, {vr(V_QF+2)}, {vr(V_QF+3)}
    v_add_f32 {vr(V_QF+4)}, {vr(V_QF+4)}, {vr(V_QF+5)}
    v_add_f32 {vr(V_QF+6)}, {vr(V_QF+6)}, {vr(V_QF+7)}
    v_add_f32 {vr(V_QF)}, {vr(V_QF)}, {vr(V_QF+2)}
    v_add_f32 {vr(V_QF+4)}, {vr(V_QF+4)}, {vr(V_QF+6)}
    v_add_f32 {vr(V_QF)}, {vr(V_QF)}, {vr(V_QF+4)}
    v_cvt_pk_bf16_f32 {vr(V_QF)}, {vr(V_QF)}, {vr(V_QF)}
    v_lshlrev_b32 {vr(V_T0)}, 1, {vr(V_TID)}
    ds_write_b16 {vr(V_T0)}, {vr(V_QF)} offset:{QBUF}
    s_waitcnt lgkmcnt(0)
    """)
    a.label(f"{L}_qskip")
    a(f"""
    s_barrier
    v_lshlrev_b32 {vr(V_T0)}, 4, {vr(V_G)}
    """)
    for j in range(4):
        a(f"ds_read_b128 {vr(V_QF+4*j,4)}, {vr(V_T0)} offset:{QBUF+j*64}")
    a("s_waitcnt lgkmcnt(0)")
    a.stamp(3)
    nV = 4 * nt
    for u in range(nt):
        a(f"s_waitcnt vmcnt({4*(nt-1-u)+nV})")
        for j in range(4):
            c = "0" if j == 0 else vr(V_SC + 4 * u, 4)
            a(f"v_mfma_f32_16x16x32_bf16 {vr(V_SC+4*u,4)}, {vr(R2+16*u+4*j,4)}, {vr(V_QF+4*j,4)}, {c}")
    a.stamp(4)
    a("s_mov_b32 s76, 0")
    for t in range(4):
        for cb in range(5):
            a(f"buffer_load_dwordx4 {vr(R2+4*(t*5+cb),4)}, {vr(V_OFFD)}, s[64:67], s76 offen offset:{cb*256}{NT_W}")
        if t < 3:
            a("s_add_u32 s76, s76, 1280")
    n = 4 * nt
    a(f"v_max3_f32 {vr(V_T0)}, {vr(V_SC)}, {vr(V_SC+1)}, {vr(V_SC+2)}")
    k = 3
    while k < n:
        if k + 1 < n:
            a(f"v_max3_f32 {vr(V_T0)}, {vr(V_T0)}, {vr(V_SC+k)}, {vr(V_SC+k+1)}")
            k += 2
        else:
            a(f"v_max_f32 {vr(V_T0)}, {vr(V_T0)}, {vr(V_SC+k)}")
            k += 1
    a(f"""
    s_nop 0
    v_readlane_b32 s76, {vr(V_T0)}, 0
    v_readlane_b32 s77, {vr(V_T0)}, 16
    v_readlane_b32 s78, {vr(V_T0)}, 32
    v_readlane_b32 s79, {vr(V_T0)}, 48
    s_nop 1
    v_mov_b32 {vr(V_T0)}, s76
    v_max_f32 {vr(V_T0)}, s77, {vr(V_T0)}
    v_max_f32 {vr(V_T0)}, s78, {vr(V_T0)}
    v_max_f32 {vr(V_T0)}, s79, {vr(V_T0)}
    s_lshl_b32 s76, s11, 2
    v_mov_b32 {vr(V_T0+1)}, s76
    ds_write_b32 {vr(V_T0+1)}, {vr(V_T0)} offset:{MBUF}
    s_waitcnt lgkmcnt(0)
    s_barrier
    v_mov_b32 {vr(V_T0+1)}, 0
    ds_read_b128 {vr(V_QF,4)}, {vr(V_T0+1)} offset:{MBUF}
    ds_read_b128 {vr(V_QF+4,4)}, {vr(V_T0+1)} offset:{MBUF+16}
    s_waitcnt lgkmcnt(0)
    v_max3_f32 {vr(V_T0)}, {vr(V_QF)}, {vr(V_QF+1)}, {vr(V_QF+2)}
    v_max3_f32 {vr(V_T0)}, {vr(V_T0)}, {vr(V_QF+3)}, {vr(V_QF+4)}
    v_max3_f32 {vr(V_T0)}, {vr(V_T0)}, {vr(V_QF+5)}, {vr(V_QF+6)}
    v_max_f32 {vr(V_T0)}, {vr(V_T0)}, {vr(V_QF+7)}
    v_mul_f32 {vr(V_T0+2)}, s82, {vr(V_T0)}
    """)
    for k in range(n):
        a(f"v_fma_f32 {vr(V_SC+k)}, {vr(V_SC+k)}, s82, -{vr(V_T0+2)}")
    for k in range(n):
        a(f"v_exp_f32 {vr(V_SC+k)}, {vr(V_SC+k)}")
    a("s_nop 0")
    a(f"v_add_f32 {vr(V_L)}, {vr(V_SC)}, {vr(V_SC+1)}")
    for k in range(2, n):
        a(f"v_add_f32 {vr(V_L)}, {vr(V_L)}, {vr(V_SC+k)}")
    for k in range(0, n, 2):
        a(f"v_cvt_pk_bf16_f32 {vr(V_SC+k)}, {vr(V_SC+k)}, {vr(V_SC+k+1)}")
    a(f"""
    s_lshl_b32 s76, s11, 4
    v_lshlrev_b32 {vr(V_T0)}, 2, {vr(V_G)}
    v_add_u32 {vr(V_T0)}, s76, {vr(V_T0)}
    s_mov_b64 exec, s[84:85]
    ds_write_b32 {vr(V_T0)}, {vr(V_L)} offset:{LBUF}
    s_mov_b64 exec, -1
    """)
    a.stamp(5)
    def psrc(u, r):
        return V_SC + 4 * u + (r // 2) * 2, r % 2
    seq = [(u, r) for u in range(nt) for r in range(4)]
    s0, h0 = psrc(*seq[0])
    buildB(V_B0, s0, h0)
    for idx, (u, r) in enumerate(seq):
        cur = V_B0 if idx % 2 == 0 else V_B1
        nxt = V_B1 if idx % 2 == 0 else V_B0
        if idx + 1 < len(seq):
            s1, h1 = psrc(*seq[idx + 1])
            buildB(nxt, s1, h1)
        else:
            a("s_nop 1")
        a(f"s_waitcnt vmcnt({nV-1-idx+20})")
        base = R1 + 16 * u if u < 5 else R3
        c = "0" if idx == 0 else vr(V_ACC, 4)
        a(f"v_mfma_f32_16x16x32_bf16 {vr(V_ACC,4)}, {vr(base+4*r,4)}, {vr(cur,4)}, {c}")
    a.stamp(6)
    a(f"""
    v_lshlrev_b32 {vr(V_T0)}, 5, {vr(V_G)}
    v_add_u32 {vr(V_T0)}, {vr(V_T0)}, {vr(V_N)}
    v_lshlrev_b32 {vr(V_T0)}, 2, {vr(V_T0)}
    s_lshl_b32 s76, s11, 9
    v_add_u32 {vr(V_T0)}, s76, {vr(V_T0)}
    s_nop 4
    s_mov_b64 exec, s[80:81]
    """)
    for r in range(4):
        a(f"ds_write_b32 {vr(V_T0)}, {vr(V_ACC+r)} offset:{OPART+r*32}")
    a(f"""
    s_mov_b64 exec, -1
    s_waitcnt lgkmcnt(0)
    s_barrier
    v_and_b32 {vr(V_T0)}, 7, {vr(V_N)}
    v_lshlrev_b32 {vr(V_T0)}, 9, {vr(V_T0)}
    v_lshl_add_u32 {vr(V_T0)}, {vr(V_G)}, 4, {vr(V_T0)}
    s_lshl_b32 s76, s11, 6
    v_add_u32 {vr(V_T0)}, s76, {vr(V_T0)}
    ds_read_b128 {vr(V_T0+4,4)}, {vr(V_T0)} offset:{OPART}
    s_waitcnt lgkmcnt(0)
    """)
    for dpp in ["quad_perm:[1,0,3,2]", "quad_perm:[2,3,0,1]", "row_half_mirror"]:
        for t in range(4):
            a(f"v_add_f32_dpp {vr(V_T0+4+t)}, {vr(V_T0+4+t)}, {vr(V_T0+4+t)} {dpp} row_mask:0xf bank_mask:0xf")
    a(f"""
    v_cvt_pk_bf16_f32 {vr(V_T0+4)}, {vr(V_T0+4)}, {vr(V_T0+5)}
    v_cvt_pk_bf16_f32 {vr(V_T0+6)}, {vr(V_T0+6)}, {vr(V_T0+7)}
    """)
    VB = 20
    VY = 36
    for t in range(4):
        buildB(VB + 4 * t, V_T0 + 4 + (t // 2) * 2, t % 2)
    a("s_waitcnt vmcnt(0)")
    for t in range(4):
        for cb in range(5):
            c = "0" if t == 0 else vr(VY + 4 * cb, 4)
            a(f"v_mfma_f32_16x16x32_bf16 {vr(VY+4*cb,4)}, {vr(R2+4*(t*5+cb),4)}, {vr(VB+4*t,4)}, {c}")
    a(f"""
    v_lshlrev_b32 {vr(V_T0)}, 3, {vr(V_G)}
    v_add_u32 {vr(V_T0)}, {vr(V_T0)}, {vr(V_N)}
    v_lshlrev_b32 {vr(V_T0)}, 4, {vr(V_T0)}
    s_mul_i32 s76, s11, 2560
    v_add_u32 {vr(V_T0)}, s76, {vr(V_T0)}
    s_nop 4
    s_mov_b64 exec, s[80:81]
    """)
    for cb in range(5):
        a(f"ds_write_b128 {vr(V_T0)}, {vr(VY+4*cb,4)} offset:{YPART+cb*512}")
    a(f"""
    s_mov_b64 exec, -1
    s_waitcnt lgkmcnt(0)
    s_barrier
    s_branch L_tail
    """)

def gen():
    a = A()
    a(f"""
    s_cmp_ge_u32 s2, 256
    s_cbranch_scc1 L_end2
    s_load_dwordx16 s[16:31], s[0:1], 0
    s_load_dwordx8 s[32:39], s[0:1], 64
    s_load_dwordx2 s[40:41], s[0:1], 96
    PROF_T0
    s_and_b32 s3, s2, 7
    s_lshr_b32 s4, s2, 3
    v_lshrrev_b32 v1, 6, v0
    v_and_b32 v0, 0x3ff, v0
    v_readfirstlane_b32 s11, v1
    v_and_b32 {vr(V_LANE)}, 63, v0
    v_and_b32 {vr(V_N)}, 15, {vr(V_LANE)}
    v_lshrrev_b32 {vr(V_G)}, 4, {vr(V_LANE)}
    s_mul_i32 s5, s4, 43
    s_lshr_b32 s5, s5, 8
    s_mul_i32 s6, s5, 6
    s_sub_u32 s6, s4, s6
    s_cmp_lt_u32 s6, 4
    s_cselect_b32 s7, 43, 42
    s_mul_i32 s8, s6, 43
    s_max_u32 s76, s6, 4
    s_sub_u32 s76, s76, 4
    s_sub_u32 s8, s8, s76
    s_lshl_b32 s8, s8, 4
    s_sub_u32 s77, s4, 24
    s_lshr_b32 s78, s77, 1
    s_and_b32 s79, s77, 1
    s_lshl_b32 s80, s79, 9
    s_add_u32 s80, s80, 3072
    s_cmp_lt_u32 s4, 24
    s_cselect_b32 s5, s5, s78
    s_cselect_b32 s6, s6, s79
    s_cselect_b32 s7, s7, 32
    s_cselect_b32 s8, s8, s80
    s_cselect_b32 s12, 1, 0
    s_lshl_b32 s9, s3, 2
    s_add_u32 s9, s9, s5
    s_mul_i32 s10, s9, 6
    s_add_u32 s10, s10, s6
    s_lshl_b32 s76, s9, 1
    s_add_u32 s76, s76, s6
    s_add_u32 s76, s76, 192
    s_cmp_eq_u32 s12, 1
    s_cselect_b32 s10, s10, s76
    s_mov_b32 s80, 0x00ff00ff
    s_mov_b32 s81, 0x00ff00ff
    s_mov_b32 s82, 0x{f32bits(C_SCALE):08x}
    s_mov_b32 s84, 0x00010001
    s_mov_b32 s85, 0x00010001
    s_waitcnt lgkmcnt(0)
    s_cmp_eq_u32 s12, 1
    s_cselect_b64 s[42:43], s[26:27], s[16:17]
    s_cselect_b64 s[44:45], s[28:29], s[18:19]
    s_cselect_b64 s[46:47], s[30:31], s[20:21]
    s_cselect_b64 s[48:49], s[32:33], s[22:23]
    s_cselect_b64 s[50:51], s[34:35], s[24:25]
    s_lshl_b32 s76, s9, 8
    s_add_u32 s52, s48, s76
    s_addc_u32 s53, s49, 0
    s_sub_u32 s54, {640*8192}, s76
    s_mov_b32 s55, 0x00020000
    s_lshl_b32 s76, s9, 20
    s_lshl_b32 s77, s8, 8
    s_add_u32 s76, s76, s77
    s_add_u32 s56, s44, s76
    s_addc_u32 s57, s45, 0
    s_lshl_b32 s58, s7, 12
    s_mov_b32 s59, 0x00020000
    s_add_u32 s60, s46, s76
    s_addc_u32 s61, s47, 0
    s_mov_b32 s62, s58
    s_mov_b32 s63, 0x00020000
    s_mul_i32 s76, s9, 163840
    s_add_u32 s64, s50, s76
    s_addc_u32 s65, s51, 0
    s_mov_b32 s66, 163840
    s_mov_b32 s67, 0x00020000
    ; x SRD
    s_mov_b32 s68, s42
    s_mov_b32 s69, s43
    s_mov_b32 s70, 1280
    s_mov_b32 s71, 0x00020000
    s_mov_b32 s72, s40
    s_mov_b32 s73, s41
    s_mov_b32 s74, {ML_OFF + 256*8}
    s_mov_b32 s75, 0x00020000
    PROF_CLR
    s_sub_u32 s76, s7, s11
    s_add_u32 s76, s76, 7
    s_lshr_b32 s76, s76, 3
    s_cmp_eq_u32 s76, 6
    s_cbranch_scc1 L6_start
    s_cmp_eq_u32 s76, 5
    s_cbranch_scc1 L5_start
    """)
    for nt in (4, 5, 6):
        a.label(f"L{nt}_start")
        body(a, nt)
    a.label("L_tail")
    a.stamp(7)
    a(f"""
    s_cmp_gt_u32 s11, 3
    s_cbranch_scc1 L_tail_sync
    s_cmp_eq_u32 s11, 3
    s_cbranch_scc1 L_tail_ml
    v_cmp_gt_u32 vcc, 160, v0
    s_and_saveexec_b64 s[86:87], vcc
    s_cbranch_execz L_tail_y_done
    v_lshlrev_b32 v4, 4, v0
    """)
    for w in range(8):
        a(f"ds_read_b128 {vr(20+4*w,4)}, v4 offset:{YPART+w*2560}")
    a("s_waitcnt lgkmcnt(0)")
    for r in range(4):
        a(f"v_add_f32 v{20+r}, v{20+r}, v{24+r}")
        a(f"v_add_f32 v{28+r}, v{28+r}, v{32+r}")
        a(f"v_add_f32 v{36+r}, v{36+r}, v{40+r}")
        a(f"v_add_f32 v{44+r}, v{44+r}, v{48+r}")
    for r in range(4):
        a(f"v_add_f32 v{20+r}, v{20+r}, v{28+r}")
        a(f"v_add_f32 v{36+r}, v{36+r}, v{44+r}")
    for r in range(4):
        a(f"v_add_f32 v{20+r}, v{20+r}, v{36+r}")
    a(f"""
    s_mul_i32 s76, s10, 2560
    buffer_store_dwordx4 v[20:23], v4, s[72:75], s76 offen sc1
    """)
    a.label("L_tail_y_done")
    a(f"""
    s_mov_b64 exec, s[86:87]
    s_branch L_tail_sync
    """)
    a.label("L_tail_ml")
    a(f"""
    v_lshlrev_b32 v4, 2, {vr(V_LANE)}
    v_and_b32 v4, 127, v4
    ds_read_b32 v5, v4 offset:{LBUF}
    s_waitcnt lgkmcnt(0)
    s_nop 1
    v_add_f32_dpp v5, v5, v5 quad_perm:[1,0,3,2] row_mask:0xf bank_mask:0xf
    s_nop 1
    v_add_f32_dpp v5, v5, v5 quad_perm:[2,3,0,1] row_mask:0xf bank_mask:0xf
    s_nop 1
    v_add_f32_dpp v5, v5, v5 row_half_mirror row_mask:0xf bank_mask:0xf
    s_nop 1
    v_add_f32_dpp v5, v5, v5 row_mirror row_mask:0xf bank_mask:0xf
    s_nop 1
    v_readlane_b32 s76, v5, 16
    s_nop 1
    v_add_f32 v5, s76, v5
    v_mov_b32 v4, {vr(V_T0+2)}
    s_lshl_b32 s76, s10, 3
    s_add_u32 s76, s76, {ML_OFF}
    v_mov_b32 v8, 0
    s_mov_b64 exec, 1
    buffer_store_dwordx2 v[4:5], v8, s[72:75], s76 offen sc1
    s_mov_b64 exec, -1
    """)
    a.label("L_tail_sync")
    a(f"""
    s_waitcnt vmcnt(0)
    s_barrier
    s_cmp_lg_u32 s11, 0
    s_cbranch_scc1 L_after_signal
    v_mov_b32 v4, 0
    v_mov_b32 v5, 1
    s_mov_b64 exec, 1
    global_atomic_add v4, v5, s[38:39]
    s_mov_b64 exec, -1
    """)
    a.label("L_after_signal")
    a.stamp(8)
    a(f"""
    s_cmp_ge_u32 s2, 160
    s_cbranch_scc1 L_end
    s_cmp_gt_u32 s11, 3
    s_cbranch_scc1 L_end
    v_mov_b32 v4, 0
    """)
    a.label("L_poll")
    a(f"""
    global_load_dword v5, v4, s[38:39] sc1
    s_waitcnt vmcnt(0)
    v_readfirstlane_b32 s76, v5
    s_nop 3
    s_cmp_ge_u32 s76, 256
    s_cbranch_scc1 L_polled
    s_sleep 2
    s_branch L_poll
    """)
    a.label("L_polled")
    a.stamp(9)
    a(f"""
    v_mul_u32_u24 v4, 2560, v0
    s_lshl_b32 s76, s2, 4
    buffer_load_dwordx4 v[20:23], v4, s[72:75], s76 offen sc1
    v_lshlrev_b32 v5, 3, v0
    s_mov_b32 s77, {ML_OFF}
    buffer_load_dwordx2 v[24:25], v5, s[72:75], s77 offen sc1
    s_cmp_eq_u32 s11, 3
    s_cbranch_scc1 L_finA
    ; B: head = k/6
    v_mul_u32_u24 v6, 171, v0
    v_lshrrev_b32 v6, 10, v6
    v_mul_u32_u24 v6, 48, v6
    buffer_load_dwordx4 v[28:31], v6, s[72:75], s77 offen sc1
    buffer_load_dwordx4 v[32:35], v6, s[72:75], s77 offen offset:16 sc1
    buffer_load_dwordx4 v[36:39], v6, s[72:75], s77 offen offset:32 sc1
    s_waitcnt vmcnt(0)
    v_max3_f32 v7, v28, v30, v32
    v_max3_f32 v7, v7, v34, v36
    v_max_f32 v7, v7, v38
    v_sub_f32 v28, v28, v7
    v_sub_f32 v30, v30, v7
    v_sub_f32 v32, v32, v7
    v_sub_f32 v34, v34, v7
    v_sub_f32 v36, v36, v7
    v_sub_f32 v38, v38, v7
    v_sub_f32 v24, v24, v7
    v_exp_f32 v28, v28
    v_exp_f32 v30, v30
    v_exp_f32 v32, v32
    v_exp_f32 v34, v34
    v_exp_f32 v36, v36
    v_exp_f32 v38, v38
    v_exp_f32 v24, v24
    s_nop 0
    v_mul_f32 v8, v28, v29
    v_fmac_f32 v8, v30, v31
    v_fmac_f32 v8, v32, v33
    v_fmac_f32 v8, v34, v35
    v_fmac_f32 v8, v36, v37
    v_fmac_f32 v8, v38, v39
    s_branch L_finW
    """)
    a.label("L_finA")
    a(f"""
    v_and_b32 v6, 0x1fe, v0
    v_lshlrev_b32 v6, 3, v6
    buffer_load_dwordx4 v[28:31], v6, s[72:75], s77 offen sc1
    s_waitcnt vmcnt(0)
    v_max_f32 v7, v28, v30
    v_sub_f32 v28, v28, v7
    v_sub_f32 v30, v30, v7
    v_sub_f32 v24, v24, v7
    v_exp_f32 v28, v28
    v_exp_f32 v30, v30
    v_exp_f32 v24, v24
    s_nop 0
    v_mul_f32 v8, v28, v29
    v_fmac_f32 v8, v30, v31
    """)
    a.label("L_finW")
    a(f"""
    v_rcp_f32 v8, v8
    s_nop 0
    v_mul_f32 v8, v24, v8
    v_mul_f32 v20, v20, v8
    v_mul_f32 v21, v21, v8
    v_mul_f32 v22, v22, v8
    v_mul_f32 v23, v23, v8
    """)
    steps = [("row_shr:1", "0xf"), ("row_shr:2", "0xf"), ("row_shr:4", "0xf"), ("row_shr:8", "0xf"),
             ("row_bcast:15", "0xa"), ("row_bcast:31", "0xc")]
    for dpp, rm in steps:
        for r in range(4):
            a(f"v_add_f32_dpp v{20+r}, v{20+r}, v{20+r} {dpp} row_mask:{rm} bank_mask:0xf bound_ctrl:0")
    a(f"""
    s_lshr_b32 s76, s2, 5
    s_lshl_b32 s76, s76, 7
    s_bfe_u32 s77, s2, 0x20003
    s_lshl_b32 s77, s77, 5
    s_add_u32 s76, s76, s77
    s_and_b32 s77, s2, 7
    s_add_u32 s76, s76, s77
    s_lshl_b32 s76, s76, 1
    s_mov_b32 s88, s36
    s_mov_b32 s89, s37
    s_mov_b32 s90, 2560
    s_mov_b32 s91, 0x00020000
    s_mov_b32 s78, 0
    s_mov_b32 s79, 0x80000000
    s_cmp_eq_u32 s11, 3
    s_cbranch_scc1 L_finA2
    s_lshl_b32 s77, s11, 4
    v_mov_b32 v4, s77
    s_mov_b64 exec, s[78:79]
    ds_write_b128 v4, v[20:23] offset:{FIN}
    s_mov_b64 exec, -1
    s_waitcnt lgkmcnt(0)
    s_barrier
    s_cmp_lg_u32 s11, 0
    s_cbranch_scc1 L_end
    v_mov_b32 v4, 0
    ds_read_b128 v[20:23], v4 offset:{FIN}
    ds_read_b128 v[24:27], v4 offset:{FIN+16}
    ds_read_b128 v[28:31], v4 offset:{FIN+32}
    s_waitcnt lgkmcnt(0)
    """)
    for r in range(4):
        a(f"v_add_f32 v{20+r}, v{20+r}, v{24+r}")
    for r in range(4):
        a(f"v_add_f32 v{20+r}, v{20+r}, v{28+r}")
    a(f"""
    s_add_u32 s76, s76, 1280
    s_mov_b32 s79, 0
    s_mov_b32 s78, 1
    s_branch L_store
    """)
    a.label("L_finA2")
    a("s_barrier")
    a.label("L_store")
    a(f"""
    v_cvt_pk_bf16_f32 v20, v20, v20
    v_cvt_pk_bf16_f32 v21, v21, v21
    v_cvt_pk_bf16_f32 v22, v22, v22
    v_cvt_pk_bf16_f32 v23, v23, v23
    v_mov_b32 v4, 0
    s_mov_b64 exec, s[78:79]
    buffer_store_short v20, v4, s[88:91], s76 offen
    buffer_store_short v21, v4, s[88:91], s76 offen offset:16
    buffer_store_short v22, v4, s[88:91], s76 offen offset:32
    buffer_store_short v23, v4, s[88:91], s76 offen offset:48
    """)
    a.label("L_end")
    if PROF:
        a.stamp(10)
        a(f"""
        s_mov_b64 exec, 1
        s_lshl_b32 s76, s2, 3
        s_add_u32 s76, s76, s11
        s_lshl_b32 s76, s76, 6
        s_add_u32 s76, s76, {4<<20}
        s_add_u32 s92, s40, s76
        s_addc_u32 s93, s41, 0
        v_mov_b32 v4, 0
        """)
        a("v_mov_b32 v20, s13")
        for i in range(1, 12):
            a(f"v_mov_b32 v{20+i}, s{16+i}")
        if DBGPROF:
            a("v_not_b32 v20, v20")
            a("v_not_b32 v32, v21")
            a("v_not_b32 v33, v23")
            for i in range(0, 11):
                a(f"global_atomic_umax v4, v{20+i}, s[38:39] offset:{4+4*i}")
            a(f"global_atomic_umax v4, v32, s[38:39] offset:{48}")
            a(f"global_atomic_umax v4, v33, s[38:39] offset:{52}")
        else:
          for q in range(3):
            a(f"global_store_dwordx4 v4, v[{20+4*q}:{23+4*q}], s[92:93] offset:{16*q}")
    a.label("L_end2")
    a("s_endpgm")

    hdr = open("cdna_kernels/" + NAME + ".s.ref").read().split("\n")
    head = []
    for ln in hdr:
        if ln.startswith("; @launch"):
            head.append(f"; @launch grid=(256,1,1) block=(512,1,1) lds={LDS_BYTES}")
            break
        head.append(ln)
    out = "\n".join(head) + "\n"
    out += f""".amdgcn_target "amdgcn-amd-amdhsa--gfx950"
.text
.globl {NAME}_kernel
.p2align 8
.type {NAME}_kernel,@function
{NAME}_kernel:
"""
    t0 = "s_memrealtime s[92:93]\n    s_waitcnt lgkmcnt(0)\n    s_mov_b32 s13, s92" if PROF else ""
    out += a.text().replace("PROF_T0", t0).replace("PROF_CLR", "\n    ".join(f"s_mov_b32 s{16+i}, 0" for i in range(1,12)) if PROF else "")
    out += f""".section .rodata,"a"
.p2align 6
.amdhsa_kernel {NAME}_kernel
  .amdhsa_next_free_vgpr 256
  .amdhsa_next_free_sgpr 102
  .amdhsa_accum_offset 256
  .amdhsa_group_segment_fixed_size 0
  .amdhsa_kernarg_size 104
  .amdhsa_user_sgpr_count 2
  .amdhsa_user_sgpr_kernarg_segment_ptr 1
  .amdhsa_system_sgpr_workgroup_id_x 1
.end_amdhsa_kernel
"""
    return out

if __name__ == "__main__":
    if "prof" in sys.argv[2:]: PROF = True
    if "dbgprof" in sys.argv[2:]: PROF = True; DBGPROF = True
    if "wplain" in sys.argv[2:]: NT_W = ""
    path = sys.argv[1] if len(sys.argv) > 1 else "cdna_kernels/" + NAME + ".s"
    open(path, "w").write(gen())
```

```python
import sys

PROF = False
DBGPROF = False
NT_KV = " nt"
NT_W = " nt"
NAME = "concat_heads__sliding_block_cached__gqa_block_cached__decode"

class A:
    def __init__(self):
        self.l = []
    def __call__(self, s):
        for ln in s.strip("\n").split("\n"):
            self.l.append("    " + ln.strip())
    def stamp(self, i):
        if not PROF: return
        self(f"""
        s_memrealtime s[92:93]
        s_waitcnt lgkmcnt(0)
        s_mov_b32 s{16+i}, s92
        """)
    def label(self, s):
        self.l.append(s + ":")
    def text(self):
        return "\n".join(self.l) + "\n"

def vr(b, n=1):
    return f"v{b}" if n == 1 else f"v[{b}:{b+n-1}]"
def sr(b, n=1):
    return f"s{b}" if n == 1 else f"s[{b}:{b+n-1}]"

QPART = 0
QBUF = 4096
MBUF = 4352
LBUF = 4384
OPART = 4608
YPART = 8704
FIN = YPART + 8 * 2560
LDS_BYTES = 32768
Y_OFF = 0
ML_OFF = 256 * 2560

V_TID = 0
V_LANE = 1
V_N = 2
V_G = 3
V_T0 = 4
V_SELLO = 12
V_SELHI = 16
V_X = 20
V_SC = 20
V_B0 = 44
V_B1 = 48
V_ACC = 52
V_OFFA = 56
V_OFFB = 57
V_OFFC = 58
V_OFFD = 59
V_L = 60
V_QF = 64
R3 = 64
R1 = 80
R2 = 160
V_QF = 44
V_OFFA = 60
V_OFFB = 61
V_OFFC = 62
V_OFFD = 63

C_SCALE = 0.08838834764831845 * 1.4426950408889634

import struct
def f32bits(x):
    return struct.unpack("<I", struct.pack("<f", x))[0]

def body(a, nt):
    L = f"L{nt}"
    a(f"""
    s_mul_i32 s76, s11, 160
    v_mul_u32_u24 {vr(V_T0)}, 40, {vr(V_G)}
    v_add_u32 {vr(V_T0)}, s76, {vr(V_T0)}
    buffer_load_dwordx4 {vr(V_X,4)}, {vr(V_T0)}, s[68:71], 0 offen
    buffer_load_dwordx4 {vr(V_X+4,4)}, {vr(V_T0)}, s[68:71], 0 offen offset:16
    buffer_load_dwordx2 {vr(V_X+8,2)}, {vr(V_T0)}, s[68:71], 0 offen offset:32
    """)
    a(f"""
    s_mul_i32 s76, s11, {80*8192}
    s_mov_b32 s77, {20*8192}
    v_mul_lo_u32 {vr(V_OFFA)}, s77, {vr(V_G)}
    v_lshl_add_u32 {vr(V_OFFA)}, {vr(V_N)}, 4, {vr(V_OFFA)}
    v_add_u32 {vr(V_OFFA)}, s76, {vr(V_OFFA)}
    s_mov_b32 s76, 0
    """)
    for t in range(20):
        a(f"buffer_load_dwordx4 {vr(R1+4*t,4)}, {vr(V_OFFA)}, s[52:55], s76 offen{NT_W}")
        if t < 19:
            a("s_add_u32 s76, s76, 8192")
    a(f"""
    v_lshlrev_b32 {vr(V_OFFB)}, 8, {vr(V_N)}
    v_lshl_add_u32 {vr(V_OFFB)}, {vr(V_G)}, 4, {vr(V_OFFB)}
    s_lshl_b32 s76, s11, 12
    """)
    for u in range(nt):
        for j in range(4):
            a(f"buffer_load_dwordx4 {vr(R2+16*u+4*j,4)}, {vr(V_OFFB)}, s[56:59], s76 offen offset:{j*64}{NT_KV}")
        if u < nt - 1:
            a("s_add_u32 s76, s76, 32768")
    a(f"""
    v_lshlrev_b32 {vr(V_OFFC)}, 10, {vr(V_G)}
    v_lshl_add_u32 {vr(V_OFFC)}, {vr(V_N)}, 4, {vr(V_OFFC)}
    """)
    a(f"""
    s_mul_i32 s76, s11, {16*1280}
    v_mul_u32_u24 {vr(V_OFFD)}, {4*1280}, {vr(V_G)}
    v_lshl_add_u32 {vr(V_OFFD)}, {vr(V_N)}, 4, {vr(V_OFFD)}
    v_add_u32 {vr(V_OFFD)}, s76, {vr(V_OFFD)}
    """)
    a.stamp(1)
    a(f"""
    v_and_b32 {vr(V_T0)}, 1, {vr(V_N)}
    v_cmp_eq_u32 vcc, 1, {vr(V_T0)}
    v_mov_b32 {vr(V_T0+1)}, 0x0c0c0100
    v_mov_b32 {vr(V_T0+2)}, 0x01000c0c
    v_mov_b32 {vr(V_T0+3)}, 0x0c0c0302
    v_mov_b32 {vr(V_T0+4)}, 0x03020c0c
    v_cndmask_b32 {vr(V_T0+1)}, {vr(V_T0+1)}, {vr(V_T0+2)}, vcc
    v_cndmask_b32 {vr(V_T0+3)}, {vr(V_T0+3)}, {vr(V_T0+4)}, vcc
    v_lshrrev_b32 {vr(V_T0)}, 1, {vr(V_N)}
    v_mov_b32 {vr(V_T0+2)}, 0x0c0c0c0c
    """)
    for c in range(4):
        a(f"""
        v_cmp_eq_u32 vcc, {c}, {vr(V_T0)}
        s_nop 1
        v_cndmask_b32 {vr(V_SELLO+c)}, {vr(V_T0+2)}, {vr(V_T0+1)}, vcc
        v_cndmask_b32 {vr(V_SELHI+c)}, {vr(V_T0+2)}, {vr(V_T0+3)}, vcc
        """)
    nK = 4 * nt
    a(f"s_waitcnt vmcnt({20+nK})")
    def buildB(dst, src, hi):
        sel = V_SELHI if hi else V_SELLO
        for c in range(4):
            a(f"v_perm_b32 {vr(dst+c)}, {vr(src)}, {vr(src)}, {vr(sel+c)}")
    buildB(V_B0, V_X, 0)
    for t in range(20):
        cur = V_B0 if t % 2 == 0 else V_B1
        nxt = V_B1 if t % 2 == 0 else V_B0
        if t < 19:
            buildB(nxt, V_X + (t + 1) // 2, (t + 1) % 2)
        else:
            a("s_nop 1")
        a(f"s_waitcnt vmcnt({19-t+nK})")
        c = "0" if t == 0 else vr(V_ACC, 4)
        a(f"v_mfma_f32_16x16x32_bf16 {vr(V_ACC,4)}, {vr(R1+4*t,4)}, {vr(cur,4)}, {c}")
    a.stamp(2)
    a("s_lshl_b32 s76, s11, 12")
    for u in range(nt):
        base = R1 + 16 * u if u < 5 else R3
        for r in range(4):
            a(f"buffer_load_dwordx4 {vr(base+4*r,4)}, {vr(V_OFFC)}, s[60:63], s76 offen offset:{r*256}{NT_KV}")
        if u < nt - 1:
            a("s_add_u32 s76, s76, 32768")
    a(f"""
    v_lshlrev_b32 {vr(V_T0)}, 3, {vr(V_G)}
    v_add_u32 {vr(V_T0)}, {vr(V_T0)}, {vr(V_N)}
    v_lshlrev_b32 {vr(V_T0)}, 4, {vr(V_T0)}
    s_lshl_b32 s76, s11, 9
    v_add_u32 {vr(V_T0)}, s76, {vr(V_T0)}
    s_mov_b64 exec, s[80:81]
    ds_write_b128 {vr(V_T0)}, {vr(V_ACC,4)} offset:{QPART}
    s_mov_b64 exec, -1
    s_waitcnt lgkmcnt(0)
    s_barrier
    s_cmp_ge_u32 s11, 2
    s_cbranch_scc1 {L}_qskip
    """)
    a(f"""
    v_lshrrev_b32 {vr(V_T0)}, 5, {vr(V_TID)}
    v_lshlrev_b32 {vr(V_T0)}, 7, {vr(V_T0)}
    v_and_b32 {vr(V_T0+1)}, 7, {vr(V_TID)}
    v_lshl_add_u32 {vr(V_T0)}, {vr(V_T0+1)}, 4, {vr(V_T0)}
    v_bfe_u32 {vr(V_T0+1)}, {vr(V_TID)}, 3, 2
    v_lshl_add_u32 {vr(V_T0)}, {vr(V_T0+1)}, 2, {vr(V_T0)}
    """)
    for w in range(8):
        a(f"ds_read_b32 {vr(V_QF+w)}, {vr(V_T0)} offset:{QPART+w*512}")
    a("s_waitcnt lgkmcnt(0)")
    a(f"""
    v_add_f32 {vr(V_QF)}, {vr(V_QF)}, {vr(V_QF+1)}
    v_add_f32 {vr(V_QF+2)}, {vr(V_QF+2)}, {vr(V_QF+3)}
    v_add_f32 {vr(V_QF+4)}, {vr(V_QF+4)}, {vr(V_QF+5)}
    v_add_f32 {vr(V_QF+6)}, {vr(V_QF+6)}, {vr(V_QF+7)}
    v_add_f32 {vr(V_QF)}, {vr(V_QF)}, {vr(V_QF+2)}
    v_add_f32 {vr(V_QF+4)}, {vr(V_QF+4)}, {vr(V_QF+6)}
    v_add_f32 {vr(V_QF)}, {vr(V_QF)}, {vr(V_QF+4)}
    v_cvt_pk_bf16_f32 {vr(V_QF)}, {vr(V_QF)}, {vr(V_QF)}
    v_lshlrev_b32 {vr(V_T0)}, 1, {vr(V_TID)}
    ds_write_b16 {vr(V_T0)}, {vr(V_QF)} offset:{QBUF}
    s_waitcnt lgkmcnt(0)
    """)
    a.label(f"{L}_qskip")
    a(f"""
    s_barrier
    v_lshlrev_b32 {vr(V_T0)}, 4, {vr(V_G)}
    """)
    for j in range(4):
        a(f"ds_read_b128 {vr(V_QF+4*j,4)}, {vr(V_T0)} offset:{QBUF+j*64}")
    a("s_waitcnt lgkmcnt(0)")
    a.stamp(3)
    nV = 4 * nt
    for u in range(nt):
        a(f"s_waitcnt vmcnt({4*(nt-1-u)+nV})")
        for j in range(4):
            c = "0" if j == 0 else vr(V_SC + 4 * u, 4)
            a(f"v_mfma_f32_16x16x32_bf16 {vr(V_SC+4*u,4)}, {vr(R2+16*u+4*j,4)}, {vr(V_QF+4*j,4)}, {c}")
    a.stamp(4)
    a("s_mov_b32 s76, 0")
    for t in range(4):
        for cb in range(5):
            a(f"buffer_load_dwordx4 {vr(R2+4*(t*5+cb),4)}, {vr(V_OFFD)}, s[64:67], s76 offen offset:{cb*256}{NT_W}")
        if t < 3:
            a("s_add_u32 s76, s76, 1280")
    n = 4 * nt
    a(f"v_max3_f32 {vr(V_T0)}, {vr(V_SC)}, {vr(V_SC+1)}, {vr(V_SC+2)}")
    k = 3
    while k < n:
        if k + 1 < n:
            a(f"v_max3_f32 {vr(V_T0)}, {vr(V_T0)}, {vr(V_SC+k)}, {vr(V_SC+k+1)}")
            k += 2
        else:
            a(f"v_max_f32 {vr(V_T0)}, {vr(V_T0)}, {vr(V_SC+k)}")
            k += 1
    a(f"""
    s_nop 0
    v_readlane_b32 s76, {vr(V_T0)}, 0
    v_readlane_b32 s77, {vr(V_T0)}, 16
    v_readlane_b32 s78, {vr(V_T0)}, 32
    v_readlane_b32 s79, {vr(V_T0)}, 48
    s_nop 1
    v_mov_b32 {vr(V_T0)}, s76
    v_max_f32 {vr(V_T0)}, s77, {vr(V_T0)}
    v_max_f32 {vr(V_T0)}, s78, {vr(V_T0)}
    v_max_f32 {vr(V_T0)}, s79, {vr(V_T0)}
    s_lshl_b32 s76, s11, 2
    v_mov_b32 {vr(V_T0+1)}, s76
    ds_write_b32 {vr(V_T0+1)}, {vr(V_T0)} offset:{MBUF}
    s_waitcnt lgkmcnt(0)
    s_barrier
    v_mov_b32 {vr(V_T0+1)}, 0
    ds_read_b128 {vr(V_QF,4)}, {vr(V_T0+1)} offset:{MBUF}
    ds_read_b128 {vr(V_QF+4,4)}, {vr(V_T0+1)} offset:{MBUF+16}
    s_waitcnt lgkmcnt(0)
    v_max3_f32 {vr(V_T0)}, {vr(V_QF)}, {vr(V_QF+1)}, {vr(V_QF+2)}
    v_max3_f32 {vr(V_T0)}, {vr(V_T0)}, {vr(V_QF+3)}, {vr(V_QF+4)}
    v_max3_f32 {vr(V_T0)}, {vr(V_T0)}, {vr(V_QF+5)}, {vr(V_QF+6)}
    v_max_f32 {vr(V_T0)}, {vr(V_T0)}, {vr(V_QF+7)}
    v_mul_f32 {vr(V_T0+2)}, s82, {vr(V_T0)}
    """)
    for k in range(n):
        a(f"v_fma_f32 {vr(V_SC+k)}, {vr(V_SC+k)}, s82, -{vr(V_T0+2)}")
    for k in range(n):
        a(f"v_exp_f32 {vr(V_SC+k)}, {vr(V_SC+k)}")
    a("s_nop 0")
    a(f"v_add_f32 {vr(V_L)}, {vr(V_SC)}, {vr(V_SC+1)}")
    for k in range(2, n):
        a(f"v_add_f32 {vr(V_L)}, {vr(V_L)}, {vr(V_SC+k)}")
    for k in range(0, n, 2):
        a(f"v_cvt_pk_bf16_f32 {vr(V_SC+k)}, {vr(V_SC+k)}, {vr(V_SC+k+1)}")
    a(f"""
    s_lshl_b32 s76, s11, 4
    v_lshlrev_b32 {vr(V_T0)}, 2, {vr(V_G)}
    v_add_u32 {vr(V_T0)}, s76, {vr(V_T0)}
    s_mov_b64 exec, s[84:85]
    ds_write_b32 {vr(V_T0)}, {vr(V_L)} offset:{LBUF}
    s_mov_b64 exec, -1
    """)
    a.stamp(5)
    def psrc(u, r):
        return V_SC + 4 * u + (r // 2) * 2, r % 2
    seq = [(u, r) for u in range(nt) for r in range(4)]
    s0, h0 = psrc(*seq[0])
    buildB(V_B0, s0, h0)
    for idx, (u, r) in enumerate(seq):
        cur = V_B0 if idx % 2 == 0 else V_B1
        nxt = V_B1 if idx % 2 == 0 else V_B0
        if idx + 1 < len(seq):
            s1, h1 = psrc(*seq[idx + 1])
            buildB(nxt, s1, h1)
        else:
            a("s_nop 1")
        a(f"s_waitcnt vmcnt({nV-1-idx+20})")
        base = R1 + 16 * u if u < 5 else R3
        c = "0" if idx == 0 else vr(V_ACC, 4)
        a(f"v_mfma_f32_16x16x32_bf16 {vr(V_ACC,4)}, {vr(base+4*r,4)}, {vr(cur,4)}, {c}")
    a.stamp(6)
    a(f"""
    v_lshlrev_b32 {vr(V_T0)}, 5, {vr(V_G)}
    v_add_u32 {vr(V_T0)}, {vr(V_T0)}, {vr(V_N)}
    v_lshlrev_b32 {vr(V_T0)}, 2, {vr(V_T0)}
    s_lshl_b32 s76, s11, 9
    v_add_u32 {vr(V_T0)}, s76, {vr(V_T0)}
    s_nop 4
    s_mov_b64 exec, s[80:81]
    """)
    for r in range(4):
        a(f"ds_write_b32 {vr(V_T0)}, {vr(V_ACC+r)} offset:{OPART+r*32}")
    a(f"""
    s_mov_b64 exec, -1
    s_waitcnt lgkmcnt(0)
    s_barrier
    v_and_b32 {vr(V_T0)}, 7, {vr(V_N)}
    v_lshlrev_b32 {vr(V_T0)}, 9, {vr(V_T0)}
    v_lshl_add_u32 {vr(V_T0)}, {vr(V_G)}, 4, {vr(V_T0)}
    s_lshl_b32 s76, s11, 6
    v_add_u32 {vr(V_T0)}, s76, {vr(V_T0)}
    ds_read_b128 {vr(V_T0+4,4)}, {vr(V_T0)} offset:{OPART}
    s_waitcnt lgkmcnt(0)
    """)
    for dpp in ["quad_perm:[1,0,3,2]", "quad_perm:[2,3,0,1]", "row_half_mirror"]:
        for t in range(4):
            a(f"v_add_f32_dpp {vr(V_T0+4+t)}, {vr(V_T0+4+t)}, {vr(V_T0+4+t)} {dpp} row_mask:0xf bank_mask:0xf")
    a(f"""
    v_cvt_pk_bf16_f32 {vr(V_T0+4)}, {vr(V_T0+4)}, {vr(V_T0+5)}
    v_cvt_pk_bf16_f32 {vr(V_T0+6)}, {vr(V_T0+6)}, {vr(V_T0+7)}
    """)
    VB = 20
    VY = 36
    for t in range(4):
        buildB(VB + 4 * t, V_T0 + 4 + (t // 2) * 2, t % 2)
    a("s_waitcnt vmcnt(0)")
    for t in range(4):
        for cb in range(5):
            c = "0" if t == 0 else vr(VY + 4 * cb, 4)
            a(f"v_mfma_f32_16x16x32_bf16 {vr(VY+4*cb,4)}, {vr(R2+4*(t*5+cb),4)}, {vr(VB+4*t,4)}, {c}")
    a(f"""
    v_lshlrev_b32 {vr(V_T0)}, 3, {vr(V_G)}
    v_add_u32 {vr(V_T0)}, {vr(V_T0)}, {vr(V_N)}
    v_lshlrev_b32 {vr(V_T0)}, 4, {vr(V_T0)}
    s_mul_i32 s76, s11, 2560
    v_add_u32 {vr(V_T0)}, s76, {vr(V_T0)}
    s_nop 4
    s_mov_b64 exec, s[80:81]
    """)
    for cb in range(5):
        a(f"ds_write_b128 {vr(V_T0)}, {vr(VY+4*cb,4)} offset:{YPART+cb*512}")
    a(f"""
    s_mov_b64 exec, -1
    s_waitcnt lgkmcnt(0)
    s_barrier
    s_branch L_tail
    """)

def gen():
    a = A()
    a(f"""
    s_cmp_ge_u32 s2, 256
    s_cbranch_scc1 L_end2
    s_load_dwordx16 s[16:31], s[0:1], 0
    s_load_dwordx8 s[32:39], s[0:1], 64
    s_load_dwordx2 s[40:41], s[0:1], 96
    PROF_T0
    s_and_b32 s3, s2, 7
    s_lshr_b32 s4, s2, 3
    v_lshrrev_b32 v1, 6, v0
    v_and_b32 v0, 0x3ff, v0
    v_readfirstlane_b32 s11, v1
    v_and_b32 {vr(V_LANE)}, 63, v0
    v_and_b32 {vr(V_N)}, 15, {vr(V_LANE)}
    v_lshrrev_b32 {vr(V_G)}, 4, {vr(V_LANE)}
    s_mul_i32 s5, s4, 43
    s_lshr_b32 s5, s5, 8
    s_mul_i32 s6, s5, 6
    s_sub_u32 s6, s4, s6
    s_cmp_lt_u32 s6, 4
    s_cselect_b32 s7, 43, 42
    s_mul_i32 s8, s6, 43
    s_max_u32 s76, s6, 4
    s_sub_u32 s76, s76, 4
    s_sub_u32 s8, s8, s76
    s_lshl_b32 s8, s8, 4
    s_sub_u32 s77, s4, 24
    s_lshr_b32 s78, s77, 1
    s_and_b32 s79, s77, 1
    s_lshl_b32 s80, s79, 9
    s_add_u32 s80, s80, 3072
    s_cmp_lt_u32 s4, 24
    s_cselect_b32 s5, s5, s78
    s_cselect_b32 s6, s6, s79
    s_cselect_b32 s7, s7, 32
    s_cselect_b32 s8, s8, s80
    s_cselect_b32 s12, 1, 0
    s_lshl_b32 s9, s3, 2
    s_add_u32 s9, s9, s5
    s_mul_i32 s10, s9, 6
    s_add_u32 s10, s10, s6
    s_lshl_b32 s76, s9, 1
    s_add_u32 s76, s76, s6
    s_add_u32 s76, s76, 192
    s_cmp_eq_u32 s12, 1
    s_cselect_b32 s10, s10, s76
    s_mov_b32 s80, 0x00ff00ff
    s_mov_b32 s81, 0x00ff00ff
    s_mov_b32 s82, 0x{f32bits(C_SCALE):08x}
    s_mov_b32 s84, 0x00010001
    s_mov_b32 s85, 0x00010001
    s_waitcnt lgkmcnt(0)
    s_cmp_eq_u32 s12, 1
    s_cselect_b64 s[42:43], s[26:27], s[16:17]
    s_cselect_b64 s[44:45], s[28:29], s[18:19]
    s_cselect_b64 s[46:47], s[30:31], s[20:21]
    s_cselect_b64 s[48:49], s[32:33], s[22:23]
    s_cselect_b64 s[50:51], s[34:35], s[24:25]
    s_lshl_b32 s76, s9, 8
    s_add_u32 s52, s48, s76
    s_addc_u32 s53, s49, 0
    s_sub_u32 s54, {640*8192}, s76
    s_mov_b32 s55, 0x00020000
    s_lshl_b32 s76, s9, 20
    s_lshl_b32 s77, s8, 8
    s_add_u32 s76, s76, s77
    s_add_u32 s56, s44, s76
    s_addc_u32 s57, s45, 0
    s_lshl_b32 s58, s7, 12
    s_mov_b32 s59, 0x00020000
    s_add_u32 s60, s46, s76
    s_addc_u32 s61, s47, 0
    s_mov_b32 s62, s58
    s_mov_b32 s63, 0x00020000
    s_mul_i32 s76, s9, 163840
    s_add_u32 s64, s50, s76
    s_addc_u32 s65, s51, 0
    s_mov_b32 s66, 163840
    s_mov_b32 s67, 0x00020000
    ; x SRD
    s_mov_b32 s68, s42
    s_mov_b32 s69, s43
    s_mov_b32 s70, 1280
    s_mov_b32 s71, 0x00020000
    s_mov_b32 s72, s40
    s_mov_b32 s73, s41
    s_mov_b32 s74, {ML_OFF + 256*8}
    s_mov_b32 s75, 0x00020000
    PROF_CLR
    s_sub_u32 s76, s7, s11
    s_add_u32 s76, s76, 7
    s_lshr_b32 s76, s76, 3
    s_cmp_eq_u32 s76, 6
    s_cbranch_scc1 L6_start
    s_cmp_eq_u32 s76, 5
    s_cbranch_scc1 L5_start
    """)
    for nt in (4, 5, 6):
        a.label(f"L{nt}_start")
        body(a, nt)
    a.label("L_tail")
    a.stamp(7)
    a(f"""
    s_cmp_gt_u32 s11, 3
    s_cbranch_scc1 L_tail_sync
    s_cmp_eq_u32 s11, 3
    s_cbranch_scc1 L_tail_ml
    v_cmp_gt_u32 vcc, 160, v0
    s_and_saveexec_b64 s[86:87], vcc
    s_cbranch_execz L_tail_y_done
    v_lshlrev_b32 v4, 4, v0
    """)
    for w in range(8):
        a(f"ds_read_b128 {vr(20+4*w,4)}, v4 offset:{YPART+w*2560}")
    a("s_waitcnt lgkmcnt(0)")
    for r in range(4):
        a(f"v_add_f32 v{20+r}, v{20+r}, v{24+r}")
        a(f"v_add_f32 v{28+r}, v{28+r}, v{32+r}")
        a(f"v_add_f32 v{36+r}, v{36+r}, v{40+r}")
        a(f"v_add_f32 v{44+r}, v{44+r}, v{48+r}")
    for r in range(4):
        a(f"v_add_f32 v{20+r}, v{20+r}, v{28+r}")
        a(f"v_add_f32 v{36+r}, v{36+r}, v{44+r}")
    for r in range(4):
        a(f"v_add_f32 v{20+r}, v{20+r}, v{36+r}")
    a(f"""
    s_mul_i32 s76, s10, 2560
    buffer_store_dwordx4 v[20:23], v4, s[72:75], s76 offen sc1
    """)
    a.label("L_tail_y_done")
    a(f"""
    s_mov_b64 exec, s[86:87]
    s_branch L_tail_sync
    """)
    a.label("L_tail_ml")
    a(f"""
    v_lshlrev_b32 v4, 2, {vr(V_LANE)}
    v_and_b32 v4, 127, v4
    ds_read_b32 v5, v4 offset:{LBUF}
    s_waitcnt lgkmcnt(0)
    s_nop 1
    v_add_f32_dpp v5, v5, v5 quad_perm:[1,0,3,2] row_mask:0xf bank_mask:0xf
    s_nop 1
    v_add_f32_dpp v5, v5, v5 quad_perm:[2,3,0,1] row_mask:0xf bank_mask:0xf
    s_nop 1
    v_add_f32_dpp v5, v5, v5 row_half_mirror row_mask:0xf bank_mask:0xf
    s_nop 1
    v_add_f32_dpp v5, v5, v5 row_mirror row_mask:0xf bank_mask:0xf
    s_nop 1
    v_readlane_b32 s76, v5, 16
    s_nop 1
    v_add_f32 v5, s76, v5
    v_mov_b32 v4, {vr(V_T0+2)}
    s_lshl_b32 s76, s10, 3
    s_add_u32 s76, s76, {ML_OFF}
    v_mov_b32 v8, 0
    s_mov_b64 exec, 1
    buffer_store_dwordx2 v[4:5], v8, s[72:75], s76 offen sc1
    s_mov_b64 exec, -1
    """)
    a.label("L_tail_sync")
    a(f"""
    s_waitcnt vmcnt(0)
    s_barrier
    s_cmp_lg_u32 s11, 0
    s_cbranch_scc1 L_after_signal
    v_mov_b32 v4, 0
    v_mov_b32 v5, 1
    s_mov_b64 exec, 1
    global_atomic_add v4, v5, s[38:39]
    s_mov_b64 exec, -1
    """)
    a.label("L_after_signal")
    a.stamp(8)
    a(f"""
    s_cmp_ge_u32 s2, 160
    s_cbranch_scc1 L_end
    s_cmp_gt_u32 s11, 3
    s_cbranch_scc1 L_end
    v_mov_b32 v4, 0
    """)
    a.label("L_poll")
    a(f"""
    global_load_dword v5, v4, s[38:39] sc1
    s_waitcnt vmcnt(0)
    v_readfirstlane_b32 s76, v5
    s_nop 3
    s_cmp_ge_u32 s76, 256
    s_cbranch_scc1 L_polled
    s_sleep 2
    s_branch L_poll
    """)
    a.label("L_polled")
    a.stamp(9)
    a(f"""
    v_mul_u32_u24 v4, 2560, v0
    s_lshl_b32 s76, s2, 4
    buffer_load_dwordx4 v[20:23], v4, s[72:75], s76 offen sc1
    v_lshlrev_b32 v5, 3, v0
    s_mov_b32 s77, {ML_OFF}
    buffer_load_dwordx2 v[24:25], v5, s[72:75], s77 offen sc1
    s_cmp_eq_u32 s11, 3
    s_cbranch_scc1 L_finA
    ; B: head = k/6
    v_mul_u32_u24 v6, 171, v0
    v_lshrrev_b32 v6, 10, v6
    v_mul_u32_u24 v6, 48, v6
    buffer_load_dwordx4 v[28:31], v6, s[72:75], s77 offen sc1
    buffer_load_dwordx4 v[32:35], v6, s[72:75], s77 offen offset:16 sc1
    buffer_load_dwordx4 v[36:39], v6, s[72:75], s77 offen offset:32 sc1
    s_waitcnt vmcnt(0)
    v_max3_f32 v7, v28, v30, v32
    v_max3_f32 v7, v7, v34, v36
    v_max_f32 v7, v7, v38
    v_sub_f32 v28, v28, v7
    v_sub_f32 v30, v30, v7
    v_sub_f32 v32, v32, v7
    v_sub_f32 v34, v34, v7
    v_sub_f32 v36, v36, v7
    v_sub_f32 v38, v38, v7
    v_sub_f32 v24, v24, v7
    v_exp_f32 v28, v28
    v_exp_f32 v30, v30
    v_exp_f32 v32, v32
    v_exp_f32 v34, v34
    v_exp_f32 v36, v36
    v_exp_f32 v38, v38
    v_exp_f32 v24, v24
    s_nop 0
    v_mul_f32 v8, v28, v29
    v_fmac_f32 v8, v30, v31
    v_fmac_f32 v8, v32, v33
    v_fmac_f32 v8, v34, v35
    v_fmac_f32 v8, v36, v37
    v_fmac_f32 v8, v38, v39
    s_branch L_finW
    """)
    a.label("L_finA")
    a(f"""
    v_and_b32 v6, 0x1fe, v0
    v_lshlrev_b32 v6, 3, v6
    buffer_load_dwordx4 v[28:31], v6, s[72:75], s77 offen sc1
    s_waitcnt vmcnt(0)
    v_max_f32 v7, v28, v30
    v_sub_f32 v28, v28, v7
    v_sub_f32 v30, v30, v7
    v_sub_f32 v24, v24, v7
    v_exp_f32 v28, v28
    v_exp_f32 v30, v30
    v_exp_f32 v24, v24
    s_nop 0
    v_mul_f32 v8, v28, v29
    v_fmac_f32 v8, v30, v31
    """)
    a.label("L_finW")
    a(f"""
    v_rcp_f32 v8, v8
    s_nop 0
    v_mul_f32 v8, v24, v8
    v_mul_f32 v20, v20, v8
    v_mul_f32 v21, v21, v8
    v_mul_f32 v22, v22, v8
    v_mul_f32 v23, v23, v8
    """)
    steps = [("row_shr:1", "0xf"), ("row_shr:2", "0xf"), ("row_shr:4", "0xf"), ("row_shr:8", "0xf"),
             ("row_bcast:15", "0xa"), ("row_bcast:31", "0xc")]
    for dpp, rm in steps:
        for r in range(4):
            a(f"v_add_f32_dpp v{20+r}, v{20+r}, v{20+r} {dpp} row_mask:{rm} bank_mask:0xf bound_ctrl:0")
    a(f"""
    s_lshr_b32 s76, s2, 5
    s_lshl_b32 s76, s76, 7
    s_bfe_u32 s77, s2, 0x20003
    s_lshl_b32 s77, s77, 5
    s_add_u32 s76, s76, s77
    s_and_b32 s77, s2, 7
    s_add_u32 s76, s76, s77
    s_lshl_b32 s76, s76, 1
    s_mov_b32 s88, s36
    s_mov_b32 s89, s37
    s_mov_b32 s90, 2560
    s_mov_b32 s91, 0x00020000
    s_mov_b32 s78, 0
    s_mov_b32 s79, 0x80000000
    s_cmp_eq_u32 s11, 3
    s_cbranch_scc1 L_finA2
    s_lshl_b32 s77, s11, 4
    v_mov_b32 v4, s77
    s_mov_b64 exec, s[78:79]
    ds_write_b128 v4, v[20:23] offset:{FIN}
    s_mov_b64 exec, -1
    s_waitcnt lgkmcnt(0)
    s_barrier
    s_cmp_lg_u32 s11, 0
    s_cbranch_scc1 L_end
    v_mov_b32 v4, 0
    ds_read_b128 v[20:23], v4 offset:{FIN}
    ds_read_b128 v[24:27], v4 offset:{FIN+16}
    ds_read_b128 v[28:31], v4 offset:{FIN+32}
    s_waitcnt lgkmcnt(0)
    """)
    for r in range(4):
        a(f"v_add_f32 v{20+r}, v{20+r}, v{24+r}")
    for r in range(4):
        a(f"v_add_f32 v{20+r}, v{20+r}, v{28+r}")
    a(f"""
    s_add_u32 s76, s76, 1280
    s_mov_b32 s79, 0
    s_mov_b32 s78, 1
    s_branch L_store
    """)
    a.label("L_finA2")
    a("s_barrier")
    a.label("L_store")
    a(f"""
    v_cvt_pk_bf16_f32 v20, v20, v20
    v_cvt_pk_bf16_f32 v21, v21, v21
    v_cvt_pk_bf16_f32 v22, v22, v22
    v_cvt_pk_bf16_f32 v23, v23, v23
    v_mov_b32 v4, 0
    s_mov_b64 exec, s[78:79]
    buffer_store_short v20, v4, s[88:91], s76 offen
    buffer_store_short v21, v4, s[88:91], s76 offen offset:16
    buffer_store_short v22, v4, s[88:91], s76 offen offset:32
    buffer_store_short v23, v4, s[88:91], s76 offen offset:48
    """)
    a.label("L_end")
    if PROF:
        a.stamp(10)
        a(f"""
        s_mov_b64 exec, 1
        s_lshl_b32 s76, s2, 3
        s_add_u32 s76, s76, s11
        s_lshl_b32 s76, s76, 6
        s_add_u32 s76, s76, {4<<20}
        s_add_u32 s92, s40, s76
        s_addc_u32 s93, s41, 0
        v_mov_b32 v4, 0
        """)
        a("v_mov_b32 v20, s13")
        for i in range(1, 12):
            a(f"v_mov_b32 v{20+i}, s{16+i}")
        if DBGPROF:
            a(f"""
            s_cmp_lg_u32 s76, {4<<20}
            s_cbranch_scc1 L_end2
            """)
            for i in range(0, 11):
                a(f"global_store_dword v4, v{20+i}, s[38:39] offset:{4+4*i}")
        else:
          for q in range(3):
            a(f"global_store_dwordx4 v4, v[{20+4*q}:{23+4*q}], s[92:93] offset:{16*q}")
    a.label("L_end2")
    a("s_endpgm")

    hdr = open("cdna_kernels/" + NAME + ".s.ref").read().split("\n")
    head = []
    for ln in hdr:
        if ln.startswith("; @launch"):
            head.append(f"; @launch grid=(256,1,1) block=(512,1,1) lds={LDS_BYTES}")
            break
        head.append(ln)
    out = "\n".join(head) + "\n"
    out += f""".amdgcn_target "amdgcn-amd-amdhsa--gfx950"
.text
.globl {NAME}_kernel
.p2align 8
.type {NAME}_kernel,@function
{NAME}_kernel:
"""
    t0 = "s_memrealtime s[92:93]\n    s_waitcnt lgkmcnt(0)\n    s_mov_b32 s13, s92" if PROF else ""
    out += a.text().replace("PROF_T0", t0).replace("PROF_CLR", "\n    ".join(f"s_mov_b32 s{16+i}, 0" for i in range(1,12)) if PROF else "")
    out += f""".section .rodata,"a"
.p2align 6
.amdhsa_kernel {NAME}_kernel
  .amdhsa_next_free_vgpr 256
  .amdhsa_next_free_sgpr 102
  .amdhsa_accum_offset 256
  .amdhsa_group_segment_fixed_size 0
  .amdhsa_kernarg_size 104
  .amdhsa_user_sgpr_count 2
  .amdhsa_user_sgpr_kernarg_segment_ptr 1
  .amdhsa_system_sgpr_workgroup_id_x 1
.end_amdhsa_kernel
"""
    return out

if __name__ == "__main__":
    if "prof" in sys.argv[2:]: PROF = True
    if "dbgprof" in sys.argv[2:]: PROF = True; DBGPROF = True
    if "wplain" in sys.argv[2:]: NT_W = ""
    path = sys.argv[1] if len(sys.argv) > 1 else "cdna_kernels/" + NAME + ".s"
    open(path, "w").write(gen())
```

```python
import sys, struct

PROF = False
DBGPROF = False
NT_KV = " nt"
NT_W = ""
NAME = "concat_heads__sliding_block_cached__gqa_block_cached__decode"

class A:
    def __init__(self):
        self.l = []
    def __call__(self, s):
        for ln in s.strip("\n").split("\n"):
            self.l.append("    " + ln.strip())
    def stamp(self, i):
        if not PROF: return
        self(f"""
        s_memrealtime s[92:93]
        s_waitcnt lgkmcnt(0)
        s_mov_b32 s{16+i}, s92
        """)
    def label(self, s):
        self.l.append(s + ":")
    def text(self):
        return "\n".join(self.l) + "\n"

def vr(b, n=1):
    return f"v{b}" if n == 1 else f"v[{b}:{b+n-1}]"

QPART = 0
QBUF = 4096
MBUF = 4352
LBUF = 4384
OPART = 4608
YPART = 8704
FIN = YPART + 8 * 2560
LDS_BYTES = 32768
Y_OFF = 0
ML_OFF = 256 * 2560

V_TID = 0
V_LANE = 1
V_N = 2
V_G = 3
V_T0 = 4
V_SELLO = 12
V_SELHI = 16
V_X = 20
V_SC = 20
V_B0 = 44
V_B1 = 48
V_ACC = 52
V_QF = 44
V_OFFA = 60
V_OFFB = 61
V_OFFC = 62
V_OFFD = 63
V_L = 64
V_MC = 65
V_DUMMY = 66
R1 = 80
R2 = 160

C_SCALE = 0.08838834764831845 * 1.4426950408889634
def f32bits(x):
    return struct.unpack("<I", struct.pack("<f", x))[0]

def body(a, nt):
    L = f"L{nt}"
    a(f"""
    v_mov_b32 v4, -1
    v_mov_b32 v5, -1
    v_mov_b32 v6, -1
    v_mov_b32 v7, -1
    v_lshlrev_b32 v8, 4, {vr(V_LANE)}
    s_mul_i32 s76, s10, 2560
    s_mul_i32 s77, s11, 320
    s_add_u32 s76, s76, s77
    s_mov_b64 exec, 0xfffff
    buffer_store_dwordx4 v[4:7], v8, s[72:75], s76 offen sc1
    s_lshl_b32 s76, s10, 3
    s_add_u32 s76, s76, {ML_OFF}
    s_mov_b64 exec, 1
    buffer_store_dwordx2 v[4:5], v8, s[72:75], s76 offen sc1
    s_mov_b64 exec, -1
    """)
    a(f"""
    s_mul_i32 s76, s11, 160
    v_mul_u32_u24 {vr(V_T0+6)}, 40, {vr(V_G)}
    v_add_u32 {vr(V_T0+6)}, s76, {vr(V_T0+6)}
    buffer_load_dwordx4 {vr(V_X,4)}, {vr(V_T0+6)}, s[68:71], 0 offen
    buffer_load_dwordx4 {vr(V_X+4,4)}, {vr(V_T0+6)}, s[68:71], 0 offen offset:16
    buffer_load_dwordx2 {vr(V_X+8,2)}, {vr(V_T0+6)}, s[68:71], 0 offen offset:32
    s_mul_i32 s76, s11, {80*8192}
    s_mov_b32 s77, {20*8192}
    v_mul_lo_u32 {vr(V_OFFA)}, s77, {vr(V_G)}
    v_lshl_add_u32 {vr(V_OFFA)}, {vr(V_N)}, 4, {vr(V_OFFA)}
    v_add_u32 {vr(V_OFFA)}, s76, {vr(V_OFFA)}
    s_mov_b32 s76, 0
    """)
    for t in range(20):
        a(f"buffer_load_dwordx4 {vr(R1+4*t,4)}, {vr(V_OFFA)}, s[52:55], s76 offen{NT_W}")
        if t < 19:
            a("s_add_u32 s76, s76, 8192")
    a("s_barrier")
    a(f"""
    v_lshlrev_b32 {vr(V_OFFB)}, 8, {vr(V_N)}
    v_lshl_add_u32 {vr(V_OFFB)}, {vr(V_G)}, 4, {vr(V_OFFB)}
    s_lshl_b32 s76, s11, 12
    """)
    for u in range(nt):
        for j in range(4):
            a(f"buffer_load_dwordx4 {vr(R2+16*u+4*j,4)}, {vr(V_OFFB)}, s[56:59], s76 offen offset:{j*64}{NT_KV}")
        if u < nt - 1:
            a("s_add_u32 s76, s76, 32768")
    a(f"""
    v_lshlrev_b32 {vr(V_OFFC)}, 10, {vr(V_G)}
    v_lshl_add_u32 {vr(V_OFFC)}, {vr(V_N)}, 4, {vr(V_OFFC)}
    s_mul_i32 s76, s11, {16*1280}
    v_mul_u32_u24 {vr(V_OFFD)}, {4*1280}, {vr(V_G)}
    v_lshl_add_u32 {vr(V_OFFD)}, {vr(V_N)}, 4, {vr(V_OFFD)}
    v_add_u32 {vr(V_OFFD)}, s76, {vr(V_OFFD)}
    """)
    a.stamp(1)
    a(f"""
    v_and_b32 {vr(V_T0)}, 1, {vr(V_N)}
    v_cmp_eq_u32 vcc, 1, {vr(V_T0)}
    v_mov_b32 {vr(V_T0+1)}, 0x0c0c0100
    v_mov_b32 {vr(V_T0+2)}, 0x01000c0c
    v_mov_b32 {vr(V_T0+3)}, 0x0c0c0302
    v_mov_b32 {vr(V_T0+4)}, 0x03020c0c
    v_cndmask_b32 {vr(V_T0+1)}, {vr(V_T0+1)}, {vr(V_T0+2)}, vcc
    v_cndmask_b32 {vr(V_T0+3)}, {vr(V_T0+3)}, {vr(V_T0+4)}, vcc
    v_lshrrev_b32 {vr(V_T0)}, 1, {vr(V_N)}
    v_mov_b32 {vr(V_T0+2)}, 0x0c0c0c0c
    """)
    for c in range(4):
        a(f"""
        v_cmp_eq_u32 vcc, {c}, {vr(V_T0)}
        s_nop 1
        v_cndmask_b32 {vr(V_SELLO+c)}, {vr(V_T0+2)}, {vr(V_T0+1)}, vcc
        v_cndmask_b32 {vr(V_SELHI+c)}, {vr(V_T0+2)}, {vr(V_T0+3)}, vcc
        """)
    nK = 4 * nt
    a(f"s_waitcnt vmcnt({20+nK})")
    def buildB(dst, src, hi):
        sel = V_SELHI if hi else V_SELLO
        for c in range(4):
            a(f"v_perm_b32 {vr(dst+c)}, {vr(src)}, {vr(src)}, {vr(sel+c)}")
    buildB(V_B0, V_X, 0)
    for t in range(20):
        cur = V_B0 if t % 2 == 0 else V_B1
        nxt = V_B1 if t % 2 == 0 else V_B0
        if t < 19:
            buildB(nxt, V_X + (t + 1) // 2, (t + 1) % 2)
        else:
            a("s_nop 1")
        a(f"s_waitcnt vmcnt({19-t+nK})")
        c = "0" if t == 0 else vr(V_ACC, 4)
        a(f"v_mfma_f32_16x16x32_bf16 {vr(V_ACC,4)}, {vr(R1+4*t,4)}, {vr(cur,4)}, {c}")
    a.stamp(2)
    a(f"""
    v_lshlrev_b32 {vr(V_T0)}, 3, {vr(V_G)}
    v_add_u32 {vr(V_T0)}, {vr(V_T0)}, {vr(V_N)}
    v_lshlrev_b32 {vr(V_T0)}, 4, {vr(V_T0)}
    s_lshl_b32 s76, s11, 9
    v_add_u32 {vr(V_T0)}, s76, {vr(V_T0)}
    s_nop 4
    s_mov_b64 exec, s[80:81]
    ds_write_b128 {vr(V_T0)}, {vr(V_ACC,4)} offset:{QPART}
    s_mov_b64 exec, -1
    s_waitcnt lgkmcnt(0)
    s_barrier
    v_mov_b32 {vr(V_T0)}, 0
    v_mov_b32 {vr(V_T0+1)}, 1
    s_cmp_lg_u32 s11, 0
    s_cbranch_scc1 {L}_dummy
    s_mov_b64 exec, 1
    global_atomic_add {vr(V_T0)}, {vr(V_T0+1)}, s[38:39] offset:4
    s_mov_b64 exec, -1
    s_branch {L}_dummy_done
    """)
    a.label(f"{L}_dummy")
    a(f"buffer_load_dword {vr(V_DUMMY)}, {vr(V_T0)}, s[68:71], 0 offen")
    a.label(f"{L}_dummy_done")
    a(f"""
    s_cmp_ge_u32 s11, 2
    s_cbranch_scc1 {L}_qskip
    v_lshrrev_b32 {vr(V_T0)}, 5, {vr(V_TID)}
    v_lshlrev_b32 {vr(V_T0)}, 7, {vr(V_T0)}
    v_and_b32 {vr(V_T0+1)}, 7, {vr(V_TID)}
    v_lshl_add_u32 {vr(V_T0)}, {vr(V_T0+1)}, 4, {vr(V_T0)}
    v_bfe_u32 {vr(V_T0+1)}, {vr(V_TID)}, 3, 2
    v_lshl_add_u32 {vr(V_T0)}, {vr(V_T0+1)}, 2, {vr(V_T0)}
    """)
    for w in range(8):
        a(f"ds_read_b32 {vr(V_QF+w)}, {vr(V_T0)} offset:{QPART+w*512}")
    a("s_waitcnt lgkmcnt(0)")
    a(f"""
    v_add_f32 {vr(V_QF)}, {vr(V_QF)}, {vr(V_QF+1)}
    v_add_f32 {vr(V_QF+2)}, {vr(V_QF+2)}, {vr(V_QF+3)}
    v_add_f32 {vr(V_QF+4)}, {vr(V_QF+4)}, {vr(V_QF+5)}
    v_add_f32 {vr(V_QF+6)}, {vr(V_QF+6)}, {vr(V_QF+7)}
    v_add_f32 {vr(V_QF)}, {vr(V_QF)}, {vr(V_QF+2)}
    v_add_f32 {vr(V_QF+4)}, {vr(V_QF+4)}, {vr(V_QF+6)}
    v_add_f32 {vr(V_QF)}, {vr(V_QF)}, {vr(V_QF+4)}
    v_cvt_pk_bf16_f32 {vr(V_QF)}, {vr(V_QF)}, {vr(V_QF)}
    v_lshlrev_b32 {vr(V_T0)}, 1, {vr(V_TID)}
    ds_write_b16 {vr(V_T0)}, {vr(V_QF)} offset:{QBUF}
    s_waitcnt lgkmcnt(0)
    """)
    a.label(f"{L}_qskip")
    a(f"""
    s_barrier
    v_lshlrev_b32 {vr(V_T0)}, 4, {vr(V_G)}
    """)
    for j in range(4):
        a(f"ds_read_b128 {vr(V_QF+4*j,4)}, {vr(V_T0)} offset:{QBUF+j*64}")
    a("s_mov_b32 s76, 0")
    for t in range(4):
        for cb in range(5):
            a(f"buffer_load_dwordx4 {vr(R1+4*(t*5+cb),4)}, {vr(V_OFFD)}, s[64:67], s76 offen offset:{cb*256}{NT_W}")
        if t < 3:
            a("s_add_u32 s76, s76, 1280")
    a("s_waitcnt lgkmcnt(0)")
    a.stamp(3)
    a("s_lshl_b32 s76, s11, 12")
    for u in range(nt):
        a(f"s_waitcnt vmcnt({4*(nt-1-u)+1+20+4*u})")
        for j in range(4):
            c = "0" if j == 0 else vr(V_SC + 4 * u, 4)
            a(f"v_mfma_f32_16x16x32_bf16 {vr(V_SC+4*u,4)}, {vr(R2+16*u+4*j,4)}, {vr(V_QF+4*j,4)}, {c}")
        for r in range(4):
            a(f"buffer_load_dwordx4 {vr(R2+16*u+4*r,4)}, {vr(V_OFFC)}, s[60:63], s76 offen offset:{r*256}{NT_KV}")
        if u < nt - 1:
            a("s_add_u32 s76, s76, 32768")
    a.stamp(4)
    n = 4 * nt
    a("s_nop 4")
    a(f"v_max3_f32 {vr(V_T0)}, {vr(V_SC)}, {vr(V_SC+1)}, {vr(V_SC+2)}")
    k = 3
    while k < n:
        if k + 1 < n:
            a(f"v_max3_f32 {vr(V_T0)}, {vr(V_T0)}, {vr(V_SC+k)}, {vr(V_SC+k+1)}")
            k += 2
        else:
            a(f"v_max_f32 {vr(V_T0)}, {vr(V_T0)}, {vr(V_SC+k)}")
            k += 1
    a(f"""
    s_nop 0
    v_readlane_b32 s76, {vr(V_T0)}, 0
    v_readlane_b32 s77, {vr(V_T0)}, 16
    v_readlane_b32 s78, {vr(V_T0)}, 32
    v_readlane_b32 s79, {vr(V_T0)}, 48
    s_nop 1
    v_mov_b32 {vr(V_T0)}, s76
    v_max_f32 {vr(V_T0)}, s77, {vr(V_T0)}
    v_max_f32 {vr(V_T0)}, s78, {vr(V_T0)}
    v_max_f32 {vr(V_T0)}, s79, {vr(V_T0)}
    s_lshl_b32 s76, s11, 2
    v_mov_b32 {vr(V_T0+1)}, s76
    ds_write_b32 {vr(V_T0+1)}, {vr(V_T0)} offset:{MBUF}
    s_waitcnt lgkmcnt(0)
    s_barrier
    v_mov_b32 {vr(V_T0+1)}, 0
    ds_read_b128 {vr(V_QF,4)}, {vr(V_T0+1)} offset:{MBUF}
    ds_read_b128 {vr(V_QF+4,4)}, {vr(V_T0+1)} offset:{MBUF+16}
    s_waitcnt lgkmcnt(0)
    v_max3_f32 {vr(V_T0)}, {vr(V_QF)}, {vr(V_QF+1)}, {vr(V_QF+2)}
    v_max3_f32 {vr(V_T0)}, {vr(V_T0)}, {vr(V_QF+3)}, {vr(V_QF+4)}
    v_max3_f32 {vr(V_T0)}, {vr(V_T0)}, {vr(V_QF+5)}, {vr(V_QF+6)}
    v_max_f32 {vr(V_T0)}, {vr(V_T0)}, {vr(V_QF+7)}
    v_mul_f32 {vr(V_MC)}, s82, {vr(V_T0)}
    """)
    for k in range(n):
        a(f"v_fma_f32 {vr(V_SC+k)}, {vr(V_SC+k)}, s82, -{vr(V_MC)}")
    for k in range(n):
        a(f"v_exp_f32 {vr(V_SC+k)}, {vr(V_SC+k)}")
    a("s_nop 0")
    a(f"v_add_f32 {vr(V_L)}, {vr(V_SC)}, {vr(V_SC+1)}")
    for k in range(2, n):
        a(f"v_add_f32 {vr(V_L)}, {vr(V_L)}, {vr(V_SC+k)}")
    a(f"""
    s_lshl_b32 s76, s11, 4
    v_lshlrev_b32 {vr(V_T0)}, 2, {vr(V_G)}
    v_add_u32 {vr(V_T0)}, s76, {vr(V_T0)}
    s_mov_b64 exec, s[84:85]
    ds_write_b32 {vr(V_T0)}, {vr(V_L)} offset:{LBUF}
    s_mov_b64 exec, -1
    """)
    for k in range(0, n, 2):
        a(f"v_cvt_pk_bf16_f32 {vr(V_SC+k)}, {vr(V_SC+k)}, {vr(V_SC+k+1)}")
    a(f"""
    s_waitcnt lgkmcnt(0)
    s_barrier
    v_lshlrev_b32 v4, 2, {vr(V_LANE)}
    v_and_b32 v4, 127, v4
    ds_read_b32 v5, v4 offset:{LBUF}
    s_waitcnt lgkmcnt(0)
    s_nop 1
    v_add_f32_dpp v5, v5, v5 quad_perm:[1,0,3,2] row_mask:0xf bank_mask:0xf
    s_nop 1
    v_add_f32_dpp v5, v5, v5 quad_perm:[2,3,0,1] row_mask:0xf bank_mask:0xf
    s_nop 1
    v_add_f32_dpp v5, v5, v5 row_half_mirror row_mask:0xf bank_mask:0xf
    s_nop 1
    v_add_f32_dpp v5, v5, v5 row_mirror row_mask:0xf bank_mask:0xf
    s_nop 1
    v_readlane_b32 s76, v5, 16
    s_nop 1
    v_add_f32 v5, s76, v5
    v_min_u32 v4, 0xfffffffe, {vr(V_MC)}
    v_min_u32 v5, 0xfffffffe, v5
    s_lshl_b32 s76, s10, 3
    s_add_u32 s76, s76, {ML_OFF}
    v_mov_b32 v8, 0
    s_mov_b64 exec, 1
    buffer_store_dwordx2 v[4:5], v8, s[72:75], s76 offen sc1
    s_mov_b64 exec, -1
    """)
    a.stamp(5)
    def psrc(u, r):
        return V_SC + 4 * u + (r // 2) * 2, r % 2
    seq = [(u, r) for u in range(nt) for r in range(4)]
    s0, h0 = psrc(*seq[0])
    buildB(V_B0, s0, h0)
    nV = 4 * nt
    for idx, (u, r) in enumerate(seq):
        cur = V_B0 if idx % 2 == 0 else V_B1
        nxt = V_B1 if idx % 2 == 0 else V_B0
        if idx + 1 < len(seq):
            s1, h1 = psrc(*seq[idx + 1])
            buildB(nxt, s1, h1)
        else:
            a("s_nop 1")
        a(f"s_waitcnt vmcnt({nV-1-idx+1})")
        c = "0" if idx == 0 else vr(V_ACC, 4)
        a(f"v_mfma_f32_16x16x32_bf16 {vr(V_ACC,4)}, {vr(R2+16*u+4*r,4)}, {vr(cur,4)}, {c}")
    a.stamp(6)
    a(f"""
    v_lshlrev_b32 {vr(V_T0)}, 5, {vr(V_G)}
    v_add_u32 {vr(V_T0)}, {vr(V_T0)}, {vr(V_N)}
    v_lshlrev_b32 {vr(V_T0)}, 2, {vr(V_T0)}
    s_lshl_b32 s76, s11, 9
    v_add_u32 {vr(V_T0)}, s76, {vr(V_T0)}
    s_nop 4
    s_mov_b64 exec, s[80:81]
    """)
    for r in range(4):
        a(f"ds_write_b32 {vr(V_T0)}, {vr(V_ACC+r)} offset:{OPART+r*32}")
    a(f"""
    s_mov_b64 exec, -1
    v_and_b32 {vr(V_T0)}, 7, {vr(V_N)}
    v_lshlrev_b32 {vr(V_T0)}, 9, {vr(V_T0)}
    v_lshl_add_u32 {vr(V_T0)}, {vr(V_G)}, 4, {vr(V_T0)}
    s_lshl_b32 s76, s11, 6
    v_add_u32 {vr(V_T0)}, s76, {vr(V_T0)}
    s_waitcnt lgkmcnt(0)
    s_barrier
    ds_read_b128 {vr(V_T0+4,4)}, {vr(V_T0)} offset:{OPART}
    s_waitcnt lgkmcnt(0)
    """)
    for dpp in ["quad_perm:[1,0,3,2]", "quad_perm:[2,3,0,1]", "row_half_mirror"]:
        for t in range(4):
            a(f"v_add_f32_dpp {vr(V_T0+4+t)}, {vr(V_T0+4+t)}, {vr(V_T0+4+t)} {dpp} row_mask:0xf bank_mask:0xf")
    a(f"""
    v_cvt_pk_bf16_f32 {vr(V_T0+4)}, {vr(V_T0+4)}, {vr(V_T0+5)}
    v_cvt_pk_bf16_f32 {vr(V_T0+6)}, {vr(V_T0+6)}, {vr(V_T0+7)}
    """)
    VB = 20
    VY = 36
    for t in range(4):
        buildB(VB + 4 * t, V_T0 + 4 + (t // 2) * 2, t % 2)
    for t in range(4):
        for cb in range(5):
            c = "0" if t == 0 else vr(VY + 4 * cb, 4)
            a(f"v_mfma_f32_16x16x32_bf16 {vr(VY+4*cb,4)}, {vr(R1+4*(t*5+cb),4)}, {vr(VB+4*t,4)}, {c}")
    a(f"""
    v_lshlrev_b32 {vr(V_T0)}, 3, {vr(V_G)}
    v_add_u32 {vr(V_T0)}, {vr(V_T0)}, {vr(V_N)}
    v_lshlrev_b32 {vr(V_T0)}, 4, {vr(V_T0)}
    s_mul_i32 s76, s11, 2560
    v_add_u32 {vr(V_T0)}, s76, {vr(V_T0)}
    s_nop 4
    s_mov_b64 exec, s[80:81]
    """)
    for cb in range(5):
        a(f"ds_write_b128 {vr(V_T0)}, {vr(VY+4*cb,4)} offset:{YPART+cb*512}")
    a(f"""
    s_mov_b64 exec, -1
    s_waitcnt lgkmcnt(0)
    s_barrier
    s_branch L_tail
    """)

def gen():
    a = A()
    a(f"""
    s_cmp_ge_u32 s2, 256
    s_cbranch_scc1 L_end2
    s_load_dwordx16 s[16:31], s[0:1], 0
    s_load_dwordx8 s[32:39], s[0:1], 64
    s_load_dwordx2 s[40:41], s[0:1], 96
    PROF_T0
    s_and_b32 s3, s2, 7
    s_lshr_b32 s4, s2, 3
    v_lshrrev_b32 v1, 6, v0
    v_and_b32 v0, 0x3ff, v0
    v_readfirstlane_b32 s11, v1
    v_and_b32 {vr(V_LANE)}, 63, v0
    v_and_b32 {vr(V_N)}, 15, {vr(V_LANE)}
    v_lshrrev_b32 {vr(V_G)}, 4, {vr(V_LANE)}
    s_mul_i32 s5, s4, 43
    s_lshr_b32 s5, s5, 8
    s_mul_i32 s6, s5, 6
    s_sub_u32 s6, s4, s6
    s_cmp_lt_u32 s6, 4
    s_cselect_b32 s7, 43, 42
    s_mul_i32 s8, s6, 43
    s_max_u32 s76, s6, 4
    s_sub_u32 s76, s76, 4
    s_sub_u32 s8, s8, s76
    s_lshl_b32 s8, s8, 4
    s_sub_u32 s77, s4, 24
    s_lshr_b32 s78, s77, 1
    s_and_b32 s79, s77, 1
    s_lshl_b32 s80, s79, 9
    s_add_u32 s80, s80, 3072
    s_cmp_lt_u32 s4, 24
    s_cselect_b32 s5, s5, s78
    s_cselect_b32 s6, s6, s79
    s_cselect_b32 s7, s7, 32
    s_cselect_b32 s8, s8, s80
    s_cselect_b32 s12, 1, 0
    s_lshl_b32 s9, s3, 2
    s_add_u32 s9, s9, s5
    s_mul_i32 s10, s9, 6
    s_add_u32 s10, s10, s6
    s_lshl_b32 s76, s9, 1
    s_add_u32 s76, s76, s6
    s_add_u32 s76, s76, 192
    s_cmp_eq_u32 s12, 1
    s_cselect_b32 s10, s10, s76
    s_mov_b32 s80, 0x00ff00ff
    s_mov_b32 s81, 0x00ff00ff
    s_mov_b32 s82, 0x{f32bits(C_SCALE):08x}
    s_mov_b32 s84, 0x00010001
    s_mov_b32 s85, 0x00010001
    s_waitcnt lgkmcnt(0)
    s_cmp_eq_u32 s12, 1
    s_cselect_b64 s[42:43], s[26:27], s[16:17]
    s_cselect_b64 s[44:45], s[28:29], s[18:19]
    s_cselect_b64 s[46:47], s[30:31], s[20:21]
    s_cselect_b64 s[48:49], s[32:33], s[22:23]
    s_cselect_b64 s[50:51], s[34:35], s[24:25]
    s_lshl_b32 s76, s9, 8
    s_add_u32 s52, s48, s76
    s_addc_u32 s53, s49, 0
    s_sub_u32 s54, {640*8192}, s76
    s_mov_b32 s55, 0x00020000
    s_lshl_b32 s76, s9, 20
    s_lshl_b32 s77, s8, 8
    s_add_u32 s76, s76, s77
    s_add_u32 s56, s44, s76
    s_addc_u32 s57, s45, 0
    s_lshl_b32 s58, s7, 12
    s_mov_b32 s59, 0x00020000
    s_add_u32 s60, s46, s76
    s_addc_u32 s61, s47, 0
    s_mov_b32 s62, s58
    s_mov_b32 s63, 0x00020000
    s_mul_i32 s76, s9, 163840
    s_add_u32 s64, s50, s76
    s_addc_u32 s65, s51, 0
    s_mov_b32 s66, 163840
    s_mov_b32 s67, 0x00020000
    s_mov_b32 s68, s42
    s_mov_b32 s69, s43
    s_mov_b32 s70, 1280
    s_mov_b32 s71, 0x00020000
    s_mov_b32 s72, s40
    s_mov_b32 s73, s41
    s_mov_b32 s74, {ML_OFF + 256*8}
    s_mov_b32 s75, 0x00020000
    PROF_CLR
    s_sub_u32 s76, s7, s11
    s_add_u32 s76, s76, 7
    s_lshr_b32 s76, s76, 3
    s_cmp_eq_u32 s76, 6
    s_cbranch_scc1 L6_start
    s_cmp_eq_u32 s76, 5
    s_cbranch_scc1 L5_start
    """)
    for nt in (4, 5, 6):
        a.label(f"L{nt}_start")
        body(a, nt)
    a.label("L_tail")
    a.stamp(7)
    a(f"""
    s_cmp_gt_u32 s11, 3
    s_cbranch_scc1 L_end
    s_cmp_eq_u32 s11, 3
    s_cbranch_scc1 L_after_store
    v_cmp_gt_u32 vcc, 160, v0
    s_and_saveexec_b64 s[86:87], vcc
    s_cbranch_execz L_tail_y_done
    v_lshlrev_b32 v4, 4, v0
    """)
    for w in range(8):
        a(f"ds_read_b128 {vr(20+4*w,4)}, v4 offset:{YPART+w*2560}")
    a("s_waitcnt lgkmcnt(0)")
    for r in range(4):
        a(f"v_add_f32 v{20+r}, v{20+r}, v{24+r}")
        a(f"v_add_f32 v{28+r}, v{28+r}, v{32+r}")
        a(f"v_add_f32 v{36+r}, v{36+r}, v{40+r}")
        a(f"v_add_f32 v{44+r}, v{44+r}, v{48+r}")
    for r in range(4):
        a(f"v_add_f32 v{20+r}, v{20+r}, v{28+r}")
        a(f"v_add_f32 v{36+r}, v{36+r}, v{44+r}")
    for r in range(4):
        a(f"v_add_f32 v{20+r}, v{20+r}, v{36+r}")
    for r in range(4):
        a(f"v_min_u32 v{20+r}, 0xfffffffe, v{20+r}")
    a(f"""
    s_mul_i32 s76, s10, 2560
    buffer_store_dwordx4 v[20:23], v4, s[72:75], s76 offen sc1
    """)
    a.label("L_tail_y_done")
    a("s_mov_b64 exec, s[86:87]")
    a.label("L_after_store")
    a.stamp(8)
    a(f"""
    s_cmp_ge_u32 s2, 160
    s_cbranch_scc1 L_end
    v_mov_b32 v4, 0
    """)
    a.label("L_pollc")
    a(f"""
    global_load_dword v5, v4, s[38:39] offset:4 sc1
    s_waitcnt vmcnt(0)
    v_readfirstlane_b32 s76, v5
    s_nop 3
    s_cmp_ge_u32 s76, 256
    s_cbranch_scc0 L_pollc
    v_mul_u32_u24 v4, 2560, v0
    s_lshl_b32 s76, s2, 4
    v_lshlrev_b32 v5, 3, v0
    s_mov_b32 s77, {ML_OFF}
    s_cmp_eq_u32 s11, 3
    s_cbranch_scc1 L_finA
    v_mul_u32_u24 v6, 171, v0
    v_lshrrev_b32 v6, 10, v6
    v_mul_u32_u24 v6, 48, v6
    """)
    a.label("L_pollB")
    a(f"""
    buffer_load_dwordx4 v[20:23], v4, s[72:75], s76 offen sc1
    buffer_load_dwordx2 v[24:25], v5, s[72:75], s77 offen sc1
    buffer_load_dwordx4 v[28:31], v6, s[72:75], s77 offen sc1
    buffer_load_dwordx4 v[32:35], v6, s[72:75], s77 offen offset:16 sc1
    buffer_load_dwordx4 v[36:39], v6, s[72:75], s77 offen offset:32 sc1
    s_waitcnt vmcnt(0)
    v_max3_u32 v7, v20, v21, v24
    v_max3_u32 v7, v7, v22, v23
    v_max_u32 v7, v7, v25
    v_max3_u32 v7, v7, v28, v29
    v_max3_u32 v7, v7, v30, v31
    v_max3_u32 v7, v7, v32, v33
    v_max3_u32 v7, v7, v34, v35
    v_max3_u32 v7, v7, v36, v37
    v_max3_u32 v7, v7, v38, v39
    v_cmp_eq_u32 vcc, -1, v7
    s_cbranch_vccnz L_pollB
    """)
    a.stamp(9)
    a(f"""
    v_max3_f32 v7, v28, v30, v32
    v_max3_f32 v7, v7, v34, v36
    v_max_f32 v7, v7, v38
    v_sub_f32 v28, v28, v7
    v_sub_f32 v30, v30, v7
    v_sub_f32 v32, v32, v7
    v_sub_f32 v34, v34, v7
    v_sub_f32 v36, v36, v7
    v_sub_f32 v38, v38, v7
    v_sub_f32 v24, v24, v7
    v_exp_f32 v28, v28
    v_exp_f32 v30, v30
    v_exp_f32 v32, v32
    v_exp_f32 v34, v34
    v_exp_f32 v36, v36
    v_exp_f32 v38, v38
    v_exp_f32 v24, v24
    s_nop 0
    v_mul_f32 v8, v28, v29
    v_fmac_f32 v8, v30, v31
    v_fmac_f32 v8, v32, v33
    v_fmac_f32 v8, v34, v35
    v_fmac_f32 v8, v36, v37
    v_fmac_f32 v8, v38, v39
    s_branch L_finW
    """)
    a.label("L_finA")
    a(f"""
    v_and_b32 v6, 0x1fe, v0
    v_lshlrev_b32 v6, 3, v6
    """)
    a.label("L_pollA")
    a(f"""
    buffer_load_dwordx4 v[20:23], v4, s[72:75], s76 offen sc1
    buffer_load_dwordx2 v[24:25], v5, s[72:75], s77 offen sc1
    buffer_load_dwordx4 v[28:31], v6, s[72:75], s77 offen sc1
    s_waitcnt vmcnt(0)
    v_max3_u32 v7, v20, v21, v24
    v_max3_u32 v7, v7, v22, v23
    v_max_u32 v7, v7, v25
    v_max3_u32 v7, v7, v28, v29
    v_max3_u32 v7, v7, v30, v31
    v_cmp_eq_u32 vcc, -1, v7
    s_cbranch_vccnz L_pollA
    v_max_f32 v7, v28, v30
    v_sub_f32 v28, v28, v7
    v_sub_f32 v30, v30, v7
    v_sub_f32 v24, v24, v7
    v_exp_f32 v28, v28
    v_exp_f32 v30, v30
    v_exp_f32 v24, v24
    s_nop 0
    v_mul_f32 v8, v28, v29
    v_fmac_f32 v8, v30, v31
    """)
    a.label("L_finW")
    a(f"""
    v_rcp_f32 v8, v8
    s_nop 0
    v_mul_f32 v8, v24, v8
    v_mul_f32 v20, v20, v8
    v_mul_f32 v21, v21, v8
    v_mul_f32 v22, v22, v8
    v_mul_f32 v23, v23, v8
    """)
    steps = [("row_shr:1", "0xf"), ("row_shr:2", "0xf"), ("row_shr:4", "0xf"), ("row_shr:8", "0xf"),
             ("row_bcast:15", "0xa"), ("row_bcast:31", "0xc")]
    for dpp, rm in steps:
        for r in range(4):
            a(f"v_add_f32_dpp v{20+r}, v{20+r}, v{20+r} {dpp} row_mask:{rm} bank_mask:0xf bound_ctrl:0")
    a(f"""
    s_lshr_b32 s76, s2, 5
    s_lshl_b32 s76, s76, 7
    s_bfe_u32 s77, s2, 0x20003
    s_lshl_b32 s77, s77, 5
    s_add_u32 s76, s76, s77
    s_and_b32 s77, s2, 7
    s_add_u32 s76, s76, s77
    s_lshl_b32 s76, s76, 1
    s_mov_b32 s88, s36
    s_mov_b32 s89, s37
    s_mov_b32 s90, 2560
    s_mov_b32 s91, 0x00020000
    s_mov_b32 s78, 0
    s_mov_b32 s79, 0x80000000
    s_cmp_eq_u32 s11, 3
    s_cbranch_scc1 L_finA2
    s_lshl_b32 s77, s11, 4
    v_mov_b32 v4, s77
    s_mov_b64 exec, s[78:79]
    ds_write_b128 v4, v[20:23] offset:{FIN}
    s_mov_b64 exec, -1
    s_waitcnt lgkmcnt(0)
    s_barrier
    s_cmp_lg_u32 s11, 0
    s_cbranch_scc1 L_end
    v_mov_b32 v4, 0
    ds_read_b128 v[20:23], v4 offset:{FIN}
    ds_read_b128 v[24:27], v4 offset:{FIN+16}
    ds_read_b128 v[28:31], v4 offset:{FIN+32}
    s_waitcnt lgkmcnt(0)
    """)
    for r in range(4):
        a(f"v_add_f32 v{20+r}, v{20+r}, v{24+r}")
    for r in range(4):
        a(f"v_add_f32 v{20+r}, v{20+r}, v{28+r}")
    a(f"""
    s_add_u32 s76, s76, 1280
    s_mov_b32 s79, 0
    s_mov_b32 s78, 1
    s_branch L_store
    """)
    a.label("L_finA2")
    a("s_barrier")
    a.label("L_store")
    a(f"""
    v_cvt_pk_bf16_f32 v20, v20, v20
    v_cvt_pk_bf16_f32 v21, v21, v21
    v_cvt_pk_bf16_f32 v22, v22, v22
    v_cvt_pk_bf16_f32 v23, v23, v23
    v_mov_b32 v4, 0
    s_mov_b64 exec, s[78:79]
    buffer_store_short v20, v4, s[88:91], s76 offen
    buffer_store_short v21, v4, s[88:91], s76 offen offset:16
    buffer_store_short v22, v4, s[88:91], s76 offen offset:32
    buffer_store_short v23, v4, s[88:91], s76 offen offset:48
    """)
    a.label("L_end")
    if PROF:
        a.stamp(10)
        a(f"""
        s_mov_b64 exec, 1
        s_lshl_b32 s76, s2, 3
        s_add_u32 s76, s76, s11
        s_lshl_b32 s76, s76, 6
        s_add_u32 s76, s76, {4<<20}
        s_add_u32 s92, s40, s76
        s_addc_u32 s93, s41, 0
        v_mov_b32 v4, 0
        """)
        a("v_mov_b32 v20, s13")
        for i in range(1, 12):
            a(f"v_mov_b32 v{20+i}, s{16+i}")
        if DBGPROF:
            a(f"""
            s_cmp_lg_u32 s76, {4<<20}
            s_cbranch_scc1 L_end2
            """)
            for i in range(0, 11):
                a(f"global_store_dword v4, v{20+i}, s[38:39] offset:{8+4*i}")
        else:
            for q in range(3):
                a(f"global_store_dwordx4 v4, v[{20+4*q}:{23+4*q}], s[92:93] offset:{16*q}")
    a.label("L_end2")
    a("s_endpgm")

    hdr = open("cdna_kernels/" + NAME + ".s.ref").read().split("\n")
    head = []
    for ln in hdr:
        if ln.startswith("; @launch"):
            head.append(f"; @launch grid=(256,1,1) block=(512,1,1) lds={LDS_BYTES}")
            break
        head.append(ln)
    out = "\n".join(head) + "\n"
    out += f""".amdgcn_target "amdgcn-amd-amdhsa--gfx950"
.text
.globl {NAME}_kernel
.p2align 8
.type {NAME}_kernel,@function
{NAME}_kernel:
"""
    t0 = "s_memrealtime s[92:93]\n    s_waitcnt lgkmcnt(0)\n    s_mov_b32 s13, s92" if PROF else ""
    out += a.text().replace("PROF_T0", t0).replace("PROF_CLR", "\n    ".join(f"s_mov_b32 s{16+i}, 0" for i in range(1,12)) if PROF else "")
    out += f""".section .rodata,"a"
.p2align 6
.amdhsa_kernel {NAME}_kernel
  .amdhsa_next_free_vgpr 256
  .amdhsa_next_free_sgpr 102
  .amdhsa_accum_offset 256
  .amdhsa_group_segment_fixed_size 0
  .amdhsa_kernarg_size 104
  .amdhsa_user_sgpr_count 2
  .amdhsa_user_sgpr_kernarg_segment_ptr 1
  .amdhsa_system_sgpr_workgroup_id_x 1
.end_amdhsa_kernel
"""
    return out

if __name__ == "__main__":
    g = globals()
    for o in sys.argv[2:]:
        if o == "prof": PROF = True
        elif o == "dbgprof": PROF = True; DBGPROF = True
        elif o == "wnt": NT_W = " nt"
        elif o == "kvplain": NT_KV = ""
    path = sys.argv[1] if len(sys.argv) > 1 else "cdna_kernels/" + NAME + ".s"
    open(path, "w").write(gen())
```

```python
import sys, struct

PROF = False
DBGPROF = False
NT_KV = " nt"
NT_W = ""
ROT = True
NAME = "concat_heads__sliding_block_cached__gqa_block_cached__decode"

class A:
    def __init__(self):
        self.l = []
    def __call__(self, s):
        for ln in s.strip("\n").split("\n"):
            self.l.append("    " + ln.strip())
    def stamp(self, i):
        if not PROF: return
        self(f"""
        s_memrealtime s[92:93]
        s_waitcnt lgkmcnt(0)
        s_mov_b32 s{16+i}, s92
        """)
    def label(self, s):
        self.l.append(s + ":")
    def text(self):
        return "\n".join(self.l) + "\n"

def vr(b, n=1):
    return f"v{b}" if n == 1 else f"v[{b}:{b+n-1}]"

QPART = 0
QBUF = 4096
MBUF = 4352
LBUF = 4384
OPART = 4608
YPART = 8704
FIN = YPART + 8 * 2560
MLBUF = FIN + 64
LDS_BYTES = 32768
Y_OFF = 0
ML_OFF = 256 * 2560

V_TID = 0
V_LANE = 1
V_N = 2
V_G = 3
V_T0 = 4
V_SELLO = 12
V_SELHI = 16
V_X = 20
V_SC = 20
V_B0 = 44
V_B1 = 48
V_ACC = 52
V_QF = 44
V_OFFA = 60
V_OFFB = 61
V_OFFC = 62
V_OFFD = 63
V_L = 64
V_MC = 65
V_DUMMY = 66
V_CNT = 67
V_OA = 68
V_ML = 72
R1 = 80
R2 = 160

C_SCALE = 0.08838834764831845 * 1.4426950408889634
def f32bits(x):
    return struct.unpack("<I", struct.pack("<f", x))[0]

def body(a, nt):
    L = f"L{nt}"
    a(f"""
    v_mov_b32 v4, -1
    v_mov_b32 v5, -1
    v_mov_b32 v6, -1
    v_mov_b32 v7, -1
    v_lshlrev_b32 v8, 12, {vr(V_LANE)}
    s_lshl_b32 s76, s10, 4
    s_mul_i32 s77, s11, {20*4096}
    s_add_u32 s76, s76, s77
    s_mov_b64 exec, 0xfffff
    buffer_store_dwordx4 v[4:7], v8, s[72:75], s76 offen sc1
    s_lshl_b32 s76, s10, 3
    s_add_u32 s76, s76, {ML_OFF}
    s_mov_b64 exec, 1
    buffer_store_dwordx2 v[4:5], v8, s[72:75], s76 offen sc1
    s_mov_b64 exec, -1
    """)
    a(f"""
    s_mul_i32 s76, s11, 160
    v_mul_u32_u24 v10, 40, {vr(V_G)}
    v_add_u32 v10, s76, v10
    s_lshl_b32 s76, s14, 1
    """)
    for k in range(10):
        a(f"buffer_load_dword {vr(V_X+k)}, v10, s[68:71], s76 offen")
        if k < 9:
            a("s_add_u32 s76, s76, 4\ns_cmp_eq_u32 s76, 40\ns_cselect_b32 s76, 0, s76")
    a(f"""
    s_mul_i32 s76, s11, {80*8192}
    s_mov_b32 s77, {20*8192}
    v_mul_lo_u32 {vr(V_OFFA)}, s77, {vr(V_G)}
    v_lshl_add_u32 {vr(V_OFFA)}, {vr(V_N)}, 4, {vr(V_OFFA)}
    v_add_u32 {vr(V_OFFA)}, s76, {vr(V_OFFA)}
    s_lshl_b32 s76, s14, 13
    """)
    for t in range(20):
        a(f"buffer_load_dwordx4 {vr(R1+4*t,4)}, {vr(V_OFFA)}, s[52:55], s76 offen{NT_W}")
        if t < 19:
            a("s_add_u32 s76, s76, 8192\ns_cmp_eq_u32 s76, 163840\ns_cselect_b32 s76, 0, s76")
    a("s_barrier")
    a(f"""
    v_lshlrev_b32 {vr(V_OFFB)}, 8, {vr(V_N)}
    v_lshl_add_u32 {vr(V_OFFB)}, {vr(V_G)}, 4, {vr(V_OFFB)}
    s_lshl_b32 s76, s11, 12
    """)
    for u in range(nt):
        for j in range(4):
            a(f"buffer_load_dwordx4 {vr(R2+16*u+4*j,4)}, {vr(V_OFFB)}, s[56:59], s76 offen offset:{j*64}{NT_KV}")
        if u < nt - 1:
            a("s_add_u32 s76, s76, 32768")
    a(f"""
    v_lshlrev_b32 {vr(V_OFFC)}, 10, {vr(V_G)}
    v_lshl_add_u32 {vr(V_OFFC)}, {vr(V_N)}, 4, {vr(V_OFFC)}
    s_mul_i32 s76, s11, {4*1280}
    v_mul_u32_u24 {vr(V_OFFD)}, 1280, {vr(V_G)}
    v_lshl_add_u32 {vr(V_OFFD)}, {vr(V_N)}, 4, {vr(V_OFFD)}
    v_add_u32 {vr(V_OFFD)}, s76, {vr(V_OFFD)}
    """)
    a.stamp(1)
    a(f"""
    v_and_b32 {vr(V_T0)}, 1, {vr(V_N)}
    v_cmp_eq_u32 vcc, 1, {vr(V_T0)}
    v_mov_b32 {vr(V_T0+1)}, 0x0c0c0100
    v_mov_b32 {vr(V_T0+2)}, 0x01000c0c
    v_mov_b32 {vr(V_T0+3)}, 0x0c0c0302
    v_mov_b32 {vr(V_T0+4)}, 0x03020c0c
    v_cndmask_b32 {vr(V_T0+1)}, {vr(V_T0+1)}, {vr(V_T0+2)}, vcc
    v_cndmask_b32 {vr(V_T0+3)}, {vr(V_T0+3)}, {vr(V_T0+4)}, vcc
    v_lshrrev_b32 {vr(V_T0)}, 1, {vr(V_N)}
    v_mov_b32 {vr(V_T0+2)}, 0x0c0c0c0c
    """)
    for c in range(4):
        a(f"""
        v_cmp_eq_u32 vcc, {c}, {vr(V_T0)}
        s_nop 1
        v_cndmask_b32 {vr(V_SELLO+c)}, {vr(V_T0+2)}, {vr(V_T0+1)}, vcc
        v_cndmask_b32 {vr(V_SELHI+c)}, {vr(V_T0+2)}, {vr(V_T0+3)}, vcc
        """)
    a(f"""
    v_and_b32 {vr(V_T0)}, 7, {vr(V_N)}
    v_lshlrev_b32 {vr(V_T0)}, 9, {vr(V_T0)}
    v_lshl_add_u32 {vr(V_T0)}, {vr(V_G)}, 2, {vr(V_T0)}
    s_lshl_b32 s76, s11, 4
    v_add_u32 {vr(V_T0)}, s76, {vr(V_T0)}
    """)
    for t in range(4):
        a(f"""
        s_add_u32 s76, s15, {t}
        s_and_b32 s76, s76, 3
        s_lshl_b32 s76, s76, 7
        v_add_u32 {vr(V_OA+t)}, s76, {vr(V_T0)}
        """)
    nK = 4 * nt
    a(f"s_waitcnt vmcnt({20+nK})")
    def buildB(dst, src, hi):
        sel = V_SELHI if hi else V_SELLO
        for c in range(4):
            a(f"v_perm_b32 {vr(dst+c)}, {vr(src)}, {vr(src)}, {vr(sel+c)}")
    buildB(V_B0, V_X, 0)
    for t in range(20):
        cur = V_B0 if t % 2 == 0 else V_B1
        nxt = V_B1 if t % 2 == 0 else V_B0
        if t < 19:
            buildB(nxt, V_X + (t + 1) // 2, (t + 1) % 2)
        else:
            a("s_nop 1")
        a(f"s_waitcnt vmcnt({19-t+nK})")
        c = "0" if t == 0 else vr(V_ACC, 4)
        a(f"v_mfma_f32_16x16x32_bf16 {vr(V_ACC,4)}, {vr(R1+4*t,4)}, {vr(cur,4)}, {c}")
    a.stamp(2)
    a(f"""
    v_lshlrev_b32 {vr(V_T0)}, 3, {vr(V_G)}
    v_add_u32 {vr(V_T0)}, {vr(V_T0)}, {vr(V_N)}
    v_lshlrev_b32 {vr(V_T0)}, 4, {vr(V_T0)}
    s_lshl_b32 s76, s11, 9
    v_add_u32 {vr(V_T0)}, s76, {vr(V_T0)}
    s_nop 4
    s_mov_b64 exec, s[80:81]
    ds_write_b128 {vr(V_T0)}, {vr(V_ACC,4)} offset:{QPART}
    s_mov_b64 exec, -1
    s_waitcnt lgkmcnt(0)
    s_barrier
    v_mov_b32 {vr(V_T0)}, 0
    v_mov_b32 {vr(V_T0+1)}, 1
    s_cmp_lg_u32 s11, 0
    s_cbranch_scc1 {L}_dummy
    s_mov_b64 exec, 1
    global_atomic_add {vr(V_T0)}, {vr(V_T0+1)}, s[38:39] offset:4
    s_mov_b64 exec, -1
    s_branch {L}_dummy_done
    """)
    a.label(f"{L}_dummy")
    a(f"buffer_load_dword {vr(V_DUMMY)}, {vr(V_T0)}, s[68:71], 0 offen")
    a.label(f"{L}_dummy_done")
    a(f"""
    s_cmp_ge_u32 s11, 2
    s_cbranch_scc1 {L}_qskip
    v_lshrrev_b32 {vr(V_T0)}, 5, {vr(V_TID)}
    v_lshlrev_b32 {vr(V_T0)}, 7, {vr(V_T0)}
    v_and_b32 {vr(V_T0+1)}, 7, {vr(V_TID)}
    v_lshl_add_u32 {vr(V_T0)}, {vr(V_T0+1)}, 4, {vr(V_T0)}
    v_bfe_u32 {vr(V_T0+1)}, {vr(V_TID)}, 3, 2
    v_lshl_add_u32 {vr(V_T0)}, {vr(V_T0+1)}, 2, {vr(V_T0)}
    """)
    for w in range(8):
        a(f"ds_read_b32 {vr(V_QF+w)}, {vr(V_T0)} offset:{QPART+w*512}")
    a("s_waitcnt lgkmcnt(0)")
    a(f"""
    v_add_f32 {vr(V_QF)}, {vr(V_QF)}, {vr(V_QF+1)}
    v_add_f32 {vr(V_QF+2)}, {vr(V_QF+2)}, {vr(V_QF+3)}
    v_add_f32 {vr(V_QF+4)}, {vr(V_QF+4)}, {vr(V_QF+5)}
    v_add_f32 {vr(V_QF+6)}, {vr(V_QF+6)}, {vr(V_QF+7)}
    v_add_f32 {vr(V_QF)}, {vr(V_QF)}, {vr(V_QF+2)}
    v_add_f32 {vr(V_QF+4)}, {vr(V_QF+4)}, {vr(V_QF+6)}
    v_add_f32 {vr(V_QF)}, {vr(V_QF)}, {vr(V_QF+4)}
    v_cvt_pk_bf16_f32 {vr(V_QF)}, {vr(V_QF)}, {vr(V_QF)}
    v_lshlrev_b32 {vr(V_T0)}, 1, {vr(V_TID)}
    ds_write_b16 {vr(V_T0)}, {vr(V_QF)} offset:{QBUF}
    s_waitcnt lgkmcnt(0)
    """)
    a.label(f"{L}_qskip")
    a(f"""
    s_barrier
    v_lshlrev_b32 {vr(V_T0)}, 4, {vr(V_G)}
    """)
    for j in range(4):
        a(f"ds_read_b128 {vr(V_QF+4*j,4)}, {vr(V_T0)} offset:{QBUF+j*64}")
    for t in range(4):
        a(f"""
        s_add_u32 s76, s15, {t}
        s_and_b32 s76, s76, 3
        s_mul_i32 s76, s76, 40960
        """)
        for cb in range(5):
            a(f"buffer_load_dwordx4 {vr(R1+4*(t*5+cb),4)}, {vr(V_OFFD)}, s[64:67], s76 offen offset:{cb*256}{NT_W}")
    a("s_waitcnt lgkmcnt(0)")
    a.stamp(3)
    a("s_lshl_b32 s76, s11, 12")
    for u in range(nt):
        a(f"s_waitcnt vmcnt({4*(nt-1-u)+1+20+4*u})")
        for j in range(4):
            c = "0" if j == 0 else vr(V_SC + 4 * u, 4)
            a(f"v_mfma_f32_16x16x32_bf16 {vr(V_SC+4*u,4)}, {vr(R2+16*u+4*j,4)}, {vr(V_QF+4*j,4)}, {c}")
        for r in range(4):
            a(f"buffer_load_dwordx4 {vr(R2+16*u+4*r,4)}, {vr(V_OFFC)}, s[60:63], s76 offen offset:{r*256}{NT_KV}")
        if u < nt - 1:
            a("s_add_u32 s76, s76, 32768")
    a.stamp(4)
    n = 4 * nt
    a("s_nop 4")
    a(f"v_max3_f32 {vr(V_T0)}, {vr(V_SC)}, {vr(V_SC+1)}, {vr(V_SC+2)}")
    k = 3
    while k < n:
        if k + 1 < n:
            a(f"v_max3_f32 {vr(V_T0)}, {vr(V_T0)}, {vr(V_SC+k)}, {vr(V_SC+k+1)}")
            k += 2
        else:
            a(f"v_max_f32 {vr(V_T0)}, {vr(V_T0)}, {vr(V_SC+k)}")
            k += 1
    a(f"""
    s_nop 0
    v_readlane_b32 s76, {vr(V_T0)}, 0
    v_readlane_b32 s77, {vr(V_T0)}, 16
    v_readlane_b32 s78, {vr(V_T0)}, 32
    v_readlane_b32 s79, {vr(V_T0)}, 48
    s_nop 1
    v_mov_b32 {vr(V_T0)}, s76
    v_max_f32 {vr(V_T0)}, s77, {vr(V_T0)}
    v_max_f32 {vr(V_T0)}, s78, {vr(V_T0)}
    v_max_f32 {vr(V_T0)}, s79, {vr(V_T0)}
    s_lshl_b32 s76, s11, 2
    v_mov_b32 {vr(V_T0+1)}, s76
    ds_write_b32 {vr(V_T0+1)}, {vr(V_T0)} offset:{MBUF}
    s_waitcnt lgkmcnt(0)
    s_barrier
    v_mov_b32 {vr(V_T0+1)}, 0
    ds_read_b128 {vr(V_QF,4)}, {vr(V_T0+1)} offset:{MBUF}
    ds_read_b128 {vr(V_QF+4,4)}, {vr(V_T0+1)} offset:{MBUF+16}
    s_waitcnt lgkmcnt(0)
    v_max3_f32 {vr(V_T0)}, {vr(V_QF)}, {vr(V_QF+1)}, {vr(V_QF+2)}
    v_max3_f32 {vr(V_T0)}, {vr(V_T0)}, {vr(V_QF+3)}, {vr(V_QF+4)}
    v_max3_f32 {vr(V_T0)}, {vr(V_T0)}, {vr(V_QF+5)}, {vr(V_QF+6)}
    v_max_f32 {vr(V_T0)}, {vr(V_T0)}, {vr(V_QF+7)}
    v_mul_f32 {vr(V_MC)}, s82, {vr(V_T0)}
    """)
    for k in range(n):
        a(f"v_fma_f32 {vr(V_SC+k)}, {vr(V_SC+k)}, s82, -{vr(V_MC)}")
    for k in range(n):
        a(f"v_exp_f32 {vr(V_SC+k)}, {vr(V_SC+k)}")
    a("s_nop 0")
    a(f"v_add_f32 {vr(V_L)}, {vr(V_SC)}, {vr(V_SC+1)}")
    for k in range(2, n):
        a(f"v_add_f32 {vr(V_L)}, {vr(V_L)}, {vr(V_SC+k)}")
    a(f"""
    s_lshl_b32 s76, s11, 4
    v_lshlrev_b32 {vr(V_T0)}, 2, {vr(V_G)}
    v_add_u32 {vr(V_T0)}, s76, {vr(V_T0)}
    s_mov_b64 exec, s[84:85]
    ds_write_b32 {vr(V_T0)}, {vr(V_L)} offset:{LBUF}
    s_mov_b64 exec, -1
    """)
    for k in range(0, n, 2):
        a(f"v_cvt_pk_bf16_f32 {vr(V_SC+k)}, {vr(V_SC+k)}, {vr(V_SC+k+1)}")
    a(f"""
    s_waitcnt lgkmcnt(0)
    s_barrier
    v_lshlrev_b32 v4, 2, {vr(V_LANE)}
    v_and_b32 v4, 127, v4
    ds_read_b32 v5, v4 offset:{LBUF}
    s_waitcnt lgkmcnt(0)
    s_nop 1
    v_add_f32_dpp v5, v5, v5 quad_perm:[1,0,3,2] row_mask:0xf bank_mask:0xf
    s_nop 1
    v_add_f32_dpp v5, v5, v5 quad_perm:[2,3,0,1] row_mask:0xf bank_mask:0xf
    s_nop 1
    v_add_f32_dpp v5, v5, v5 row_half_mirror row_mask:0xf bank_mask:0xf
    s_nop 1
    v_add_f32_dpp v5, v5, v5 row_mirror row_mask:0xf bank_mask:0xf
    s_nop 1
    v_readlane_b32 s76, v5, 16
    s_nop 1
    v_add_f32 v5, s76, v5
    v_min_u32 v4, 0xfffffffe, {vr(V_MC)}
    v_min_u32 v5, 0xfffffffe, v5
    s_lshl_b32 s76, s10, 3
    s_add_u32 s76, s76, {ML_OFF}
    v_mov_b32 v8, 0
    s_mov_b64 exec, 1
    buffer_store_dwordx2 v[4:5], v8, s[72:75], s76 offen sc1
    global_load_dword {vr(V_CNT)}, v8, s[38:39] offset:4 sc1
    s_mov_b64 exec, -1
    """)
    a.stamp(5)
    def psrc(u, r):
        return V_SC + 4 * u + (r // 2) * 2, r % 2
    seq = [(u, r) for u in range(nt) for r in range(4)]
    s0, h0 = psrc(*seq[0])
    buildB(V_B0, s0, h0)
    nV = 4 * nt
    for idx, (u, r) in enumerate(seq):
        cur = V_B0 if idx % 2 == 0 else V_B1
        nxt = V_B1 if idx % 2 == 0 else V_B0
        if idx + 1 < len(seq):
            s1, h1 = psrc(*seq[idx + 1])
            buildB(nxt, s1, h1)
        else:
            a("s_nop 1")
        a(f"s_waitcnt vmcnt({nV-1-idx+2})")
        c = "0" if idx == 0 else vr(V_ACC, 4)
        a(f"v_mfma_f32_16x16x32_bf16 {vr(V_ACC,4)}, {vr(R2+16*u+4*r,4)}, {vr(cur,4)}, {c}")
    a.stamp(6)
    a("s_branch L_tail")

def gen():
    a = A()
    a(f"""
    s_cmp_ge_u32 s2, 256
    s_cbranch_scc1 L_end2
    s_load_dwordx16 s[16:31], s[0:1], 0
    s_load_dwordx8 s[32:39], s[0:1], 64
    s_load_dwordx2 s[40:41], s[0:1], 96
    PROF_T0
    s_and_b32 s3, s2, 7
    s_lshr_b32 s4, s2, 3
    v_lshrrev_b32 v1, 6, v0
    v_and_b32 v0, 0x3ff, v0
    v_readfirstlane_b32 s11, v1
    v_and_b32 {vr(V_LANE)}, 63, v0
    v_and_b32 {vr(V_N)}, 15, {vr(V_LANE)}
    v_lshrrev_b32 {vr(V_G)}, 4, {vr(V_LANE)}
    s_mul_i32 s5, s4, 43
    s_lshr_b32 s5, s5, 8
    s_mul_i32 s6, s5, 6
    s_sub_u32 s6, s4, s6
    s_cmp_lt_u32 s6, 4
    s_cselect_b32 s7, 43, 42
    s_mul_i32 s8, s6, 43
    s_max_u32 s76, s6, 4
    s_sub_u32 s76, s76, 4
    s_sub_u32 s8, s8, s76
    s_lshl_b32 s8, s8, 4
    s_sub_u32 s77, s4, 24
    s_lshr_b32 s78, s77, 1
    s_and_b32 s79, s77, 1
    s_lshl_b32 s80, s79, 9
    s_add_u32 s80, s80, 3072
    s_cmp_lt_u32 s4, 24
    s_cselect_b32 s5, s5, s78
    s_cselect_b32 s6, s6, s79
    s_cselect_b32 s7, s7, 32
    s_cselect_b32 s8, s8, s80
    s_cselect_b32 s12, 1, 0
    s_lshl_b32 s9, s3, 2
    s_add_u32 s9, s9, s5
    s_mul_i32 s10, s9, 6
    s_add_u32 s10, s10, s6
    s_lshl_b32 s76, s9, 1
    s_add_u32 s76, s76, s6
    s_add_u32 s76, s76, 192
    s_cmp_eq_u32 s12, 1
    s_cselect_b32 s10, s10, s76
    s_mul_i32 s14, s6, 10
    s_add_u32 s14, s14, 3
    s_mul_i32 s14, s14, 43
    s_lshr_b32 s14, s14, 8
    s_lshl_b32 s14, s14, 1
    s_mul_i32 s76, s6, 10
    s_and_b32 s15, s6, 3
    s_lshl_b32 s77, s6, 1
    s_cmp_eq_u32 s12, 1
    s_cselect_b32 s14, s14, s76
    s_cselect_b32 s15, s15, s77
    {"" if ROT else "s_mov_b32 s14, 0"}
    {"" if ROT else "s_mov_b32 s15, 0"}
    s_mov_b32 s80, 0x00ff00ff
    s_mov_b32 s81, 0x00ff00ff
    s_mov_b32 s82, 0x{f32bits(C_SCALE):08x}
    s_mov_b32 s84, 0x00010001
    s_mov_b32 s85, 0x00010001
    s_waitcnt lgkmcnt(0)
    s_cmp_eq_u32 s12, 1
    s_cselect_b64 s[42:43], s[26:27], s[16:17]
    s_cselect_b64 s[44:45], s[28:29], s[18:19]
    s_cselect_b64 s[46:47], s[30:31], s[20:21]
    s_cselect_b64 s[48:49], s[32:33], s[22:23]
    s_cselect_b64 s[50:51], s[34:35], s[24:25]
    s_lshl_b32 s76, s9, 8
    s_add_u32 s52, s48, s76
    s_addc_u32 s53, s49, 0
    s_sub_u32 s54, {640*8192}, s76
    s_mov_b32 s55, 0x00020000
    s_lshl_b32 s76, s9, 20
    s_lshl_b32 s77, s8, 8
    s_add_u32 s76, s76, s77
    s_add_u32 s56, s44, s76
    s_addc_u32 s57, s45, 0
    s_lshl_b32 s58, s7, 12
    s_mov_b32 s59, 0x00020000
    s_add_u32 s60, s46, s76
    s_addc_u32 s61, s47, 0
    s_mov_b32 s62, s58
    s_mov_b32 s63, 0x00020000
    s_mul_i32 s76, s9, 163840
    s_add_u32 s64, s50, s76
    s_addc_u32 s65, s51, 0
    s_mov_b32 s66, 163840
    s_mov_b32 s67, 0x00020000
    s_mov_b32 s68, s42
    s_mov_b32 s69, s43
    s_mov_b32 s70, 1280
    s_mov_b32 s71, 0x00020000
    s_mov_b32 s72, s40
    s_mov_b32 s73, s41
    s_mov_b32 s74, {ML_OFF + 256*8}
    s_mov_b32 s75, 0x00020000
    PROF_CLR
    s_sub_u32 s76, s7, s11
    s_add_u32 s76, s76, 7
    s_lshr_b32 s76, s76, 3
    s_cmp_eq_u32 s76, 6
    s_cbranch_scc1 L6_start
    s_cmp_eq_u32 s76, 5
    s_cbranch_scc1 L5_start
    """)
    for nt in (4, 5, 6):
        a.label(f"L{nt}_start")
        body(a, nt)
    a.label("L_tail")
    def buildB(dst, src, hi):
        sel = V_SELHI if hi else V_SELLO
        for c in range(4):
            a(f"v_perm_b32 {vr(dst+c)}, {vr(src)}, {vr(src)}, {vr(sel+c)}")
    a(f"""
    v_lshlrev_b32 {vr(V_T0)}, 5, {vr(V_G)}
    v_add_u32 {vr(V_T0)}, {vr(V_T0)}, {vr(V_N)}
    v_lshlrev_b32 {vr(V_T0)}, 2, {vr(V_T0)}
    s_lshl_b32 s76, s11, 9
    v_add_u32 {vr(V_T0)}, s76, {vr(V_T0)}
    s_nop 4
    s_mov_b64 exec, s[80:81]
    """)
    for r in range(4):
        a(f"ds_write_b32 {vr(V_T0)}, {vr(V_ACC+r)} offset:{OPART+r*32}")
    a(f"""
    s_mov_b64 exec, -1
    s_cmp_ge_u32 s2, 160
    s_cbranch_scc1 L_noml
    s_cmp_gt_u32 s11, 3
    s_cbranch_scc1 L_noml
    s_waitcnt vmcnt(0)
    v_readfirstlane_b32 s76, {vr(V_CNT)}
    s_nop 3
    s_cmp_ge_u32 s76, 256
    s_cbranch_scc1 L_cnt_ok
    v_mov_b32 v8, 0
    """)
    a.label("L_pollc")
    a(f"""
    global_load_dword {vr(V_CNT)}, v8, s[38:39] offset:4 sc1
    s_waitcnt vmcnt(0)
    v_readfirstlane_b32 s76, {vr(V_CNT)}
    s_nop 3
    s_cmp_ge_u32 s76, 256
    s_cbranch_scc0 L_pollc
    """)
    a.label("L_cnt_ok")
    a(f"""
    v_lshlrev_b32 v9, 3, v0
    s_mov_b32 s77, {ML_OFF}
    buffer_load_dwordx2 {vr(V_ML,2)}, v9, s[72:75], s77 offen sc1
    """)
    a.label("L_noml")
    a("s_waitcnt lgkmcnt(0)")
    a("s_barrier")
    for t in range(4):
        a(f"ds_read_b32 {vr(V_T0+4+t)}, {vr(V_OA+t)} offset:{OPART}")
    a("s_waitcnt lgkmcnt(0)")
    for dpp in ["quad_perm:[1,0,3,2]", "quad_perm:[2,3,0,1]", "row_half_mirror"]:
        for t in range(4):
            a(f"v_add_f32_dpp {vr(V_T0+4+t)}, {vr(V_T0+4+t)}, {vr(V_T0+4+t)} {dpp} row_mask:0xf bank_mask:0xf")
    a(f"""
    v_cvt_pk_bf16_f32 {vr(V_T0+4)}, {vr(V_T0+4)}, {vr(V_T0+5)}
    v_cvt_pk_bf16_f32 {vr(V_T0+6)}, {vr(V_T0+6)}, {vr(V_T0+7)}
    """)
    VB = 20
    VY = 36
    for t in range(4):
        buildB(VB + 4 * t, V_T0 + 4 + (t // 2) * 2, t % 2)
    for t in range(4):
        for cb in range(5):
            c = "0" if t == 0 else vr(VY + 4 * cb, 4)
            a(f"v_mfma_f32_16x16x32_bf16 {vr(VY+4*cb,4)}, {vr(R1+4*(t*5+cb),4)}, {vr(VB+4*t,4)}, {c}")
    a(f"""
    v_lshlrev_b32 {vr(V_T0)}, 3, {vr(V_G)}
    v_add_u32 {vr(V_T0)}, {vr(V_T0)}, {vr(V_N)}
    v_lshlrev_b32 {vr(V_T0)}, 4, {vr(V_T0)}
    s_mul_i32 s76, s11, 2560
    v_add_u32 {vr(V_T0)}, s76, {vr(V_T0)}
    s_nop 4
    s_mov_b64 exec, s[80:81]
    """)
    for cb in range(5):
        a(f"ds_write_b128 {vr(V_T0)}, {vr(VY+4*cb,4)} offset:{YPART+cb*512}")
    a(f"""
    s_mov_b64 exec, -1
    s_waitcnt lgkmcnt(0)
    s_barrier
    """)
    a.stamp(7)
    a(f"""
    s_cmp_gt_u32 s11, 3
    s_cbranch_scc1 L_end
    s_cmp_eq_u32 s11, 3
    s_cbranch_scc1 L_after_store
    v_cmp_gt_u32 vcc, 160, v0
    s_and_saveexec_b64 s[86:87], vcc
    s_cbranch_execz L_tail_y_done
    v_lshlrev_b32 v4, 4, v0
    v_lshlrev_b32 v5, 12, v0
    """)
    for w in range(8):
        a(f"ds_read_b128 {vr(20+4*w,4)}, v4 offset:{YPART+w*2560}")
    a("s_waitcnt lgkmcnt(0)")
    for r in range(4):
        a(f"v_add_f32 v{20+r}, v{20+r}, v{24+r}")
        a(f"v_add_f32 v{28+r}, v{28+r}, v{32+r}")
        a(f"v_add_f32 v{36+r}, v{36+r}, v{40+r}")
        a(f"v_add_f32 v{44+r}, v{44+r}, v{48+r}")
    for r in range(4):
        a(f"v_add_f32 v{20+r}, v{20+r}, v{28+r}")
        a(f"v_add_f32 v{36+r}, v{36+r}, v{44+r}")
    for r in range(4):
        a(f"v_add_f32 v{20+r}, v{20+r}, v{36+r}")
    for r in range(4):
        a(f"v_min_u32 v{20+r}, 0xfffffffe, v{20+r}")
    a(f"""
    s_lshl_b32 s76, s10, 4
    buffer_store_dwordx4 v[20:23], v5, s[72:75], s76 offen sc1
    """)
    a.label("L_tail_y_done")
    a("s_mov_b64 exec, s[86:87]")
    a.label("L_after_store")
    a.stamp(8)
    a(f"""
    s_cmp_ge_u32 s2, 160
    s_cbranch_scc1 L_end
    v_lshlrev_b32 v9, 3, v0
    s_mov_b32 s77, {ML_OFF}
    s_waitcnt vmcnt(1)
    s_cmp_lg_u32 s11, 3
    s_cbranch_scc1 L_mlchk
    s_waitcnt vmcnt(0)
    """)
    a.label("L_mlchk")
    a(f"""
    v_max_u32 v7, {vr(V_ML)}, {vr(V_ML+1)}
    v_cmp_eq_u32 vcc, -1, v7
    s_cbranch_vccz L_mlok
    buffer_load_dwordx2 {vr(V_ML,2)}, v9, s[72:75], s77 offen sc1
    s_waitcnt vmcnt(0)
    s_branch L_mlchk
    """)
    a.label("L_mlok")
    a(f"""
    ds_write_b64 v9, {vr(V_ML,2)} offset:{MLBUF}
    v_lshlrev_b32 v4, 4, v0
    s_lshl_b32 s76, s2, 12
    buffer_load_dwordx4 v[20:23], v4, s[72:75], s76 offen sc1
    s_waitcnt lgkmcnt(0)
    s_barrier
    s_cmp_eq_u32 s11, 3
    s_cbranch_scc1 L_finA
    v_mul_u32_u24 v6, 171, v0
    v_lshrrev_b32 v6, 10, v6
    v_mul_u32_u24 v6, 48, v6
    ds_read_b128 v[28:31], v6 offset:{MLBUF}
    ds_read_b128 v[32:35], v6 offset:{MLBUF+16}
    ds_read_b128 v[36:39], v6 offset:{MLBUF+32}
    s_waitcnt lgkmcnt(0)
    v_max3_f32 v7, v28, v30, v32
    v_max3_f32 v7, v7, v34, v36
    v_max_f32 v7, v7, v38
    v_sub_f32 v28, v28, v7
    v_sub_f32 v30, v30, v7
    v_sub_f32 v32, v32, v7
    v_sub_f32 v34, v34, v7
    v_sub_f32 v36, v36, v7
    v_sub_f32 v38, v38, v7
    v_sub_f32 v24, {vr(V_ML)}, v7
    v_exp_f32 v28, v28
    v_exp_f32 v30, v30
    v_exp_f32 v32, v32
    v_exp_f32 v34, v34
    v_exp_f32 v36, v36
    v_exp_f32 v38, v38
    v_exp_f32 v24, v24
    s_nop 0
    v_mul_f32 v8, v28, v29
    v_fmac_f32 v8, v30, v31
    v_fmac_f32 v8, v32, v33
    v_fmac_f32 v8, v34, v35
    v_fmac_f32 v8, v36, v37
    v_fmac_f32 v8, v38, v39
    s_branch L_finW
    """)
    a.label("L_finA")
    a(f"""
    v_and_b32 v6, 0x1fe, v0
    v_lshlrev_b32 v6, 3, v6
    ds_read_b128 v[28:31], v6 offset:{MLBUF}
    s_waitcnt lgkmcnt(0)
    v_max_f32 v7, v28, v30
    v_sub_f32 v28, v28, v7
    v_sub_f32 v30, v30, v7
    v_sub_f32 v24, {vr(V_ML)}, v7
    v_exp_f32 v28, v28
    v_exp_f32 v30, v30
    v_exp_f32 v24, v24
    s_nop 0
    v_mul_f32 v8, v28, v29
    v_fmac_f32 v8, v30, v31
    """)
    a.label("L_finW")
    a(f"""
    v_rcp_f32 v8, v8
    s_nop 0
    v_mul_f32 v8, v24, v8
    """)
    a.label("L_pollY")
    a(f"""
    s_waitcnt vmcnt(0)
    v_max_u32 v7, v20, v21
    v_max3_u32 v7, v7, v22, v23
    v_cmp_eq_u32 vcc, -1, v7
    s_cbranch_vccz L_gotY
    buffer_load_dwordx4 v[20:23], v4, s[72:75], s76 offen sc1
    s_branch L_pollY
    """)
    a.label("L_gotY")
    a.stamp(9)
    a(f"""
    v_mul_f32 v20, v20, v8
    v_mul_f32 v21, v21, v8
    v_mul_f32 v22, v22, v8
    v_mul_f32 v23, v23, v8
    """)
    steps = [("row_shr:1", "0xf"), ("row_shr:2", "0xf"), ("row_shr:4", "0xf"), ("row_shr:8", "0xf"),
             ("row_bcast:15", "0xa"), ("row_bcast:31", "0xc")]
    for dpp, rm in steps:
        for r in range(4):
            a(f"v_add_f32_dpp v{20+r}, v{20+r}, v{20+r} {dpp} row_mask:{rm} bank_mask:0xf bound_ctrl:0")
    a(f"""
    s_lshr_b32 s76, s2, 5
    s_lshl_b32 s76, s76, 7
    s_bfe_u32 s77, s2, 0x20003
    s_lshl_b32 s77, s77, 5
    s_add_u32 s76, s76, s77
    s_and_b32 s77, s2, 7
    s_add_u32 s76, s76, s77
    s_lshl_b32 s76, s76, 1
    s_mov_b32 s88, s36
    s_mov_b32 s89, s37
    s_mov_b32 s90, 2560
    s_mov_b32 s91, 0x00020000
    s_mov_b32 s78, 0
    s_mov_b32 s79, 0x80000000
    s_cmp_eq_u32 s11, 3
    s_cbranch_scc1 L_finA2
    s_lshl_b32 s77, s11, 4
    v_mov_b32 v4, s77
    s_mov_b64 exec, s[78:79]
    ds_write_b128 v4, v[20:23] offset:{FIN}
    s_mov_b64 exec, -1
    s_waitcnt lgkmcnt(0)
    s_barrier
    s_cmp_lg_u32 s11, 0
    s_cbranch_scc1 L_end
    v_mov_b32 v4, 0
    ds_read_b128 v[20:23], v4 offset:{FIN}
    ds_read_b128 v[24:27], v4 offset:{FIN+16}
    ds_read_b128 v[28:31], v4 offset:{FIN+32}
    s_waitcnt lgkmcnt(0)
    """)
    for r in range(4):
        a(f"v_add_f32 v{20+r}, v{20+r}, v{24+r}")
    for r in range(4):
        a(f"v_add_f32 v{20+r}, v{20+r}, v{28+r}")
    a(f"""
    s_add_u32 s76, s76, 1280
    s_mov_b32 s79, 0
    s_mov_b32 s78, 1
    s_branch L_store
    """)
    a.label("L_finA2")
    a("s_barrier")
    a.label("L_store")
    a(f"""
    v_cvt_pk_bf16_f32 v20, v20, v20
    v_cvt_pk_bf16_f32 v21, v21, v21
    v_cvt_pk_bf16_f32 v22, v22, v22
    v_cvt_pk_bf16_f32 v23, v23, v23
    v_mov_b32 v4, 0
    s_mov_b64 exec, s[78:79]
    buffer_store_short v20, v4, s[88:91], s76 offen
    buffer_store_short v21, v4, s[88:91], s76 offen offset:16
    buffer_store_short v22, v4, s[88:91], s76 offen offset:32
    buffer_store_short v23, v4, s[88:91], s76 offen offset:48
    """)
    a.label("L_end")
    if PROF:
        a.stamp(10)
        a(f"""
        s_mov_b64 exec, 1
        s_lshl_b32 s76, s2, 3
        s_add_u32 s76, s76, s11
        s_lshl_b32 s76, s76, 6
        s_add_u32 s76, s76, {4<<20}
        s_add_u32 s92, s40, s76
        s_addc_u32 s93, s41, 0
        v_mov_b32 v4, 0
        """)
        a("v_mov_b32 v20, s13")
        for i in range(1, 12):
            a(f"v_mov_b32 v{20+i}, s{16+i}")
        if DBGPROF:
            a(f"""
            s_cmp_lg_u32 s76, {4<<20}
            s_cbranch_scc1 L_end2
            """)
            for i in range(0, 11):
                a(f"global_store_dword v4, v{20+i}, s[38:39] offset:{8+4*i}")
        else:
            for q in range(3):
                a(f"global_store_dwordx4 v4, v[{20+4*q}:{23+4*q}], s[92:93] offset:{16*q}")
    a.label("L_end2")
    a("s_endpgm")

    hdr = open("cdna_kernels/" + NAME + ".s.ref").read().split("\n")
    head = []
    for ln in hdr:
        if ln.startswith("; @launch"):
            head.append(f"; @launch grid=(256,1,1) block=(512,1,1) lds={LDS_BYTES}")
            break
        head.append(ln)
    out = "\n".join(head) + "\n"
    out += f""".amdgcn_target "amdgcn-amd-amdhsa--gfx950"
.text
.globl {NAME}_kernel
.p2align 8
.type {NAME}_kernel,@function
{NAME}_kernel:
"""
    t0 = "s_memrealtime s[92:93]\n    s_waitcnt lgkmcnt(0)\n    s_mov_b32 s13, s92" if PROF else ""
    out += a.text().replace("PROF_T0", t0).replace("PROF_CLR", "\n    ".join(f"s_mov_b32 s{16+i}, 0" for i in range(1,12)) if PROF else "")
    out += f""".section .rodata,"a"
.p2align 6
.amdhsa_kernel {NAME}_kernel
  .amdhsa_next_free_vgpr 256
  .amdhsa_next_free_sgpr 102
  .amdhsa_accum_offset 256
  .amdhsa_group_segment_fixed_size 0
  .amdhsa_kernarg_size 104
  .amdhsa_user_sgpr_count 2
  .amdhsa_user_sgpr_kernarg_segment_ptr 1
  .amdhsa_system_sgpr_workgroup_id_x 1
.end_amdhsa_kernel
"""
    return out

if __name__ == "__main__":
    for o in sys.argv[2:]:
        if o == "prof": PROF = True
        elif o == "dbgprof": PROF = True; DBGPROF = True
        elif o == "wnt": NT_W = " nt"
        elif o == "kvplain": NT_KV = ""
        elif o == "norot": ROT = False
    path = sys.argv[1] if len(sys.argv) > 1 else "cdna_kernels/" + NAME + ".s"
    open(path, "w").write(gen())
```

```python
import sys, struct

PROF = False
DBGPROF = False
NT_KV = " nt"
NT_W = ""
ROT = True
POLL_SLEEP = 8
NAME = "concat_heads__sliding_block_cached__gqa_block_cached__decode"

class A:
    def __init__(self):
        self.l = []
    def __call__(self, s):
        for ln in s.strip("\n").split("\n"):
            self.l.append("    " + ln.strip())
    def stamp(self, i):
        if not PROF: return
        self(f"""
        s_memrealtime s[92:93]
        s_waitcnt lgkmcnt(0)
        s_mov_b32 s{16+i}, s92
        """)
    def label(self, s):
        self.l.append(s + ":")
    def text(self):
        return "\n".join(self.l) + "\n"

def vr(b, n=1):
    return f"v{b}" if n == 1 else f"v[{b}:{b+n-1}]"

QPART = 0
QBUF = 4096
MBUF = 4352
LBUF = 4384
OPART = 4608
YPART = 8704
FIN = YPART + 8 * 2560
MLBUF = FIN + 64
LDS_BYTES = 32768
Y_OFF = 0
ML_OFF = 256 * 2560

V_TID = 0
V_LANE = 1
V_N = 2
V_G = 3
V_T0 = 4
V_SELLO = 12
V_SELHI = 16
V_X = 20
V_SC = 20
V_B0 = 44
V_B1 = 48
V_ACC = 52
V_QF = 44
V_OFFA = 60
V_OFFB = 61
V_OFFC = 62
V_OFFD = 63
V_L = 64
V_MC = 65
V_DUMMY = 66
V_CNT = 67
V_OA = 68
V_ML = 72
R1 = 80
R2 = 160

C_SCALE = 0.08838834764831845 * 1.4426950408889634
def f32bits(x):
    return struct.unpack("<I", struct.pack("<f", x))[0]

def body(a, nt):
    L = f"L{nt}"
    a(f"""
    v_mov_b32 v4, -1
    v_mov_b32 v5, -1
    v_mov_b32 v6, -1
    v_mov_b32 v7, -1
    v_lshlrev_b32 v8, 12, {vr(V_LANE)}
    s_lshl_b32 s76, s10, 4
    s_mul_i32 s77, s11, {20*4096}
    s_add_u32 s76, s76, s77
    s_mov_b64 exec, 0xfffff
    buffer_store_dwordx4 v[4:7], v8, s[72:75], s76 offen sc1
    s_lshl_b32 s76, s10, 3
    s_add_u32 s76, s76, {ML_OFF}
    s_mov_b64 exec, 1
    buffer_store_dwordx2 v[4:5], v8, s[72:75], s76 offen sc1
    s_mov_b64 exec, -1
    """)
    a(f"""
    s_mul_i32 s76, s11, 160
    v_mul_u32_u24 v10, 40, {vr(V_G)}
    v_add_u32 v10, s76, v10
    s_lshl_b32 s76, s14, 1
    """)
    for k in range(10):
        a(f"buffer_load_dword {vr(V_X+k)}, v10, s[68:71], s76 offen")
        if k < 9:
            a("s_add_u32 s76, s76, 4\ns_cmp_eq_u32 s76, 40\ns_cselect_b32 s76, 0, s76")
    a(f"""
    s_mul_i32 s76, s11, {80*8192}
    s_mov_b32 s77, {20*8192}
    v_mul_lo_u32 {vr(V_OFFA)}, s77, {vr(V_G)}
    v_lshl_add_u32 {vr(V_OFFA)}, {vr(V_N)}, 4, {vr(V_OFFA)}
    v_add_u32 {vr(V_OFFA)}, s76, {vr(V_OFFA)}
    s_lshl_b32 s76, s14, 13
    """)
    for t in range(20):
        a(f"buffer_load_dwordx4 {vr(R1+4*t,4)}, {vr(V_OFFA)}, s[52:55], s76 offen{NT_W}")
        if t < 19:
            a("s_add_u32 s76, s76, 8192\ns_cmp_eq_u32 s76, 163840\ns_cselect_b32 s76, 0, s76")
    a("s_barrier")
    a(f"""
    v_lshlrev_b32 {vr(V_OFFB)}, 8, {vr(V_N)}
    v_lshl_add_u32 {vr(V_OFFB)}, {vr(V_G)}, 4, {vr(V_OFFB)}
    s_lshl_b32 s76, s11, 12
    """)
    for u in range(nt):
        for j in range(4):
            a(f"buffer_load_dwordx4 {vr(R2+16*u+4*j,4)}, {vr(V_OFFB)}, s[56:59], s76 offen offset:{j*64}{NT_KV}")
        if u < nt - 1:
            a("s_add_u32 s76, s76, 32768")
    a(f"""
    v_lshlrev_b32 {vr(V_OFFC)}, 10, {vr(V_G)}
    v_lshl_add_u32 {vr(V_OFFC)}, {vr(V_N)}, 4, {vr(V_OFFC)}
    s_mul_i32 s76, s11, {4*1280}
    v_mul_u32_u24 {vr(V_OFFD)}, 1280, {vr(V_G)}
    v_lshl_add_u32 {vr(V_OFFD)}, {vr(V_N)}, 4, {vr(V_OFFD)}
    v_add_u32 {vr(V_OFFD)}, s76, {vr(V_OFFD)}
    """)
    a.stamp(1)
    a(f"""
    v_and_b32 {vr(V_T0)}, 1, {vr(V_N)}
    v_cmp_eq_u32 vcc, 1, {vr(V_T0)}
    v_mov_b32 {vr(V_T0+1)}, 0x0c0c0100
    v_mov_b32 {vr(V_T0+2)}, 0x01000c0c
    v_mov_b32 {vr(V_T0+3)}, 0x0c0c0302
    v_mov_b32 {vr(V_T0+4)}, 0x03020c0c
    v_cndmask_b32 {vr(V_T0+1)}, {vr(V_T0+1)}, {vr(V_T0+2)}, vcc
    v_cndmask_b32 {vr(V_T0+3)}, {vr(V_T0+3)}, {vr(V_T0+4)}, vcc
    v_lshrrev_b32 {vr(V_T0)}, 1, {vr(V_N)}
    v_mov_b32 {vr(V_T0+2)}, 0x0c0c0c0c
    """)
    for c in range(4):
        a(f"""
        v_cmp_eq_u32 vcc, {c}, {vr(V_T0)}
        s_nop 1
        v_cndmask_b32 {vr(V_SELLO+c)}, {vr(V_T0+2)}, {vr(V_T0+1)}, vcc
        v_cndmask_b32 {vr(V_SELHI+c)}, {vr(V_T0+2)}, {vr(V_T0+3)}, vcc
        """)
    a(f"""
    v_and_b32 {vr(V_T0)}, 7, {vr(V_N)}
    v_lshlrev_b32 {vr(V_T0)}, 9, {vr(V_T0)}
    v_lshl_add_u32 {vr(V_T0)}, {vr(V_G)}, 2, {vr(V_T0)}
    s_lshl_b32 s76, s11, 4
    v_add_u32 {vr(V_T0)}, s76, {vr(V_T0)}
    """)
    for t in range(4):
        a(f"""
        s_add_u32 s76, s15, {t}
        s_and_b32 s76, s76, 3
        s_lshl_b32 s76, s76, 7
        v_add_u32 {vr(V_OA+t)}, s76, {vr(V_T0)}
        """)
    nK = 4 * nt
    a(f"s_waitcnt vmcnt({20+nK})")
    def buildB(dst, src, hi):
        sel = V_SELHI if hi else V_SELLO
        for c in range(4):
            a(f"v_perm_b32 {vr(dst+c)}, {vr(src)}, {vr(src)}, {vr(sel+c)}")
    buildB(V_B0, V_X, 0)
    for t in range(20):
        cur = V_B0 if t % 2 == 0 else V_B1
        nxt = V_B1 if t % 2 == 0 else V_B0
        if t < 19:
            buildB(nxt, V_X + (t + 1) // 2, (t + 1) % 2)
        else:
            a("s_nop 1")
        a(f"s_waitcnt vmcnt({19-t+nK})")
        c = "0" if t == 0 else vr(V_ACC, 4)
        a(f"v_mfma_f32_16x16x32_bf16 {vr(V_ACC,4)}, {vr(R1+4*t,4)}, {vr(cur,4)}, {c}")
    a.stamp(2)
    a(f"""
    v_lshlrev_b32 {vr(V_T0)}, 3, {vr(V_G)}
    v_add_u32 {vr(V_T0)}, {vr(V_T0)}, {vr(V_N)}
    v_lshlrev_b32 {vr(V_T0)}, 4, {vr(V_T0)}
    s_lshl_b32 s76, s11, 9
    v_add_u32 {vr(V_T0)}, s76, {vr(V_T0)}
    s_nop 4
    s_mov_b64 exec, s[80:81]
    ds_write_b128 {vr(V_T0)}, {vr(V_ACC,4)} offset:{QPART}
    s_mov_b64 exec, -1
    s_waitcnt lgkmcnt(0)
    s_barrier
    """)
    a(f"""
    s_cmp_ge_u32 s11, 2
    s_cbranch_scc1 {L}_qskip
    v_lshrrev_b32 {vr(V_T0)}, 5, {vr(V_TID)}
    v_lshlrev_b32 {vr(V_T0)}, 7, {vr(V_T0)}
    v_and_b32 {vr(V_T0+1)}, 7, {vr(V_TID)}
    v_lshl_add_u32 {vr(V_T0)}, {vr(V_T0+1)}, 4, {vr(V_T0)}
    v_bfe_u32 {vr(V_T0+1)}, {vr(V_TID)}, 3, 2
    v_lshl_add_u32 {vr(V_T0)}, {vr(V_T0+1)}, 2, {vr(V_T0)}
    """)
    for w in range(8):
        a(f"ds_read_b32 {vr(V_QF+w)}, {vr(V_T0)} offset:{QPART+w*512}")
    a("s_waitcnt lgkmcnt(0)")
    a(f"""
    v_add_f32 {vr(V_QF)}, {vr(V_QF)}, {vr(V_QF+1)}
    v_add_f32 {vr(V_QF+2)}, {vr(V_QF+2)}, {vr(V_QF+3)}
    v_add_f32 {vr(V_QF+4)}, {vr(V_QF+4)}, {vr(V_QF+5)}
    v_add_f32 {vr(V_QF+6)}, {vr(V_QF+6)}, {vr(V_QF+7)}
    v_add_f32 {vr(V_QF)}, {vr(V_QF)}, {vr(V_QF+2)}
    v_add_f32 {vr(V_QF+4)}, {vr(V_QF+4)}, {vr(V_QF+6)}
    v_add_f32 {vr(V_QF)}, {vr(V_QF)}, {vr(V_QF+4)}
    v_cvt_pk_bf16_f32 {vr(V_QF)}, {vr(V_QF)}, {vr(V_QF)}
    v_lshlrev_b32 {vr(V_T0)}, 1, {vr(V_TID)}
    ds_write_b16 {vr(V_T0)}, {vr(V_QF)} offset:{QBUF}
    s_waitcnt lgkmcnt(0)
    """)
    a.label(f"{L}_qskip")
    a(f"""
    s_barrier
    v_lshlrev_b32 {vr(V_T0)}, 4, {vr(V_G)}
    """)
    for j in range(4):
        a(f"ds_read_b128 {vr(V_QF+4*j,4)}, {vr(V_T0)} offset:{QBUF+j*64}")
    for t in range(4):
        a(f"""
        s_add_u32 s76, s15, {t}
        s_and_b32 s76, s76, 3
        s_mul_i32 s76, s76, 40960
        """)
        for cb in range(5):
            a(f"buffer_load_dwordx4 {vr(R1+4*(t*5+cb),4)}, {vr(V_OFFD)}, s[64:67], s76 offen offset:{cb*256}{NT_W}")
    a("s_waitcnt lgkmcnt(0)")
    a.stamp(3)
    a("s_lshl_b32 s76, s11, 12")
    for u in range(nt):
        a(f"s_waitcnt vmcnt({4*(nt-1-u)+20+4*u})")
        for j in range(4):
            c = "0" if j == 0 else vr(V_SC + 4 * u, 4)
            a(f"v_mfma_f32_16x16x32_bf16 {vr(V_SC+4*u,4)}, {vr(R2+16*u+4*j,4)}, {vr(V_QF+4*j,4)}, {c}")
        for r in range(4):
            a(f"buffer_load_dwordx4 {vr(R2+16*u+4*r,4)}, {vr(V_OFFC)}, s[60:63], s76 offen offset:{r*256}{NT_KV}")
        if u < nt - 1:
            a("s_add_u32 s76, s76, 32768")
    a.stamp(4)
    n = 4 * nt
    a("s_nop 4")
    a(f"v_max3_f32 {vr(V_T0)}, {vr(V_SC)}, {vr(V_SC+1)}, {vr(V_SC+2)}")
    k = 3
    while k < n:
        if k + 1 < n:
            a(f"v_max3_f32 {vr(V_T0)}, {vr(V_T0)}, {vr(V_SC+k)}, {vr(V_SC+k+1)}")
            k += 2
        else:
            a(f"v_max_f32 {vr(V_T0)}, {vr(V_T0)}, {vr(V_SC+k)}")
            k += 1
    a(f"""
    s_nop 0
    v_readlane_b32 s76, {vr(V_T0)}, 0
    v_readlane_b32 s77, {vr(V_T0)}, 16
    v_readlane_b32 s78, {vr(V_T0)}, 32
    v_readlane_b32 s79, {vr(V_T0)}, 48
    s_nop 1
    v_mov_b32 {vr(V_T0)}, s76
    v_max_f32 {vr(V_T0)}, s77, {vr(V_T0)}
    v_max_f32 {vr(V_T0)}, s78, {vr(V_T0)}
    v_max_f32 {vr(V_T0)}, s79, {vr(V_T0)}
    s_lshl_b32 s76, s11, 2
    v_mov_b32 {vr(V_T0+1)}, s76
    ds_write_b32 {vr(V_T0+1)}, {vr(V_T0)} offset:{MBUF}
    s_waitcnt lgkmcnt(0)
    s_barrier
    v_mov_b32 {vr(V_T0+1)}, 0
    ds_read_b128 {vr(V_QF,4)}, {vr(V_T0+1)} offset:{MBUF}
    ds_read_b128 {vr(V_QF+4,4)}, {vr(V_T0+1)} offset:{MBUF+16}
    s_waitcnt lgkmcnt(0)
    v_max3_f32 {vr(V_T0)}, {vr(V_QF)}, {vr(V_QF+1)}, {vr(V_QF+2)}
    v_max3_f32 {vr(V_T0)}, {vr(V_T0)}, {vr(V_QF+3)}, {vr(V_QF+4)}
    v_max3_f32 {vr(V_T0)}, {vr(V_T0)}, {vr(V_QF+5)}, {vr(V_QF+6)}
    v_max_f32 {vr(V_T0)}, {vr(V_T0)}, {vr(V_QF+7)}
    v_mul_f32 {vr(V_MC)}, s82, {vr(V_T0)}
    """)
    for k in range(n):
        a(f"v_fma_f32 {vr(V_SC+k)}, {vr(V_SC+k)}, s82, -{vr(V_MC)}")
    for k in range(n):
        a(f"v_exp_f32 {vr(V_SC+k)}, {vr(V_SC+k)}")
    a("s_nop 0")
    a(f"v_add_f32 {vr(V_L)}, {vr(V_SC)}, {vr(V_SC+1)}")
    for k in range(2, n):
        a(f"v_add_f32 {vr(V_L)}, {vr(V_L)}, {vr(V_SC+k)}")
    a(f"""
    s_lshl_b32 s76, s11, 4
    v_lshlrev_b32 {vr(V_T0)}, 2, {vr(V_G)}
    v_add_u32 {vr(V_T0)}, s76, {vr(V_T0)}
    s_mov_b64 exec, s[84:85]
    ds_write_b32 {vr(V_T0)}, {vr(V_L)} offset:{LBUF}
    s_mov_b64 exec, -1
    """)
    for k in range(0, n, 2):
        a(f"v_cvt_pk_bf16_f32 {vr(V_SC+k)}, {vr(V_SC+k)}, {vr(V_SC+k+1)}")
    a(f"""
    s_waitcnt lgkmcnt(0)
    s_barrier
    v_lshlrev_b32 v4, 2, {vr(V_LANE)}
    v_and_b32 v4, 127, v4
    ds_read_b32 v5, v4 offset:{LBUF}
    s_waitcnt lgkmcnt(0)
    s_nop 1
    v_add_f32_dpp v5, v5, v5 quad_perm:[1,0,3,2] row_mask:0xf bank_mask:0xf
    s_nop 1
    v_add_f32_dpp v5, v5, v5 quad_perm:[2,3,0,1] row_mask:0xf bank_mask:0xf
    s_nop 1
    v_add_f32_dpp v5, v5, v5 row_half_mirror row_mask:0xf bank_mask:0xf
    s_nop 1
    v_add_f32_dpp v5, v5, v5 row_mirror row_mask:0xf bank_mask:0xf
    s_nop 1
    v_readlane_b32 s76, v5, 16
    s_nop 1
    v_add_f32 v5, s76, v5
    v_min_u32 v4, 0xfffffffe, {vr(V_MC)}
    v_min_u32 v5, 0xfffffffe, v5
    s_lshl_b32 s76, s10, 3
    s_add_u32 s76, s76, {ML_OFF}
    v_mov_b32 v8, 0
    s_mov_b64 exec, 1
    buffer_store_dwordx2 v[4:5], v8, s[72:75], s76 offen sc1
    s_mov_b64 exec, -1
    """)
    a.stamp(5)
    def psrc(u, r):
        return V_SC + 4 * u + (r // 2) * 2, r % 2
    seq = [(u, r) for u in range(nt) for r in range(4)]
    s0, h0 = psrc(*seq[0])
    buildB(V_B0, s0, h0)
    nV = 4 * nt
    for idx, (u, r) in enumerate(seq):
        cur = V_B0 if idx % 2 == 0 else V_B1
        nxt = V_B1 if idx % 2 == 0 else V_B0
        if idx + 1 < len(seq):
            s1, h1 = psrc(*seq[idx + 1])
            buildB(nxt, s1, h1)
        else:
            a("s_nop 1")
        a(f"s_waitcnt vmcnt({nV-1-idx+1})")
        c = "0" if idx == 0 else vr(V_ACC, 4)
        a(f"v_mfma_f32_16x16x32_bf16 {vr(V_ACC,4)}, {vr(R2+16*u+4*r,4)}, {vr(cur,4)}, {c}")
    a.stamp(6)
    a("s_branch L_tail")

def gen():
    a = A()
    a(f"""
    s_cmp_ge_u32 s2, 256
    s_cbranch_scc1 L_end2
    s_load_dwordx16 s[16:31], s[0:1], 0
    s_load_dwordx8 s[32:39], s[0:1], 64
    s_load_dwordx2 s[40:41], s[0:1], 96
    PROF_T0
    s_and_b32 s3, s2, 7
    s_lshr_b32 s4, s2, 3
    v_lshrrev_b32 v1, 6, v0
    v_and_b32 v0, 0x3ff, v0
    v_readfirstlane_b32 s11, v1
    v_and_b32 {vr(V_LANE)}, 63, v0
    v_and_b32 {vr(V_N)}, 15, {vr(V_LANE)}
    v_lshrrev_b32 {vr(V_G)}, 4, {vr(V_LANE)}
    s_mul_i32 s5, s4, 43
    s_lshr_b32 s5, s5, 8
    s_mul_i32 s6, s5, 6
    s_sub_u32 s6, s4, s6
    s_cmp_lt_u32 s6, 4
    s_cselect_b32 s7, 43, 42
    s_mul_i32 s8, s6, 43
    s_max_u32 s76, s6, 4
    s_sub_u32 s76, s76, 4
    s_sub_u32 s8, s8, s76
    s_lshl_b32 s8, s8, 4
    s_sub_u32 s77, s4, 24
    s_lshr_b32 s78, s77, 1
    s_and_b32 s79, s77, 1
    s_lshl_b32 s80, s79, 9
    s_add_u32 s80, s80, 3072
    s_cmp_lt_u32 s4, 24
    s_cselect_b32 s5, s5, s78
    s_cselect_b32 s6, s6, s79
    s_cselect_b32 s7, s7, 32
    s_cselect_b32 s8, s8, s80
    s_cselect_b32 s12, 1, 0
    s_lshl_b32 s9, s3, 2
    s_add_u32 s9, s9, s5
    s_mul_i32 s10, s9, 6
    s_add_u32 s10, s10, s6
    s_lshl_b32 s76, s9, 1
    s_add_u32 s76, s76, s6
    s_add_u32 s76, s76, 192
    s_cmp_eq_u32 s12, 1
    s_cselect_b32 s10, s10, s76
    s_mul_i32 s14, s6, 10
    s_add_u32 s14, s14, 3
    s_mul_i32 s14, s14, 43
    s_lshr_b32 s14, s14, 8
    s_lshl_b32 s14, s14, 1
    s_mul_i32 s76, s6, 10
    s_and_b32 s15, s6, 3
    s_lshl_b32 s77, s6, 1
    s_cmp_eq_u32 s12, 1
    s_cselect_b32 s14, s14, s76
    s_cselect_b32 s15, s15, s77
    {"" if ROT else "s_mov_b32 s14, 0"}
    {"" if ROT else "s_mov_b32 s15, 0"}
    s_mov_b32 s80, 0x00ff00ff
    s_mov_b32 s81, 0x00ff00ff
    s_mov_b32 s82, 0x{f32bits(C_SCALE):08x}
    s_mov_b32 s84, 0x00010001
    s_mov_b32 s85, 0x00010001
    s_waitcnt lgkmcnt(0)
    s_cmp_eq_u32 s12, 1
    s_cselect_b64 s[42:43], s[26:27], s[16:17]
    s_cselect_b64 s[44:45], s[28:29], s[18:19]
    s_cselect_b64 s[46:47], s[30:31], s[20:21]
    s_cselect_b64 s[48:49], s[32:33], s[22:23]
    s_cselect_b64 s[50:51], s[34:35], s[24:25]
    s_lshl_b32 s76, s9, 8
    s_add_u32 s52, s48, s76
    s_addc_u32 s53, s49, 0
    s_sub_u32 s54, {640*8192}, s76
    s_mov_b32 s55, 0x00020000
    s_lshl_b32 s76, s9, 20
    s_lshl_b32 s77, s8, 8
    s_add_u32 s76, s76, s77
    s_add_u32 s56, s44, s76
    s_addc_u32 s57, s45, 0
    s_lshl_b32 s58, s7, 12
    s_mov_b32 s59, 0x00020000
    s_add_u32 s60, s46, s76
    s_addc_u32 s61, s47, 0
    s_mov_b32 s62, s58
    s_mov_b32 s63, 0x00020000
    s_mul_i32 s76, s9, 163840
    s_add_u32 s64, s50, s76
    s_addc_u32 s65, s51, 0
    s_mov_b32 s66, 163840
    s_mov_b32 s67, 0x00020000
    s_mov_b32 s68, s42
    s_mov_b32 s69, s43
    s_mov_b32 s70, 1280
    s_mov_b32 s71, 0x00020000
    s_mov_b32 s72, s40
    s_mov_b32 s73, s41
    s_mov_b32 s74, {ML_OFF + 256*8}
    s_mov_b32 s75, 0x00020000
    PROF_CLR
    s_sub_u32 s76, s7, s11
    s_add_u32 s76, s76, 7
    s_lshr_b32 s76, s76, 3
    s_cmp_eq_u32 s76, 6
    s_cbranch_scc1 L6_start
    s_cmp_eq_u32 s76, 5
    s_cbranch_scc1 L5_start
    """)
    for nt in (4, 5, 6):
        a.label(f"L{nt}_start")
        body(a, nt)
    a.label("L_tail")
    def buildB(dst, src, hi):
        sel = V_SELHI if hi else V_SELLO
        for c in range(4):
            a(f"v_perm_b32 {vr(dst+c)}, {vr(src)}, {vr(src)}, {vr(sel+c)}")
    a(f"""
    v_lshlrev_b32 {vr(V_T0)}, 5, {vr(V_G)}
    v_add_u32 {vr(V_T0)}, {vr(V_T0)}, {vr(V_N)}
    v_lshlrev_b32 {vr(V_T0)}, 2, {vr(V_T0)}
    s_lshl_b32 s76, s11, 9
    v_add_u32 {vr(V_T0)}, s76, {vr(V_T0)}
    s_nop 4
    s_mov_b64 exec, s[80:81]
    """)
    for r in range(4):
        a(f"ds_write_b32 {vr(V_T0)}, {vr(V_ACC+r)} offset:{OPART+r*32}")
    a(f"""
    s_mov_b64 exec, -1
    """)
    a("s_waitcnt lgkmcnt(0)")
    a("s_barrier")
    for t in range(4):
        a(f"ds_read_b32 {vr(V_T0+4+t)}, {vr(V_OA+t)} offset:{OPART}")
    a("s_waitcnt lgkmcnt(0)")
    for dpp in ["quad_perm:[1,0,3,2]", "quad_perm:[2,3,0,1]", "row_half_mirror"]:
        for t in range(4):
            a(f"v_add_f32_dpp {vr(V_T0+4+t)}, {vr(V_T0+4+t)}, {vr(V_T0+4+t)} {dpp} row_mask:0xf bank_mask:0xf")
    a(f"""
    v_cvt_pk_bf16_f32 {vr(V_T0+4)}, {vr(V_T0+4)}, {vr(V_T0+5)}
    v_cvt_pk_bf16_f32 {vr(V_T0+6)}, {vr(V_T0+6)}, {vr(V_T0+7)}
    """)
    VB = 20
    VY = 36
    for t in range(4):
        buildB(VB + 4 * t, V_T0 + 4 + (t // 2) * 2, t % 2)
    for t in range(4):
        for cb in range(5):
            c = "0" if t == 0 else vr(VY + 4 * cb, 4)
            a(f"v_mfma_f32_16x16x32_bf16 {vr(VY+4*cb,4)}, {vr(R1+4*(t*5+cb),4)}, {vr(VB+4*t,4)}, {c}")
    a(f"""
    v_lshlrev_b32 {vr(V_T0)}, 3, {vr(V_G)}
    v_add_u32 {vr(V_T0)}, {vr(V_T0)}, {vr(V_N)}
    v_lshlrev_b32 {vr(V_T0)}, 4, {vr(V_T0)}
    s_mul_i32 s76, s11, 2560
    v_add_u32 {vr(V_T0)}, s76, {vr(V_T0)}
    s_nop 4
    s_mov_b64 exec, s[80:81]
    """)
    for cb in range(5):
        a(f"ds_write_b128 {vr(V_T0)}, {vr(VY+4*cb,4)} offset:{YPART+cb*512}")
    a(f"""
    s_mov_b64 exec, -1
    s_waitcnt lgkmcnt(0)
    s_barrier
    """)
    a.stamp(7)
    a(f"""
    s_cmp_gt_u32 s11, 3
    s_cbranch_scc1 L_end
    s_cmp_eq_u32 s11, 3
    s_cbranch_scc1 L_after_store
    v_cmp_gt_u32 vcc, 160, v0
    s_and_saveexec_b64 s[86:87], vcc
    s_cbranch_execz L_tail_y_done
    v_lshlrev_b32 v4, 4, v0
    v_lshlrev_b32 v5, 12, v0
    """)
    for w in range(8):
        a(f"ds_read_b128 {vr(20+4*w,4)}, v4 offset:{YPART+w*2560}")
    a("s_waitcnt lgkmcnt(0)")
    for r in range(4):
        a(f"v_add_f32 v{20+r}, v{20+r}, v{24+r}")
        a(f"v_add_f32 v{28+r}, v{28+r}, v{32+r}")
        a(f"v_add_f32 v{36+r}, v{36+r}, v{40+r}")
        a(f"v_add_f32 v{44+r}, v{44+r}, v{48+r}")
    for r in range(4):
        a(f"v_add_f32 v{20+r}, v{20+r}, v{28+r}")
        a(f"v_add_f32 v{36+r}, v{36+r}, v{44+r}")
    for r in range(4):
        a(f"v_add_f32 v{20+r}, v{20+r}, v{36+r}")
    for r in range(4):
        a(f"v_min_u32 v{20+r}, 0xfffffffe, v{20+r}")
    a(f"""
    s_lshl_b32 s76, s10, 4
    buffer_store_dwordx4 v[20:23], v5, s[72:75], s76 offen sc1
    """)
    a.label("L_tail_y_done")
    a("s_mov_b64 exec, s[86:87]")
    a.label("L_after_store")
    a.stamp(8)
    a(f"""
    s_barrier
    s_cmp_lg_u32 s11, 3
    s_cbranch_scc1 L_nohint
    v_mov_b32 v4, s2
    v_mov_b32 v5, 1
    s_mov_b64 exec, 1
    global_store_byte v4, v5, s[38:39] sc1
    s_mov_b64 exec, -1
    s_cmp_ge_u32 s2, 160
    s_cbranch_scc1 L_end
    v_lshlrev_b32 v8, 2, {vr(V_LANE)}
    """)
    a.label("L_pollc")
    a(f"""
    global_load_dword {vr(V_CNT)}, v8, s[38:39] sc1
    s_waitcnt vmcnt(0)
    v_cmp_ne_u32 vcc, 0x01010101, {vr(V_CNT)}
    s_cbranch_vccz L_hint_ok
    s_sleep {POLL_SLEEP}
    s_branch L_pollc
    """)
    a.label("L_nohint")
    a(f"""
    s_cmp_ge_u32 s2, 160
    s_cbranch_scc1 L_end
    """)
    a.label("L_hint_ok")
    a(f"""
    s_barrier
    v_lshlrev_b32 v9, 3, v0
    s_mov_b32 s77, {ML_OFF}
    v_lshlrev_b32 v4, 4, v0
    s_lshl_b32 s76, s2, 12
    buffer_load_dwordx2 {vr(V_ML,2)}, v9, s[72:75], s77 offen sc1
    buffer_load_dwordx4 v[20:23], v4, s[72:75], s76 offen sc1
    s_waitcnt vmcnt(1)
    """)
    a.label("L_mlchk")
    a(f"""
    v_max_u32 v7, {vr(V_ML)}, {vr(V_ML+1)}
    v_cmp_eq_u32 vcc, -1, v7
    s_cbranch_vccz L_mlok
    buffer_load_dwordx2 {vr(V_ML,2)}, v9, s[72:75], s77 offen sc1
    s_waitcnt vmcnt(0)
    s_branch L_mlchk
    """)
    a.label("L_mlok")
    a(f"""
    ds_write_b64 v9, {vr(V_ML,2)} offset:{MLBUF}
    s_waitcnt lgkmcnt(0)
    s_barrier
    s_cmp_eq_u32 s11, 3
    s_cbranch_scc1 L_finA
    v_mul_u32_u24 v6, 171, v0
    v_lshrrev_b32 v6, 10, v6
    v_mul_u32_u24 v6, 48, v6
    ds_read_b128 v[28:31], v6 offset:{MLBUF}
    ds_read_b128 v[32:35], v6 offset:{MLBUF+16}
    ds_read_b128 v[36:39], v6 offset:{MLBUF+32}
    s_waitcnt lgkmcnt(0)
    v_max3_f32 v7, v28, v30, v32
    v_max3_f32 v7, v7, v34, v36
    v_max_f32 v7, v7, v38
    v_sub_f32 v28, v28, v7
    v_sub_f32 v30, v30, v7
    v_sub_f32 v32, v32, v7
    v_sub_f32 v34, v34, v7
    v_sub_f32 v36, v36, v7
    v_sub_f32 v38, v38, v7
    v_sub_f32 v24, {vr(V_ML)}, v7
    v_exp_f32 v28, v28
    v_exp_f32 v30, v30
    v_exp_f32 v32, v32
    v_exp_f32 v34, v34
    v_exp_f32 v36, v36
    v_exp_f32 v38, v38
    v_exp_f32 v24, v24
    s_nop 0
    v_mul_f32 v8, v28, v29
    v_fmac_f32 v8, v30, v31
    v_fmac_f32 v8, v32, v33
    v_fmac_f32 v8, v34, v35
    v_fmac_f32 v8, v36, v37
    v_fmac_f32 v8, v38, v39
    s_branch L_finW
    """)
    a.label("L_finA")
    a(f"""
    v_and_b32 v6, 0x1fe, v0
    v_lshlrev_b32 v6, 3, v6
    ds_read_b128 v[28:31], v6 offset:{MLBUF}
    s_waitcnt lgkmcnt(0)
    v_max_f32 v7, v28, v30
    v_sub_f32 v28, v28, v7
    v_sub_f32 v30, v30, v7
    v_sub_f32 v24, {vr(V_ML)}, v7
    v_exp_f32 v28, v28
    v_exp_f32 v30, v30
    v_exp_f32 v24, v24
    s_nop 0
    v_mul_f32 v8, v28, v29
    v_fmac_f32 v8, v30, v31
    """)
    a.label("L_finW")
    a(f"""
    v_rcp_f32 v8, v8
    s_nop 0
    v_mul_f32 v8, v24, v8
    """)
    a.label("L_pollY")
    a(f"""
    s_waitcnt vmcnt(0)
    v_max_u32 v7, v20, v21
    v_max3_u32 v7, v7, v22, v23
    v_cmp_eq_u32 vcc, -1, v7
    s_cbranch_vccz L_gotY
    buffer_load_dwordx4 v[20:23], v4, s[72:75], s76 offen sc1
    s_branch L_pollY
    """)
    a.label("L_gotY")
    a.stamp(9)
    a(f"""
    v_mul_f32 v20, v20, v8
    v_mul_f32 v21, v21, v8
    v_mul_f32 v22, v22, v8
    v_mul_f32 v23, v23, v8
    """)
    steps = [("row_shr:1", "0xf"), ("row_shr:2", "0xf"), ("row_shr:4", "0xf"), ("row_shr:8", "0xf"),
             ("row_bcast:15", "0xa"), ("row_bcast:31", "0xc")]
    for dpp, rm in steps:
        for r in range(4):
            a(f"v_add_f32_dpp v{20+r}, v{20+r}, v{20+r} {dpp} row_mask:{rm} bank_mask:0xf bound_ctrl:0")
    a(f"""
    s_lshr_b32 s76, s2, 5
    s_lshl_b32 s76, s76, 7
    s_bfe_u32 s77, s2, 0x20003
    s_lshl_b32 s77, s77, 5
    s_add_u32 s76, s76, s77
    s_and_b32 s77, s2, 7
    s_add_u32 s76, s76, s77
    s_lshl_b32 s76, s76, 1
    s_mov_b32 s88, s36
    s_mov_b32 s89, s37
    s_mov_b32 s90, 2560
    s_mov_b32 s91, 0x00020000
    s_mov_b32 s78, 0
    s_mov_b32 s79, 0x80000000
    s_cmp_eq_u32 s11, 3
    s_cbranch_scc1 L_finA2
    s_lshl_b32 s77, s11, 4
    v_mov_b32 v4, s77
    s_mov_b64 exec, s[78:79]
    ds_write_b128 v4, v[20:23] offset:{FIN}
    s_mov_b64 exec, -1
    s_waitcnt lgkmcnt(0)
    s_barrier
    s_cmp_lg_u32 s11, 0
    s_cbranch_scc1 L_end
    v_mov_b32 v4, 0
    ds_read_b128 v[20:23], v4 offset:{FIN}
    ds_read_b128 v[24:27], v4 offset:{FIN+16}
    ds_read_b128 v[28:31], v4 offset:{FIN+32}
    s_waitcnt lgkmcnt(0)
    """)
    for r in range(4):
        a(f"v_add_f32 v{20+r}, v{20+r}, v{24+r}")
    for r in range(4):
        a(f"v_add_f32 v{20+r}, v{20+r}, v{28+r}")
    a(f"""
    s_add_u32 s76, s76, 1280
    s_mov_b32 s79, 0
    s_mov_b32 s78, 1
    s_branch L_store
    """)
    a.label("L_finA2")
    a("s_barrier")
    a.label("L_store")
    a(f"""
    v_cvt_pk_bf16_f32 v20, v20, v20
    v_cvt_pk_bf16_f32 v21, v21, v21
    v_cvt_pk_bf16_f32 v22, v22, v22
    v_cvt_pk_bf16_f32 v23, v23, v23
    v_mov_b32 v4, 0
    s_mov_b64 exec, s[78:79]
    buffer_store_short v20, v4, s[88:91], s76 offen
    buffer_store_short v21, v4, s[88:91], s76 offen offset:16
    buffer_store_short v22, v4, s[88:91], s76 offen offset:32
    buffer_store_short v23, v4, s[88:91], s76 offen offset:48
    """)
    a.label("L_end")
    if PROF:
        a.stamp(10)
        a(f"""
        s_mov_b64 exec, 1
        s_lshl_b32 s76, s2, 3
        s_add_u32 s76, s76, s11
        s_lshl_b32 s76, s76, 6
        s_add_u32 s76, s76, {4<<20}
        s_add_u32 s92, s40, s76
        s_addc_u32 s93, s41, 0
        v_mov_b32 v4, 0
        """)
        a("v_mov_b32 v20, s13")
        for i in range(1, 12):
            a(f"v_mov_b32 v{20+i}, s{16+i}")
        if DBGPROF:
            a(f"""
            s_cmp_lg_u32 s76, {4<<20}
            s_cbranch_scc1 L_end2
            """)
            for i in range(0, 11):
                a(f"global_store_dword v4, v{20+i}, s[38:39] offset:{8+4*i}")
        else:
            for q in range(3):
                a(f"global_store_dwordx4 v4, v[{20+4*q}:{23+4*q}], s[92:93] offset:{16*q}")
    a.label("L_end2")
    a("s_endpgm")

    hdr = open("cdna_kernels/" + NAME + ".s.ref").read().split("\n")
    head = []
    for ln in hdr:
        if ln.startswith("; @launch"):
            head.append(f"; @launch grid=(256,1,1) block=(512,1,1) lds={LDS_BYTES}")
            break
        head.append(ln)
    out = "\n".join(head) + "\n"
    out += f""".amdgcn_target "amdgcn-amd-amdhsa--gfx950"
.text
.globl {NAME}_kernel
.p2align 8
.type {NAME}_kernel,@function
{NAME}_kernel:
"""
    t0 = "s_memrealtime s[92:93]\n    s_waitcnt lgkmcnt(0)\n    s_mov_b32 s13, s92" if PROF else ""
    out += a.text().replace("PROF_T0", t0).replace("PROF_CLR", "\n    ".join(f"s_mov_b32 s{16+i}, 0" for i in range(1,12)) if PROF else "")
    out += f""".section .rodata,"a"
.p2align 6
.amdhsa_kernel {NAME}_kernel
  .amdhsa_next_free_vgpr 256
  .amdhsa_next_free_sgpr 102
  .amdhsa_accum_offset 256
  .amdhsa_group_segment_fixed_size 0
  .amdhsa_kernarg_size 104
  .amdhsa_user_sgpr_count 2
  .amdhsa_user_sgpr_kernarg_segment_ptr 1
  .amdhsa_system_sgpr_workgroup_id_x 1
.end_amdhsa_kernel
"""
    return out

if __name__ == "__main__":
    for o in sys.argv[2:]:
        if o == "prof": PROF = True
        elif o == "dbgprof": PROF = True; DBGPROF = True
        elif o == "wnt": NT_W = " nt"
        elif o == "kvplain": NT_KV = ""
        elif o == "norot": ROT = False
        elif o.startswith("sleep"): POLL_SLEEP = int(o[5:])
    path = sys.argv[1] if len(sys.argv) > 1 else "cdna_kernels/" + NAME + ".s"
    open(path, "w").write(gen())
```

```python
import sys, struct

PROF = False
DBGPROF = False
NT_KV = " nt"
NT_W = ""
ROT = True
POLL_SLEEP = 8
NAME = "concat_heads__sliding_block_cached__gqa_block_cached__decode"

class A:
    def __init__(self):
        self.l = []
    def __call__(self, s):
        for ln in s.strip("\n").split("\n"):
            self.l.append("    " + ln.strip())
    def stamp(self, i):
        if not PROF: return
        self(f"""
        s_memrealtime s[92:93]
        s_waitcnt lgkmcnt(0)
        s_mov_b32 s{16+i}, s92
        """)
    def label(self, s):
        self.l.append(s + ":")
    def text(self):
        return "\n".join(self.l) + "\n"

def vr(b, n=1):
    return f"v{b}" if n == 1 else f"v[{b}:{b+n-1}]"

QPART = 0
QBUF = 4096
MBUF = 4352
LBUF = 4384
OPART = 4608
YPART = 8704
FIN = YPART + 8 * 2560
MLBUF = FIN + 64
LDS_BYTES = 32768
Y_OFF = 0
ML_OFF = 256 * 2560
HINT_OFF = ML_OFF + 2048
NREP = 16
WS_BYTES = HINT_OFF + NREP * 256

V_TID = 0
V_LANE = 1
V_N = 2
V_G = 3
V_T0 = 4
V_SELLO = 12
V_SELHI = 16
V_X = 20
V_SC = 20
V_B0 = 44
V_B1 = 48
V_ACC = 52
V_QF = 44
V_OFFA = 60
V_OFFB = 61
V_OFFC = 62
V_OFFD = 63
V_L = 64
V_MC = 65
V_DUMMY = 66
V_CNT = 67
V_OA = 68
V_ML = 72
R1 = 80
R2 = 160

C_SCALE = 0.08838834764831845 * 1.4426950408889634
def f32bits(x):
    return struct.unpack("<I", struct.pack("<f", x))[0]

def body(a, nt):
    L = f"L{nt}"
    a(f"""
    v_mov_b32 v4, -1
    v_mov_b32 v5, -1
    v_mov_b32 v6, -1
    v_mov_b32 v7, -1
    v_lshlrev_b32 v8, 12, {vr(V_LANE)}
    s_lshl_b32 s76, s10, 4
    s_mul_i32 s77, s11, {20*4096}
    s_add_u32 s76, s76, s77
    s_mov_b64 exec, 0xfffff
    buffer_store_dwordx4 v[4:7], v8, s[72:75], s76 offen sc1
    s_lshl_b32 s76, s10, 3
    s_add_u32 s76, s76, {ML_OFF}
    s_mov_b64 exec, 1
    buffer_store_dwordx2 v[4:5], v8, s[72:75], s76 offen sc1
    s_mov_b64 exec, -1
    s_cmp_lg_u32 s11, 0
    s_cbranch_scc1 {L}_noclr
    v_lshlrev_b32 v8, 8, {vr(V_LANE)}
    v_mov_b32 v9, 0
    s_add_u32 s76, s2, {HINT_OFF}
    s_mov_b64 exec, 0xffff
    buffer_store_byte v9, v8, s[72:75], s76 offen sc1
    s_mov_b64 exec, -1
    """)
    a.label(f"{L}_noclr")
    a(f"""
    s_mul_i32 s76, s11, 160
    v_mul_u32_u24 v10, 40, {vr(V_G)}
    v_add_u32 v10, s76, v10
    s_lshl_b32 s76, s14, 1
    """)
    for k in range(10):
        a(f"buffer_load_dword {vr(V_X+k)}, v10, s[68:71], s76 offen")
        if k < 9:
            a("s_add_u32 s76, s76, 4\ns_cmp_eq_u32 s76, 40\ns_cselect_b32 s76, 0, s76")
    a(f"""
    s_mul_i32 s76, s11, {80*8192}
    s_mov_b32 s77, {20*8192}
    v_mul_lo_u32 {vr(V_OFFA)}, s77, {vr(V_G)}
    v_lshl_add_u32 {vr(V_OFFA)}, {vr(V_N)}, 4, {vr(V_OFFA)}
    v_add_u32 {vr(V_OFFA)}, s76, {vr(V_OFFA)}
    s_lshl_b32 s76, s14, 13
    """)
    for t in range(20):
        a(f"buffer_load_dwordx4 {vr(R1+4*t,4)}, {vr(V_OFFA)}, s[52:55], s76 offen{NT_W}")
        if t < 19:
            a("s_add_u32 s76, s76, 8192\ns_cmp_eq_u32 s76, 163840\ns_cselect_b32 s76, 0, s76")
    a("s_barrier")
    a(f"""
    v_lshlrev_b32 {vr(V_OFFB)}, 8, {vr(V_N)}
    v_lshl_add_u32 {vr(V_OFFB)}, {vr(V_G)}, 4, {vr(V_OFFB)}
    s_lshl_b32 s76, s11, 12
    """)
    for u in range(nt):
        for j in range(4):
            a(f"buffer_load_dwordx4 {vr(R2+16*u+4*j,4)}, {vr(V_OFFB)}, s[56:59], s76 offen offset:{j*64}{NT_KV}")
        if u < nt - 1:
            a("s_add_u32 s76, s76, 32768")
    a(f"""
    v_lshlrev_b32 {vr(V_OFFC)}, 10, {vr(V_G)}
    v_lshl_add_u32 {vr(V_OFFC)}, {vr(V_N)}, 4, {vr(V_OFFC)}
    s_mul_i32 s76, s11, {4*1280}
    v_mul_u32_u24 {vr(V_OFFD)}, 1280, {vr(V_G)}
    v_lshl_add_u32 {vr(V_OFFD)}, {vr(V_N)}, 4, {vr(V_OFFD)}
    v_add_u32 {vr(V_OFFD)}, s76, {vr(V_OFFD)}
    """)
    a.stamp(1)
    a(f"""
    v_and_b32 {vr(V_T0)}, 1, {vr(V_N)}
    v_cmp_eq_u32 vcc, 1, {vr(V_T0)}
    v_mov_b32 {vr(V_T0+1)}, 0x0c0c0100
    v_mov_b32 {vr(V_T0+2)}, 0x01000c0c
    v_mov_b32 {vr(V_T0+3)}, 0x0c0c0302
    v_mov_b32 {vr(V_T0+4)}, 0x03020c0c
    v_cndmask_b32 {vr(V_T0+1)}, {vr(V_T0+1)}, {vr(V_T0+2)}, vcc
    v_cndmask_b32 {vr(V_T0+3)}, {vr(V_T0+3)}, {vr(V_T0+4)}, vcc
    v_lshrrev_b32 {vr(V_T0)}, 1, {vr(V_N)}
    v_mov_b32 {vr(V_T0+2)}, 0x0c0c0c0c
    """)
    for c in range(4):
        a(f"""
        v_cmp_eq_u32 vcc, {c}, {vr(V_T0)}
        s_nop 1
        v_cndmask_b32 {vr(V_SELLO+c)}, {vr(V_T0+2)}, {vr(V_T0+1)}, vcc
        v_cndmask_b32 {vr(V_SELHI+c)}, {vr(V_T0+2)}, {vr(V_T0+3)}, vcc
        """)
    a(f"""
    v_and_b32 {vr(V_T0)}, 7, {vr(V_N)}
    v_lshlrev_b32 {vr(V_T0)}, 9, {vr(V_T0)}
    v_lshl_add_u32 {vr(V_T0)}, {vr(V_G)}, 2, {vr(V_T0)}
    s_lshl_b32 s76, s11, 4
    v_add_u32 {vr(V_T0)}, s76, {vr(V_T0)}
    """)
    for t in range(4):
        a(f"""
        s_add_u32 s76, s15, {t}
        s_and_b32 s76, s76, 3
        s_lshl_b32 s76, s76, 7
        v_add_u32 {vr(V_OA+t)}, s76, {vr(V_T0)}
        """)
    nK = 4 * nt
    a(f"s_waitcnt vmcnt({20+nK})")
    def buildB(dst, src, hi):
        sel = V_SELHI if hi else V_SELLO
        for c in range(4):
            a(f"v_perm_b32 {vr(dst+c)}, {vr(src)}, {vr(src)}, {vr(sel+c)}")
    buildB(V_B0, V_X, 0)
    for t in range(20):
        cur = V_B0 if t % 2 == 0 else V_B1
        nxt = V_B1 if t % 2 == 0 else V_B0
        if t < 19:
            buildB(nxt, V_X + (t + 1) // 2, (t + 1) % 2)
        else:
            a("s_nop 1")
        a(f"s_waitcnt vmcnt({19-t+nK})")
        c = "0" if t == 0 else vr(V_ACC, 4)
        a(f"v_mfma_f32_16x16x32_bf16 {vr(V_ACC,4)}, {vr(R1+4*t,4)}, {vr(cur,4)}, {c}")
    a.stamp(2)
    a(f"""
    v_lshlrev_b32 {vr(V_T0)}, 3, {vr(V_G)}
    v_add_u32 {vr(V_T0)}, {vr(V_T0)}, {vr(V_N)}
    v_lshlrev_b32 {vr(V_T0)}, 4, {vr(V_T0)}
    s_lshl_b32 s76, s11, 9
    v_add_u32 {vr(V_T0)}, s76, {vr(V_T0)}
    s_nop 4
    s_mov_b64 exec, s[80:81]
    ds_write_b128 {vr(V_T0)}, {vr(V_ACC,4)} offset:{QPART}
    s_mov_b64 exec, -1
    s_waitcnt lgkmcnt(0)
    s_barrier
    v_mov_b32 {vr(V_T0)}, 0
    v_mov_b32 {vr(V_T0+1)}, 1
    v_mov_b32 {vr(V_T0+2)}, s2
    s_cmp_lg_u32 s11, 0
    s_cbranch_scc1 {L}_dummy
    s_mov_b64 exec, 1
    global_store_byte {vr(V_T0+2)}, {vr(V_T0+1)}, s[38:39] sc1
    s_mov_b64 exec, -1
    s_branch {L}_dummy_done
    """)
    a.label(f"{L}_dummy")
    a(f"buffer_load_dword {vr(V_DUMMY)}, {vr(V_T0)}, s[68:71], 0 offen")
    a.label(f"{L}_dummy_done")
    a(f"""
    s_cmp_ge_u32 s11, 2
    s_cbranch_scc1 {L}_qskip
    v_lshrrev_b32 {vr(V_T0)}, 5, {vr(V_TID)}
    v_lshlrev_b32 {vr(V_T0)}, 7, {vr(V_T0)}
    v_and_b32 {vr(V_T0+1)}, 7, {vr(V_TID)}
    v_lshl_add_u32 {vr(V_T0)}, {vr(V_T0+1)}, 4, {vr(V_T0)}
    v_bfe_u32 {vr(V_T0+1)}, {vr(V_TID)}, 3, 2
    v_lshl_add_u32 {vr(V_T0)}, {vr(V_T0+1)}, 2, {vr(V_T0)}
    """)
    for w in range(8):
        a(f"ds_read_b32 {vr(V_QF+w)}, {vr(V_T0)} offset:{QPART+w*512}")
    a("s_waitcnt lgkmcnt(0)")
    a(f"""
    v_add_f32 {vr(V_QF)}, {vr(V_QF)}, {vr(V_QF+1)}
    v_add_f32 {vr(V_QF+2)}, {vr(V_QF+2)}, {vr(V_QF+3)}
    v_add_f32 {vr(V_QF+4)}, {vr(V_QF+4)}, {vr(V_QF+5)}
    v_add_f32 {vr(V_QF+6)}, {vr(V_QF+6)}, {vr(V_QF+7)}
    v_add_f32 {vr(V_QF)}, {vr(V_QF)}, {vr(V_QF+2)}
    v_add_f32 {vr(V_QF+4)}, {vr(V_QF+4)}, {vr(V_QF+6)}
    v_add_f32 {vr(V_QF)}, {vr(V_QF)}, {vr(V_QF+4)}
    v_cvt_pk_bf16_f32 {vr(V_QF)}, {vr(V_QF)}, {vr(V_QF)}
    v_lshlrev_b32 {vr(V_T0)}, 1, {vr(V_TID)}
    ds_write_b16 {vr(V_T0)}, {vr(V_QF)} offset:{QBUF}
    s_waitcnt lgkmcnt(0)
    """)
    a.label(f"{L}_qskip")
    a(f"""
    s_barrier
    v_lshlrev_b32 {vr(V_T0)}, 4, {vr(V_G)}
    """)
    for j in range(4):
        a(f"ds_read_b128 {vr(V_QF+4*j,4)}, {vr(V_T0)} offset:{QBUF+j*64}")
    for t in range(4):
        a(f"""
        s_add_u32 s76, s15, {t}
        s_and_b32 s76, s76, 3
        s_mul_i32 s76, s76, 40960
        """)
        for cb in range(5):
            a(f"buffer_load_dwordx4 {vr(R1+4*(t*5+cb),4)}, {vr(V_OFFD)}, s[64:67], s76 offen offset:{cb*256}{NT_W}")
    a("s_waitcnt lgkmcnt(0)")
    a.stamp(3)
    a("s_lshl_b32 s76, s11, 12")
    for u in range(nt):
        a(f"s_waitcnt vmcnt({4*(nt-1-u)+1+20+4*u})")
        for j in range(4):
            c = "0" if j == 0 else vr(V_SC + 4 * u, 4)
            a(f"v_mfma_f32_16x16x32_bf16 {vr(V_SC+4*u,4)}, {vr(R2+16*u+4*j,4)}, {vr(V_QF+4*j,4)}, {c}")
        for r in range(4):
            a(f"buffer_load_dwordx4 {vr(R2+16*u+4*r,4)}, {vr(V_OFFC)}, s[60:63], s76 offen offset:{r*256}{NT_KV}")
        if u < nt - 1:
            a("s_add_u32 s76, s76, 32768")
    a.stamp(4)
    n = 4 * nt
    a("s_nop 4")
    a(f"v_max3_f32 {vr(V_T0)}, {vr(V_SC)}, {vr(V_SC+1)}, {vr(V_SC+2)}")
    k = 3
    while k < n:
        if k + 1 < n:
            a(f"v_max3_f32 {vr(V_T0)}, {vr(V_T0)}, {vr(V_SC+k)}, {vr(V_SC+k+1)}")
            k += 2
        else:
            a(f"v_max_f32 {vr(V_T0)}, {vr(V_T0)}, {vr(V_SC+k)}")
            k += 1
    a(f"""
    s_nop 0
    v_readlane_b32 s76, {vr(V_T0)}, 0
    v_readlane_b32 s77, {vr(V_T0)}, 16
    v_readlane_b32 s78, {vr(V_T0)}, 32
    v_readlane_b32 s79, {vr(V_T0)}, 48
    s_nop 1
    v_mov_b32 {vr(V_T0)}, s76
    v_max_f32 {vr(V_T0)}, s77, {vr(V_T0)}
    v_max_f32 {vr(V_T0)}, s78, {vr(V_T0)}
    v_max_f32 {vr(V_T0)}, s79, {vr(V_T0)}
    s_lshl_b32 s76, s11, 2
    v_mov_b32 {vr(V_T0+1)}, s76
    ds_write_b32 {vr(V_T0+1)}, {vr(V_T0)} offset:{MBUF}
    s_waitcnt lgkmcnt(0)
    s_barrier
    v_mov_b32 {vr(V_T0+1)}, 0
    ds_read_b128 {vr(V_QF,4)}, {vr(V_T0+1)} offset:{MBUF}
    ds_read_b128 {vr(V_QF+4,4)}, {vr(V_T0+1)} offset:{MBUF+16}
    s_waitcnt lgkmcnt(0)
    v_max3_f32 {vr(V_T0)}, {vr(V_QF)}, {vr(V_QF+1)}, {vr(V_QF+2)}
    v_max3_f32 {vr(V_T0)}, {vr(V_T0)}, {vr(V_QF+3)}, {vr(V_QF+4)}
    v_max3_f32 {vr(V_T0)}, {vr(V_T0)}, {vr(V_QF+5)}, {vr(V_QF+6)}
    v_max_f32 {vr(V_T0)}, {vr(V_T0)}, {vr(V_QF+7)}
    v_mul_f32 {vr(V_MC)}, s82, {vr(V_T0)}
    """)
    for k in range(n):
        a(f"v_fma_f32 {vr(V_SC+k)}, {vr(V_SC+k)}, s82, -{vr(V_MC)}")
    for k in range(n):
        a(f"v_exp_f32 {vr(V_SC+k)}, {vr(V_SC+k)}")
    a("s_nop 0")
    a(f"v_add_f32 {vr(V_L)}, {vr(V_SC)}, {vr(V_SC+1)}")
    for k in range(2, n):
        a(f"v_add_f32 {vr(V_L)}, {vr(V_L)}, {vr(V_SC+k)}")
    a(f"""
    s_lshl_b32 s76, s11, 4
    v_lshlrev_b32 {vr(V_T0)}, 2, {vr(V_G)}
    v_add_u32 {vr(V_T0)}, s76, {vr(V_T0)}
    s_mov_b64 exec, s[84:85]
    ds_write_b32 {vr(V_T0)}, {vr(V_L)} offset:{LBUF}
    s_mov_b64 exec, -1
    """)
    for k in range(0, n, 2):
        a(f"v_cvt_pk_bf16_f32 {vr(V_SC+k)}, {vr(V_SC+k)}, {vr(V_SC+k+1)}")
    a(f"""
    s_waitcnt lgkmcnt(0)
    s_barrier
    v_lshlrev_b32 v4, 2, {vr(V_LANE)}
    v_and_b32 v4, 127, v4
    ds_read_b32 v5, v4 offset:{LBUF}
    s_waitcnt lgkmcnt(0)
    s_nop 1
    v_add_f32_dpp v5, v5, v5 quad_perm:[1,0,3,2] row_mask:0xf bank_mask:0xf
    s_nop 1
    v_add_f32_dpp v5, v5, v5 quad_perm:[2,3,0,1] row_mask:0xf bank_mask:0xf
    s_nop 1
    v_add_f32_dpp v5, v5, v5 row_half_mirror row_mask:0xf bank_mask:0xf
    s_nop 1
    v_add_f32_dpp v5, v5, v5 row_mirror row_mask:0xf bank_mask:0xf
    s_nop 1
    v_readlane_b32 s76, v5, 16
    s_nop 1
    v_add_f32 v5, s76, v5
    v_min_u32 v4, 0xfffffffe, {vr(V_MC)}
    v_min_u32 v5, 0xfffffffe, v5
    s_lshl_b32 s76, s10, 3
    s_add_u32 s76, s76, {ML_OFF}
    v_mov_b32 v8, 0
    s_mov_b64 exec, 1
    buffer_store_dwordx2 v[4:5], v8, s[72:75], s76 offen sc1
    s_mov_b64 exec, -1
    v_lshlrev_b32 v8, 2, {vr(V_LANE)}
    global_load_dword {vr(V_CNT)}, v8, s[38:39] sc1
    """)
    a.stamp(5)
    def psrc(u, r):
        return V_SC + 4 * u + (r // 2) * 2, r % 2
    seq = [(u, r) for u in range(nt) for r in range(4)]
    s0, h0 = psrc(*seq[0])
    buildB(V_B0, s0, h0)
    nV = 4 * nt
    for idx, (u, r) in enumerate(seq):
        cur = V_B0 if idx % 2 == 0 else V_B1
        nxt = V_B1 if idx % 2 == 0 else V_B0
        if idx + 1 < len(seq):
            s1, h1 = psrc(*seq[idx + 1])
            buildB(nxt, s1, h1)
        else:
            a("s_nop 1")
        a(f"s_waitcnt vmcnt({nV-1-idx+2})")
        c = "0" if idx == 0 else vr(V_ACC, 4)
        a(f"v_mfma_f32_16x16x32_bf16 {vr(V_ACC,4)}, {vr(R2+16*u+4*r,4)}, {vr(cur,4)}, {c}")
    a.stamp(6)
    a("s_branch L_tail")

def gen():
    a = A()
    a(f"""
    s_cmp_ge_u32 s2, 256
    s_cbranch_scc1 L_end2
    s_load_dwordx16 s[16:31], s[0:1], 0
    s_load_dwordx8 s[32:39], s[0:1], 64
    s_load_dwordx2 s[40:41], s[0:1], 96
    PROF_T0
    s_and_b32 s3, s2, 7
    s_lshr_b32 s4, s2, 3
    v_lshrrev_b32 v1, 6, v0
    v_and_b32 v0, 0x3ff, v0
    v_readfirstlane_b32 s11, v1
    v_and_b32 {vr(V_LANE)}, 63, v0
    v_and_b32 {vr(V_N)}, 15, {vr(V_LANE)}
    v_lshrrev_b32 {vr(V_G)}, 4, {vr(V_LANE)}
    s_mul_i32 s5, s4, 43
    s_lshr_b32 s5, s5, 8
    s_mul_i32 s6, s5, 6
    s_sub_u32 s6, s4, s6
    s_cmp_lt_u32 s6, 4
    s_cselect_b32 s7, 43, 42
    s_mul_i32 s8, s6, 43
    s_max_u32 s76, s6, 4
    s_sub_u32 s76, s76, 4
    s_sub_u32 s8, s8, s76
    s_lshl_b32 s8, s8, 4
    s_sub_u32 s77, s4, 24
    s_lshr_b32 s78, s77, 1
    s_and_b32 s79, s77, 1
    s_lshl_b32 s80, s79, 9
    s_add_u32 s80, s80, 3072
    s_cmp_lt_u32 s4, 24
    s_cselect_b32 s5, s5, s78
    s_cselect_b32 s6, s6, s79
    s_cselect_b32 s7, s7, 32
    s_cselect_b32 s8, s8, s80
    s_cselect_b32 s12, 1, 0
    s_lshl_b32 s9, s3, 2
    s_add_u32 s9, s9, s5
    s_mul_i32 s10, s9, 6
    s_add_u32 s10, s10, s6
    s_lshl_b32 s76, s9, 1
    s_add_u32 s76, s76, s6
    s_add_u32 s76, s76, 192
    s_cmp_eq_u32 s12, 1
    s_cselect_b32 s10, s10, s76
    s_mul_i32 s14, s6, 10
    s_add_u32 s14, s14, 3
    s_mul_i32 s14, s14, 43
    s_lshr_b32 s14, s14, 8
    s_lshl_b32 s14, s14, 1
    s_mul_i32 s76, s6, 10
    s_and_b32 s15, s6, 3
    s_lshl_b32 s77, s6, 1
    s_cmp_eq_u32 s12, 1
    s_cselect_b32 s14, s14, s76
    s_cselect_b32 s15, s15, s77
    {"" if ROT else "s_mov_b32 s14, 0"}
    {"" if ROT else "s_mov_b32 s15, 0"}
    s_mov_b32 s80, 0x00ff00ff
    s_mov_b32 s81, 0x00ff00ff
    s_mov_b32 s82, 0x{f32bits(C_SCALE):08x}
    s_mov_b32 s84, 0x00010001
    s_mov_b32 s85, 0x00010001
    s_waitcnt lgkmcnt(0)
    s_cmp_eq_u32 s12, 1
    s_cselect_b64 s[42:43], s[26:27], s[16:17]
    s_cselect_b64 s[44:45], s[28:29], s[18:19]
    s_cselect_b64 s[46:47], s[30:31], s[20:21]
    s_cselect_b64 s[48:49], s[32:33], s[22:23]
    s_cselect_b64 s[50:51], s[34:35], s[24:25]
    s_lshl_b32 s76, s9, 8
    s_add_u32 s52, s48, s76
    s_addc_u32 s53, s49, 0
    s_sub_u32 s54, {640*8192}, s76
    s_mov_b32 s55, 0x00020000
    s_lshl_b32 s76, s9, 20
    s_lshl_b32 s77, s8, 8
    s_add_u32 s76, s76, s77
    s_add_u32 s56, s44, s76
    s_addc_u32 s57, s45, 0
    s_lshl_b32 s58, s7, 12
    s_mov_b32 s59, 0x00020000
    s_add_u32 s60, s46, s76
    s_addc_u32 s61, s47, 0
    s_mov_b32 s62, s58
    s_mov_b32 s63, 0x00020000
    s_mul_i32 s76, s9, 163840
    s_add_u32 s64, s50, s76
    s_addc_u32 s65, s51, 0
    s_mov_b32 s66, 163840
    s_mov_b32 s67, 0x00020000
    s_mov_b32 s68, s42
    s_mov_b32 s69, s43
    s_mov_b32 s70, 1280
    s_mov_b32 s71, 0x00020000
    s_mov_b32 s72, s40
    s_mov_b32 s73, s41
    s_mov_b32 s74, {WS_BYTES}
    s_mov_b32 s75, 0x00020000
    PROF_CLR
    s_sub_u32 s76, s7, s11
    s_add_u32 s76, s76, 7
    s_lshr_b32 s76, s76, 3
    s_cmp_eq_u32 s76, 6
    s_cbranch_scc1 L6_start
    s_cmp_eq_u32 s76, 5
    s_cbranch_scc1 L5_start
    """)
    for nt in (4, 5, 6):
        a.label(f"L{nt}_start")
        body(a, nt)
    a.label("L_tail")
    def buildB(dst, src, hi):
        sel = V_SELHI if hi else V_SELLO
        for c in range(4):
            a(f"v_perm_b32 {vr(dst+c)}, {vr(src)}, {vr(src)}, {vr(sel+c)}")
    a(f"""
    v_lshlrev_b32 {vr(V_T0)}, 5, {vr(V_G)}
    v_add_u32 {vr(V_T0)}, {vr(V_T0)}, {vr(V_N)}
    v_lshlrev_b32 {vr(V_T0)}, 2, {vr(V_T0)}
    s_lshl_b32 s76, s11, 9
    v_add_u32 {vr(V_T0)}, s76, {vr(V_T0)}
    s_nop 4
    s_mov_b64 exec, s[80:81]
    """)
    for r in range(4):
        a(f"ds_write_b32 {vr(V_T0)}, {vr(V_ACC+r)} offset:{OPART+r*32}")
    a(f"""
    s_mov_b64 exec, -1
    """)
    a("s_waitcnt lgkmcnt(0)")
    a("s_barrier")
    for t in range(4):
        a(f"ds_read_b32 {vr(V_T0+4+t)}, {vr(V_OA+t)} offset:{OPART}")
    a("s_waitcnt lgkmcnt(0)")
    for dpp in ["quad_perm:[1,0,3,2]", "quad_perm:[2,3,0,1]", "row_half_mirror"]:
        for t in range(4):
            a(f"v_add_f32_dpp {vr(V_T0+4+t)}, {vr(V_T0+4+t)}, {vr(V_T0+4+t)} {dpp} row_mask:0xf bank_mask:0xf")
    a(f"""
    v_cvt_pk_bf16_f32 {vr(V_T0+4)}, {vr(V_T0+4)}, {vr(V_T0+5)}
    v_cvt_pk_bf16_f32 {vr(V_T0+6)}, {vr(V_T0+6)}, {vr(V_T0+7)}
    """)
    VB = 20
    VY = 36
    for t in range(4):
        buildB(VB + 4 * t, V_T0 + 4 + (t // 2) * 2, t % 2)
    for t in range(4):
        for cb in range(5):
            c = "0" if t == 0 else vr(VY + 4 * cb, 4)
            a(f"v_mfma_f32_16x16x32_bf16 {vr(VY+4*cb,4)}, {vr(R1+4*(t*5+cb),4)}, {vr(VB+4*t,4)}, {c}")
    a(f"""
    v_lshlrev_b32 {vr(V_T0)}, 3, {vr(V_G)}
    v_add_u32 {vr(V_T0)}, {vr(V_T0)}, {vr(V_N)}
    v_lshlrev_b32 {vr(V_T0)}, 4, {vr(V_T0)}
    s_mul_i32 s76, s11, 2560
    v_add_u32 {vr(V_T0)}, s76, {vr(V_T0)}
    s_nop 4
    s_mov_b64 exec, s[80:81]
    """)
    for cb in range(5):
        a(f"ds_write_b128 {vr(V_T0)}, {vr(VY+4*cb,4)} offset:{YPART+cb*512}")
    a(f"""
    s_mov_b64 exec, -1
    s_waitcnt lgkmcnt(0)
    s_barrier
    """)
    a.stamp(7)
    a(f"""
    s_cmp_gt_u32 s11, 3
    s_cbranch_scc1 L_end
    s_cmp_eq_u32 s11, 3
    s_cbranch_scc1 L_after_store
    v_cmp_gt_u32 vcc, 160, v0
    s_and_saveexec_b64 s[86:87], vcc
    s_cbranch_execz L_tail_y_done
    v_lshlrev_b32 v4, 4, v0
    v_lshlrev_b32 v5, 12, v0
    """)
    for w in range(8):
        a(f"ds_read_b128 {vr(20+4*w,4)}, v4 offset:{YPART+w*2560}")
    a("s_waitcnt lgkmcnt(0)")
    for r in range(4):
        a(f"v_add_f32 v{20+r}, v{20+r}, v{24+r}")
        a(f"v_add_f32 v{28+r}, v{28+r}, v{32+r}")
        a(f"v_add_f32 v{36+r}, v{36+r}, v{40+r}")
        a(f"v_add_f32 v{44+r}, v{44+r}, v{48+r}")
    for r in range(4):
        a(f"v_add_f32 v{20+r}, v{20+r}, v{28+r}")
        a(f"v_add_f32 v{36+r}, v{36+r}, v{44+r}")
    for r in range(4):
        a(f"v_add_f32 v{20+r}, v{20+r}, v{36+r}")
    for r in range(4):
        a(f"v_min_u32 v{20+r}, 0xfffffffe, v{20+r}")
    a(f"""
    s_lshl_b32 s76, s10, 4
    buffer_store_dwordx4 v[20:23], v5, s[72:75], s76 offen sc1
    """)
    a.label("L_tail_y_done")
    a("s_mov_b64 exec, s[86:87]")
    a.label("L_after_store")
    a.stamp(8)
    a(f"""
    s_barrier
    s_cmp_lg_u32 s11, 3
    s_cbranch_scc1 L_nohint
    v_lshlrev_b32 v4, 8, {vr(V_LANE)}
    v_mov_b32 v5, 1
    s_add_u32 s76, s2, {HINT_OFF}
    s_mov_b64 exec, 0xffff
    buffer_store_byte v5, v4, s[72:75], s76 offen sc1
    s_mov_b64 exec, -1
    s_cmp_ge_u32 s2, 160
    s_cbranch_scc1 L_end
    v_lshlrev_b32 v8, 2, {vr(V_LANE)}
    s_waitcnt vmcnt(1)
    """)
    a.label("L_chkc")
    a(f"""
    v_cmp_ne_u32 vcc, 0x01010101, {vr(V_CNT)}
    s_cbranch_vccz L_clr_ok
    global_load_dword {vr(V_CNT)}, v8, s[38:39] sc1
    s_waitcnt vmcnt(0)
    s_branch L_chkc
    """)
    a.label("L_clr_ok")
    a(f"""
    s_lshr_b32 s76, s2, 3
    s_and_b32 s76, s76, {NREP-1}
    s_lshl_b32 s76, s76, 8
    s_add_u32 s76, s76, {HINT_OFF}
    """)
    a.label("L_pollc")
    a(f"""
    buffer_load_dword {vr(V_CNT)}, v8, s[72:75], s76 offen sc1
    s_waitcnt vmcnt(0)
    v_cmp_ne_u32 vcc, 0x01010101, {vr(V_CNT)}
    s_cbranch_vccz L_hint_ok
    s_sleep {POLL_SLEEP}
    s_branch L_pollc
    """)
    a.label("L_nohint")
    a(f"""
    s_cmp_ge_u32 s2, 160
    s_cbranch_scc1 L_end
    """)
    a.label("L_hint_ok")
    a(f"""
    s_barrier
    v_lshlrev_b32 v9, 3, v0
    s_mov_b32 s77, {ML_OFF}
    v_lshlrev_b32 v4, 4, v0
    s_lshl_b32 s76, s2, 12
    buffer_load_dwordx2 {vr(V_ML,2)}, v9, s[72:75], s77 offen sc1
    buffer_load_dwordx4 v[20:23], v4, s[72:75], s76 offen sc1
    s_waitcnt vmcnt(1)
    """)
    a.label("L_mlchk")
    a(f"""
    v_max_u32 v7, {vr(V_ML)}, {vr(V_ML+1)}
    v_cmp_eq_u32 vcc, -1, v7
    s_cbranch_vccz L_mlok
    buffer_load_dwordx2 {vr(V_ML,2)}, v9, s[72:75], s77 offen sc1
    s_waitcnt vmcnt(0)
    s_branch L_mlchk
    """)
    a.label("L_mlok")
    a(f"""
    ds_write_b64 v9, {vr(V_ML,2)} offset:{MLBUF}
    s_waitcnt lgkmcnt(0)
    s_barrier
    s_cmp_eq_u32 s11, 3
    s_cbranch_scc1 L_finA
    v_mul_u32_u24 v6, 171, v0
    v_lshrrev_b32 v6, 10, v6
    v_mul_u32_u24 v6, 48, v6
    ds_read_b128 v[28:31], v6 offset:{MLBUF}
    ds_read_b128 v[32:35], v6 offset:{MLBUF+16}
    ds_read_b128 v[36:39], v6 offset:{MLBUF+32}
    s_waitcnt lgkmcnt(0)
    v_max3_f32 v7, v28, v30, v32
    v_max3_f32 v7, v7, v34, v36
    v_max_f32 v7, v7, v38
    v_sub_f32 v28, v28, v7
    v_sub_f32 v30, v30, v7
    v_sub_f32 v32, v32, v7
    v_sub_f32 v34, v34, v7
    v_sub_f32 v36, v36, v7
    v_sub_f32 v38, v38, v7
    v_sub_f32 v24, {vr(V_ML)}, v7
    v_exp_f32 v28, v28
    v_exp_f32 v30, v30
    v_exp_f32 v32, v32
    v_exp_f32 v34, v34
    v_exp_f32 v36, v36
    v_exp_f32 v38, v38
    v_exp_f32 v24, v24
    s_nop 0
    v_mul_f32 v8, v28, v29
    v_fmac_f32 v8, v30, v31
    v_fmac_f32 v8, v32, v33
    v_fmac_f32 v8, v34, v35
    v_fmac_f32 v8, v36, v37
    v_fmac_f32 v8, v38, v39
    s_branch L_finW
    """)
    a.label("L_finA")
    a(f"""
    v_and_b32 v6, 0x1fe, v0
    v_lshlrev_b32 v6, 3, v6
    ds_read_b128 v[28:31], v6 offset:{MLBUF}
    s_waitcnt lgkmcnt(0)
    v_max_f32 v7, v28, v30
    v_sub_f32 v28, v28, v7
    v_sub_f32 v30, v30, v7
    v_sub_f32 v24, {vr(V_ML)}, v7
    v_exp_f32 v28, v28
    v_exp_f32 v30, v30
    v_exp_f32 v24, v24
    s_nop 0
    v_mul_f32 v8, v28, v29
    v_fmac_f32 v8, v30, v31
    """)
    a.label("L_finW")
    a(f"""
    v_rcp_f32 v8, v8
    s_nop 0
    v_mul_f32 v8, v24, v8
    """)
    a.label("L_pollY")
    a(f"""
    s_waitcnt vmcnt(0)
    v_max_u32 v7, v20, v21
    v_max3_u32 v7, v7, v22, v23
    v_cmp_eq_u32 vcc, -1, v7
    s_cbranch_vccz L_gotY
    buffer_load_dwordx4 v[20:23], v4, s[72:75], s76 offen sc1
    s_branch L_pollY
    """)
    a.label("L_gotY")
    a.stamp(9)
    a(f"""
    v_mul_f32 v20, v20, v8
    v_mul_f32 v21, v21, v8
    v_mul_f32 v22, v22, v8
    v_mul_f32 v23, v23, v8
    """)
    steps = [("row_shr:1", "0xf"), ("row_shr:2", "0xf"), ("row_shr:4", "0xf"), ("row_shr:8", "0xf"),
             ("row_bcast:15", "0xa"), ("row_bcast:31", "0xc")]
    for dpp, rm in steps:
        for r in range(4):
            a(f"v_add_f32_dpp v{20+r}, v{20+r}, v{20+r} {dpp} row_mask:{rm} bank_mask:0xf bound_ctrl:0")
    a(f"""
    s_lshr_b32 s76, s2, 5
    s_lshl_b32 s76, s76, 7
    s_bfe_u32 s77, s2, 0x20003
    s_lshl_b32 s77, s77, 5
    s_add_u32 s76, s76, s77
    s_and_b32 s77, s2, 7
    s_add_u32 s76, s76, s77
    s_lshl_b32 s76, s76, 1
    s_mov_b32 s88, s36
    s_mov_b32 s89, s37
    s_mov_b32 s90, 2560
    s_mov_b32 s91, 0x00020000
    s_mov_b32 s78, 0
    s_mov_b32 s79, 0x80000000
    s_cmp_eq_u32 s11, 3
    s_cbranch_scc1 L_finA2
    s_lshl_b32 s77, s11, 4
    v_mov_b32 v4, s77
    s_mov_b64 exec, s[78:79]
    ds_write_b128 v4, v[20:23] offset:{FIN}
    s_mov_b64 exec, -1
    s_waitcnt lgkmcnt(0)
    s_barrier
    s_cmp_lg_u32 s11, 0
    s_cbranch_scc1 L_end
    v_mov_b32 v4, 0
    ds_read_b128 v[20:23], v4 offset:{FIN}
    ds_read_b128 v[24:27], v4 offset:{FIN+16}
    ds_read_b128 v[28:31], v4 offset:{FIN+32}
    s_waitcnt lgkmcnt(0)
    """)
    for r in range(4):
        a(f"v_add_f32 v{20+r}, v{20+r}, v{24+r}")
    for r in range(4):
        a(f"v_add_f32 v{20+r}, v{20+r}, v{28+r}")
    a(f"""
    s_add_u32 s76, s76, 1280
    s_mov_b32 s79, 0
    s_mov_b32 s78, 1
    s_branch L_store
    """)
    a.label("L_finA2")
    a("s_barrier")
    a.label("L_store")
    a(f"""
    v_cvt_pk_bf16_f32 v20, v20, v20
    v_cvt_pk_bf16_f32 v21, v21, v21
    v_cvt_pk_bf16_f32 v22, v22, v22
    v_cvt_pk_bf16_f32 v23, v23, v23
    v_mov_b32 v4, 0
    s_mov_b64 exec, s[78:79]
    buffer_store_short v20, v4, s[88:91], s76 offen
    buffer_store_short v21, v4, s[88:91], s76 offen offset:16
    buffer_store_short v22, v4, s[88:91], s76 offen offset:32
    buffer_store_short v23, v4, s[88:91], s76 offen offset:48
    """)
    a.label("L_end")
    if PROF:
        a.stamp(10)
        a(f"""
        s_mov_b64 exec, 1
        s_lshl_b32 s76, s2, 3
        s_add_u32 s76, s76, s11
        s_lshl_b32 s76, s76, 6
        s_add_u32 s76, s76, {4<<20}
        s_add_u32 s92, s40, s76
        s_addc_u32 s93, s41, 0
        v_mov_b32 v4, 0
        """)
        a("v_mov_b32 v20, s13")
        for i in range(1, 12):
            a(f"v_mov_b32 v{20+i}, s{16+i}")
        if DBGPROF:
            a(f"""
            s_cmp_lg_u32 s76, {4<<20}
            s_cbranch_scc1 L_end2
            """)
            for i in range(0, 11):
                a(f"global_store_dword v4, v{20+i}, s[38:39] offset:{8+4*i}")
        else:
            for q in range(3):
                a(f"global_store_dwordx4 v4, v[{20+4*q}:{23+4*q}], s[92:93] offset:{16*q}")
    a.label("L_end2")
    a("s_endpgm")

    hdr = open("cdna_kernels/" + NAME + ".s.ref").read().split("\n")
    head = []
    for ln in hdr:
        if ln.startswith("; @launch"):
            head.append(f"; @launch grid=(256,1,1) block=(512,1,1) lds={LDS_BYTES}")
            break
        head.append(ln)
    out = "\n".join(head) + "\n"
    out += f""".amdgcn_target "amdgcn-amd-amdhsa--gfx950"
.text
.globl {NAME}_kernel
.p2align 8
.type {NAME}_kernel,@function
{NAME}_kernel:
"""
    t0 = "s_memrealtime s[92:93]\n    s_waitcnt lgkmcnt(0)\n    s_mov_b32 s13, s92" if PROF else ""
    out += a.text().replace("PROF_T0", t0).replace("PROF_CLR", "\n    ".join(f"s_mov_b32 s{16+i}, 0" for i in range(1,12)) if PROF else "")
    out += f""".section .rodata,"a"
.p2align 6
.amdhsa_kernel {NAME}_kernel
  .amdhsa_next_free_vgpr 256
  .amdhsa_next_free_sgpr 102
  .amdhsa_accum_offset 256
  .amdhsa_group_segment_fixed_size 0
  .amdhsa_kernarg_size 104
  .amdhsa_user_sgpr_count 2
  .amdhsa_user_sgpr_kernarg_segment_ptr 1
  .amdhsa_system_sgpr_workgroup_id_x 1
.end_amdhsa_kernel
"""
    return out

if __name__ == "__main__":
    for o in sys.argv[2:]:
        if o == "prof": PROF = True
        elif o == "dbgprof": PROF = True; DBGPROF = True
        elif o == "wnt": NT_W = " nt"
        elif o == "kvplain": NT_KV = ""
        elif o == "norot": ROT = False
        elif o.startswith("sleep"): POLL_SLEEP = int(o[5:])
    path = sys.argv[1] if len(sys.argv) > 1 else "cdna_kernels/" + NAME + ".s"
    open(path, "w").write(gen())
```

```python
import sys, struct

PROF = False
DBGPROF = False
NT_KV = " nt"
NT_W = ""
ROT = True
POLL_SLEEP = 4
NRED = 40
NAME = "concat_heads__sliding_block_cached__gqa_block_cached__decode"

class A:
    def __init__(self):
        self.l = []
    def __call__(self, s):
        for ln in s.strip("\n").split("\n"):
            if ln.strip():
                self.l.append("    " + ln.strip())
    def stamp(self, i):
        if not PROF: return
        self(f"""
        s_memrealtime s[92:93]
        s_waitcnt lgkmcnt(0)
        s_mov_b32 s{16+i}, s92
        """)
    def label(self, s):
        self.l.append(s + ":")
    def text(self):
        return "\n".join(self.l) + "\n"

def vr(b, n=1):
    return f"v{b}" if n == 1 else f"v[{b}:{b+n-1}]"

QPART = 0
QBUF = 4096
MBUF = 4352
LBUF = 4384
OPART = 4608
YPART = 8704
MLBUF = YPART + 8 * 2560
FINB = MLBUF + 2048
FINA = FINB + 2048
LDS_BYTES = 36864
ML_OFF = 256 * 2560
HINT_OFF = ML_OFF + 2048
NREP = 5
WS_BYTES = HINT_OFF + NREP * 1024

V_TID = 0
V_LANE = 1
V_N = 2
V_G = 3
V_T0 = 4
V_SELLO = 12
V_SELHI = 16
V_X = 20
V_SC = 20
V_B0 = 44
V_B1 = 48
V_ACC = 52
V_QF = 44
V_OFFA = 60
V_OFFB = 61
V_OFFC = 62
V_OFFD = 63
V_L = 64
V_MC = 65
V_DUMMY = 66
V_CNT = 67
V_OA = 68
V_ML = 72
V_W1 = 74
V_W2 = 75
R1 = 80
R2 = 160

C_SCALE = 0.08838834764831845 * 1.4426950408889634
def f32bits(x):
    return struct.unpack("<I", struct.pack("<f", x))[0]

def body(a, nt):
    L = f"L{nt}"
    a(f"""
    v_lshlrev_b32 {vr(V_OFFB)}, 8, {vr(V_N)}
    v_lshl_add_u32 {vr(V_OFFB)}, {vr(V_G)}, 4, {vr(V_OFFB)}
    s_lshl_b32 s76, s11, 12
    """)
    for u in range(nt):
        for j in range(4):
            a(f"buffer_load_dwordx4 {vr(R2+16*u+4*j,4)}, {vr(V_OFFB)}, s[56:59], s76 offen offset:{j*64}{NT_KV}")
        if u < nt - 1:
            a("s_add_u32 s76, s76, 32768")
    nK = 4 * nt
    nC = 0
    a(f"""
    v_lshlrev_b32 {vr(V_OFFC)}, 10, {vr(V_G)}
    v_lshl_add_u32 {vr(V_OFFC)}, {vr(V_N)}, 4, {vr(V_OFFC)}
    s_mul_i32 s76, s11, {4*1280}
    v_mul_u32_u24 {vr(V_OFFD)}, 1280, {vr(V_G)}
    v_lshl_add_u32 {vr(V_OFFD)}, {vr(V_N)}, 4, {vr(V_OFFD)}
    v_add_u32 {vr(V_OFFD)}, s76, {vr(V_OFFD)}
    """)
    a.stamp(1)
    a(f"""
    v_and_b32 {vr(V_T0+8)}, 1, {vr(V_N)}
    v_cmp_eq_u32 vcc, 1, {vr(V_T0+8)}
    v_mov_b32 {vr(V_B0+1)}, 0x0c0c0100
    v_mov_b32 {vr(V_B0+2)}, 0x01000c0c
    v_mov_b32 {vr(V_B0+3)}, 0x0c0c0302
    v_mov_b32 {vr(V_B0+4)}, 0x03020c0c
    v_cndmask_b32 {vr(V_B0+1)}, {vr(V_B0+1)}, {vr(V_B0+2)}, vcc
    v_cndmask_b32 {vr(V_B0+3)}, {vr(V_B0+3)}, {vr(V_B0+4)}, vcc
    v_lshrrev_b32 {vr(V_B0)}, 1, {vr(V_N)}
    v_mov_b32 {vr(V_B0+2)}, 0x0c0c0c0c
    """)
    for c in range(4):
        a(f"""
        v_cmp_eq_u32 vcc, {c}, {vr(V_B0)}
        s_nop 1
        v_cndmask_b32 {vr(V_SELLO+c)}, {vr(V_B0+2)}, {vr(V_B0+1)}, vcc
        v_cndmask_b32 {vr(V_SELHI+c)}, {vr(V_B0+2)}, {vr(V_B0+3)}, vcc
        """)
    a(f"""
    v_and_b32 {vr(V_B0)}, 7, {vr(V_N)}
    v_lshlrev_b32 {vr(V_B0)}, 9, {vr(V_B0)}
    v_lshl_add_u32 {vr(V_B0)}, {vr(V_G)}, 2, {vr(V_B0)}
    s_lshl_b32 s76, s11, 4
    v_add_u32 {vr(V_B0)}, s76, {vr(V_B0)}
    """)
    for t in range(4):
        a(f"""
        s_add_u32 s76, s15, {t}
        s_and_b32 s76, s76, 3
        s_lshl_b32 s76, s76, 7
        v_add_u32 {vr(V_OA+t)}, s76, {vr(V_B0)}
        """)
    a(f"s_waitcnt vmcnt({nK+nC})")
    def buildB(dst, src, hi):
        sel = V_SELHI if hi else V_SELLO
        for c in range(4):
            a(f"v_perm_b32 {vr(dst+c)}, {vr(src)}, {vr(src)}, {vr(sel+c)}")
    buildB(V_B0, V_X, 0)
    for t in range(20):
        cur = V_B0 if t % 2 == 0 else V_B1
        nxt = V_B1 if t % 2 == 0 else V_B0
        if t < 19:
            buildB(nxt, V_X + (t + 1) // 2, (t + 1) % 2)
        else:
            a("s_nop 1")
        c = "0" if t == 0 else vr(V_ACC, 4)
        a(f"v_mfma_f32_16x16x32_bf16 {vr(V_ACC,4)}, {vr(R1+4*t,4)}, {vr(cur,4)}, {c}")
    a.stamp(2)
    a(f"""
    v_lshlrev_b32 {vr(V_T0)}, 3, {vr(V_G)}
    v_add_u32 {vr(V_T0)}, {vr(V_T0)}, {vr(V_N)}
    v_lshlrev_b32 {vr(V_T0)}, 4, {vr(V_T0)}
    s_lshl_b32 s76, s11, 9
    v_add_u32 {vr(V_T0)}, s76, {vr(V_T0)}
    s_nop 4
    s_mov_b64 exec, s[80:81]
    ds_write_b128 {vr(V_T0)}, {vr(V_ACC,4)} offset:{QPART}
    s_mov_b64 exec, -1
    s_waitcnt lgkmcnt(0)
    s_barrier
    s_cmp_lg_u32 s11, 2
    s_cbranch_scc1 {L}_noflag
    v_mov_b32 v9, 1
    v_mov_b32 v10, s2
    s_mov_b64 exec, 1
    global_store_byte v10, v9, s[38:39] sc1
    s_mov_b64 exec, -1
    """)
    a.label(f"{L}_noflag")
    a(f"""
    s_cmp_ge_u32 s11, 2
    s_cbranch_scc1 {L}_qskip
    v_lshrrev_b32 {vr(V_T0)}, 5, {vr(V_TID)}
    v_lshlrev_b32 {vr(V_T0)}, 7, {vr(V_T0)}
    v_and_b32 {vr(V_T0+1)}, 7, {vr(V_TID)}
    v_lshl_add_u32 {vr(V_T0)}, {vr(V_T0+1)}, 4, {vr(V_T0)}
    v_bfe_u32 {vr(V_T0+1)}, {vr(V_TID)}, 3, 2
    v_lshl_add_u32 {vr(V_T0)}, {vr(V_T0+1)}, 2, {vr(V_T0)}
    """)
    for w in range(8):
        a(f"ds_read_b32 {vr(V_QF+w)}, {vr(V_T0)} offset:{QPART+w*512}")
    a("s_waitcnt lgkmcnt(0)")
    a(f"""
    v_add_f32 {vr(V_QF)}, {vr(V_QF)}, {vr(V_QF+1)}
    v_add_f32 {vr(V_QF+2)}, {vr(V_QF+2)}, {vr(V_QF+3)}
    v_add_f32 {vr(V_QF+4)}, {vr(V_QF+4)}, {vr(V_QF+5)}
    v_add_f32 {vr(V_QF+6)}, {vr(V_QF+6)}, {vr(V_QF+7)}
    v_add_f32 {vr(V_QF)}, {vr(V_QF)}, {vr(V_QF+2)}
    v_add_f32 {vr(V_QF+4)}, {vr(V_QF+4)}, {vr(V_QF+6)}
    v_add_f32 {vr(V_QF)}, {vr(V_QF)}, {vr(V_QF+4)}
    v_cvt_pk_bf16_f32 {vr(V_QF)}, {vr(V_QF)}, {vr(V_QF)}
    v_lshlrev_b32 {vr(V_T0)}, 1, {vr(V_TID)}
    ds_write_b16 {vr(V_T0)}, {vr(V_QF)} offset:{QBUF}
    s_waitcnt lgkmcnt(0)
    """)
    a.label(f"{L}_qskip")
    a(f"""
    s_barrier
    v_lshlrev_b32 {vr(V_T0)}, 4, {vr(V_G)}
    """)
    for j in range(4):
        a(f"ds_read_b128 {vr(V_QF+4*j,4)}, {vr(V_T0)} offset:{QBUF+j*64}")
    for t in range(4):
        a(f"""
        s_add_u32 s76, s15, {t}
        s_and_b32 s76, s76, 3
        s_mul_i32 s76, s76, 40960
        """)
        for cb in range(5):
            a(f"buffer_load_dwordx4 {vr(R1+4*(t*5+cb),4)}, {vr(V_OFFD)}, s[64:67], s76 offen offset:{cb*256}{NT_W}")
    a("s_waitcnt lgkmcnt(0)")
    a.stamp(3)
    a("s_lshl_b32 s76, s11, 12")
    for u in range(nt):
        a(f"s_waitcnt vmcnt({4*(nt-1-u)+nC+20+4*u})")
        for j in range(4):
            c = "0" if j == 0 else vr(V_SC + 4 * u, 4)
            a(f"v_mfma_f32_16x16x32_bf16 {vr(V_SC+4*u,4)}, {vr(R2+16*u+4*j,4)}, {vr(V_QF+4*j,4)}, {c}")
        for r in range(4):
            a(f"buffer_load_dwordx4 {vr(R2+16*u+4*r,4)}, {vr(V_OFFC)}, s[60:63], s76 offen offset:{r*256}{NT_KV}")
        if u < nt - 1:
            a("s_add_u32 s76, s76, 32768")
    a.stamp(4)
    n = 4 * nt
    a("s_nop 4")
    a(f"v_max3_f32 {vr(V_T0)}, {vr(V_SC)}, {vr(V_SC+1)}, {vr(V_SC+2)}")
    k = 3
    while k < n:
        if k + 1 < n:
            a(f"v_max3_f32 {vr(V_T0)}, {vr(V_T0)}, {vr(V_SC+k)}, {vr(V_SC+k+1)}")
            k += 2
        else:
            a(f"v_max_f32 {vr(V_T0)}, {vr(V_T0)}, {vr(V_SC+k)}")
            k += 1
    a(f"""
    s_nop 0
    v_readlane_b32 s76, {vr(V_T0)}, 0
    v_readlane_b32 s77, {vr(V_T0)}, 16
    v_readlane_b32 s78, {vr(V_T0)}, 32
    v_readlane_b32 s79, {vr(V_T0)}, 48
    s_nop 1
    v_mov_b32 {vr(V_T0)}, s76
    v_max_f32 {vr(V_T0)}, s77, {vr(V_T0)}
    v_max_f32 {vr(V_T0)}, s78, {vr(V_T0)}
    v_max_f32 {vr(V_T0)}, s79, {vr(V_T0)}
    s_lshl_b32 s76, s11, 2
    v_mov_b32 {vr(V_T0+1)}, s76
    ds_write_b32 {vr(V_T0+1)}, {vr(V_T0)} offset:{MBUF}
    s_waitcnt lgkmcnt(0)
    s_barrier
    v_mov_b32 {vr(V_T0+1)}, 0
    ds_read_b128 {vr(V_QF,4)}, {vr(V_T0+1)} offset:{MBUF}
    ds_read_b128 {vr(V_QF+4,4)}, {vr(V_T0+1)} offset:{MBUF+16}
    s_waitcnt lgkmcnt(0)
    v_max3_f32 {vr(V_T0)}, {vr(V_QF)}, {vr(V_QF+1)}, {vr(V_QF+2)}
    v_max3_f32 {vr(V_T0)}, {vr(V_T0)}, {vr(V_QF+3)}, {vr(V_QF+4)}
    v_max3_f32 {vr(V_T0)}, {vr(V_T0)}, {vr(V_QF+5)}, {vr(V_QF+6)}
    v_max_f32 {vr(V_T0)}, {vr(V_T0)}, {vr(V_QF+7)}
    v_mul_f32 {vr(V_MC)}, s82, {vr(V_T0)}
    """)
    for k in range(n):
        a(f"v_fma_f32 {vr(V_SC+k)}, {vr(V_SC+k)}, s82, -{vr(V_MC)}")
    for k in range(n):
        a(f"v_exp_f32 {vr(V_SC+k)}, {vr(V_SC+k)}")
    a("s_nop 0")
    a(f"v_add_f32 {vr(V_L)}, {vr(V_SC)}, {vr(V_SC+1)}")
    for k in range(2, n):
        a(f"v_add_f32 {vr(V_L)}, {vr(V_L)}, {vr(V_SC+k)}")
    a(f"""
    s_lshl_b32 s76, s11, 4
    v_lshlrev_b32 {vr(V_T0)}, 2, {vr(V_G)}
    v_add_u32 {vr(V_T0)}, s76, {vr(V_T0)}
    s_mov_b64 exec, s[84:85]
    ds_write_b32 {vr(V_T0)}, {vr(V_L)} offset:{LBUF}
    s_mov_b64 exec, -1
    """)
    for k in range(0, n, 2):
        a(f"v_cvt_pk_bf16_f32 {vr(V_SC+k)}, {vr(V_SC+k)}, {vr(V_SC+k+1)}")
    a(f"""
    s_waitcnt lgkmcnt(0)
    s_barrier
    v_lshlrev_b32 v4, 2, {vr(V_LANE)}
    v_and_b32 v4, 127, v4
    ds_read_b32 v5, v4 offset:{LBUF}
    s_waitcnt lgkmcnt(0)
    s_nop 1
    v_add_f32_dpp v5, v5, v5 quad_perm:[1,0,3,2] row_mask:0xf bank_mask:0xf
    s_nop 1
    v_add_f32_dpp v5, v5, v5 quad_perm:[2,3,0,1] row_mask:0xf bank_mask:0xf
    s_nop 1
    v_add_f32_dpp v5, v5, v5 row_half_mirror row_mask:0xf bank_mask:0xf
    s_nop 1
    v_add_f32_dpp v5, v5, v5 row_mirror row_mask:0xf bank_mask:0xf
    s_nop 1
    v_readlane_b32 s76, v5, 16
    s_nop 1
    v_add_f32 v5, s76, v5
    v_min_u32 v4, 0xfffffffe, {vr(V_MC)}
    v_min_u32 v5, 0xfffffffe, v5
    s_lshl_b32 s76, s10, 3
    s_add_u32 s76, s76, {ML_OFF}
    v_mov_b32 v8, 0
    v_mov_b32 v9, 1
    v_mov_b32 v10, s2
    s_cmp_lg_u32 s11, 1
    s_cbranch_scc1 {L}_w0done
    s_mov_b64 exec, 1
    buffer_store_dwordx2 v[4:5], v8, s[72:75], s76 offen sc1
    s_mov_b64 exec, -1
    """)
    a.label(f"{L}_w0done")
    a.stamp(5)
    def psrc(u, r):
        return V_SC + 4 * u + (r // 2) * 2, r % 2
    seq = [(u, r) for u in range(nt) for r in range(4)]
    s0, h0 = psrc(*seq[0])
    buildB(V_B0, s0, h0)
    nV = 4 * nt
    for idx, (u, r) in enumerate(seq):
        cur = V_B0 if idx % 2 == 0 else V_B1
        nxt = V_B1 if idx % 2 == 0 else V_B0
        if idx + 1 < len(seq):
            s1, h1 = psrc(*seq[idx + 1])
            buildB(nxt, s1, h1)
        else:
            a("s_nop 1")
        a(f"s_waitcnt vmcnt({nV-1-idx})")
        c = "0" if idx == 0 else vr(V_ACC, 4)
        a(f"v_mfma_f32_16x16x32_bf16 {vr(V_ACC,4)}, {vr(R2+16*u+4*r,4)}, {vr(cur,4)}, {c}")
    a.stamp(6)
    a("s_branch L_tail")

def gen():
    a = A()
    a(f"""
    s_cmp_ge_u32 s2, 256
    s_cbranch_scc1 L_end2
    s_load_dwordx16 s[16:31], s[0:1], 0
    s_load_dwordx8 s[32:39], s[0:1], 64
    s_load_dwordx2 s[40:41], s[0:1], 96
    PROF_T0
    s_and_b32 s3, s2, 7
    s_lshr_b32 s4, s2, 3
    v_lshrrev_b32 v1, 6, v0
    v_and_b32 v0, 0x3ff, v0
    v_readfirstlane_b32 s11, v1
    v_and_b32 {vr(V_LANE)}, 63, v0
    v_and_b32 {vr(V_N)}, 15, {vr(V_LANE)}
    v_lshrrev_b32 {vr(V_G)}, 4, {vr(V_LANE)}
    s_mul_i32 s5, s4, 43
    s_lshr_b32 s5, s5, 8
    s_mul_i32 s6, s5, 6
    s_sub_u32 s6, s4, s6
    s_cmp_lt_u32 s6, 4
    s_cselect_b32 s7, 43, 42
    s_mul_i32 s8, s6, 43
    s_max_u32 s76, s6, 4
    s_sub_u32 s76, s76, 4
    s_sub_u32 s8, s8, s76
    s_lshl_b32 s8, s8, 4
    s_sub_u32 s77, s4, 24
    s_lshr_b32 s78, s77, 1
    s_and_b32 s79, s77, 1
    s_lshl_b32 s80, s79, 9
    s_add_u32 s80, s80, 3072
    s_cmp_lt_u32 s4, 24
    s_cselect_b32 s5, s5, s78
    s_cselect_b32 s6, s6, s79
    s_cselect_b32 s7, s7, 32
    s_cselect_b32 s8, s8, s80
    s_cselect_b32 s12, 1, 0
    s_lshl_b32 s9, s3, 2
    s_add_u32 s9, s9, s5
    s_mul_i32 s10, s9, 6
    s_add_u32 s10, s10, s6
    s_lshl_b32 s76, s9, 1
    s_add_u32 s76, s76, s6
    s_add_u32 s76, s76, 192
    s_cmp_eq_u32 s12, 1
    s_cselect_b32 s10, s10, s76
    s_mul_i32 s14, s6, 10
    s_add_u32 s14, s14, 3
    s_mul_i32 s14, s14, 43
    s_lshr_b32 s14, s14, 8
    s_lshl_b32 s14, s14, 1
    s_mul_i32 s76, s6, 10
    s_and_b32 s15, s6, 3
    s_lshl_b32 s77, s6, 1
    s_cmp_eq_u32 s12, 1
    s_cselect_b32 s14, s14, s76
    s_cselect_b32 s15, s15, s77
    {"" if ROT else "s_mov_b32 s14, 0"}
    {"" if ROT else "s_mov_b32 s15, 0"}
    s_mov_b32 s80, 0x00ff00ff
    s_mov_b32 s81, 0x00ff00ff
    s_mov_b32 s82, 0x{f32bits(C_SCALE):08x}
    s_mov_b32 s84, 0x00010001
    s_mov_b32 s85, 0x00010001
    s_mov_b32 s55, 0x00020000
    s_mov_b32 s59, 0x00020000
    s_mov_b32 s63, 0x00020000
    s_mov_b32 s67, 0x00020000
    s_mov_b32 s71, 0x00020000
    s_mov_b32 s75, 0x00020000
    s_mov_b32 s70, 1280
    s_mov_b32 s66, 163840
    s_mov_b32 s74, {WS_BYTES}
    s_lshl_b32 s58, s7, 12
    s_mov_b32 s62, s58
    s_mul_i32 s76, s11, 160
    v_mul_u32_u24 v10, 40, {vr(V_G)}
    v_add_u32 v10, s76, v10
    s_mul_i32 s76, s11, {80*8192}
    s_mov_b32 s77, {20*8192}
    v_mul_lo_u32 {vr(V_OFFA)}, s77, {vr(V_G)}
    v_lshl_add_u32 {vr(V_OFFA)}, {vr(V_N)}, 4, {vr(V_OFFA)}
    v_add_u32 {vr(V_OFFA)}, s76, {vr(V_OFFA)}
    s_lshl_b32 s78, s9, 8
    s_sub_u32 s54, {640*8192}, s78
    s_waitcnt lgkmcnt(0)
    s_cmp_eq_u32 s12, 1
    s_cselect_b64 s[48:49], s[32:33], s[22:23]
    s_cselect_b64 s[68:69], s[26:27], s[16:17]
    s_cselect_b64 s[44:45], s[28:29], s[18:19]
    s_cselect_b64 s[46:47], s[30:31], s[20:21]
    s_cselect_b64 s[50:51], s[34:35], s[24:25]
    s_add_u32 s52, s48, s78
    s_addc_u32 s53, s49, 0
    s_lshl_b32 s76, s14, 13
    """)
    for t in range(20):
        a(f"buffer_load_dwordx4 {vr(R1+4*t,4)}, {vr(V_OFFA)}, s[52:55], s76 offen{NT_W}")
        if t < 19:
            a("s_add_u32 s76, s76, 8192\ns_cmp_eq_u32 s76, 163840\ns_cselect_b32 s76, 0, s76")
    XL = []
    a("s_lshl_b32 s76, s14, 1")
    for k in range(10):
        a(f"buffer_load_dword {vr(V_X+k)}, v10, s[68:71], s76 offen")
        if k < 9:
            a("s_add_u32 s76, s76, 4\ns_cmp_eq_u32 s76, 40\ns_cselect_b32 s76, 0, s76")
    a(f"""
    s_lshl_b32 s76, s9, 20
    s_lshl_b32 s77, s8, 8
    s_add_u32 s76, s76, s77
    s_add_u32 s56, s44, s76
    s_addc_u32 s57, s45, 0
    s_add_u32 s60, s46, s76
    s_addc_u32 s61, s47, 0
    s_mul_i32 s76, s9, 163840
    s_add_u32 s64, s50, s76
    s_addc_u32 s65, s51, 0
    s_mov_b32 s72, s40
    s_mov_b32 s73, s41
    v_mov_b32 v4, -1
    v_mov_b32 v5, -1
    v_mov_b32 v6, -1
    v_mov_b32 v7, -1
    s_mul_i32 s77, s11, 20
    v_add_u32 v8, s77, {vr(V_LANE)}
    v_lshrrev_b32 v9, 2, v8
    v_and_b32 v8, 3, v8
    v_lshlrev_b32 v8, 4, v8
    v_lshl_add_u32 v8, v9, 14, v8
    s_lshl_b32 s76, s10, 6
    s_mov_b64 exec, 0xfffff
    buffer_store_dwordx4 v[4:7], v8, s[72:75], s76 offen sc1
    s_mov_b64 exec, -1
    s_cmp_lg_u32 s11, 0
    s_cbranch_scc1 L_noclr
    v_mov_b32 v6, 0
    v_lshlrev_b32 v9, 10, {vr(V_LANE)}
    s_lshl_b32 s76, s10, 3
    s_add_u32 s76, s76, {ML_OFF}
    s_mov_b64 exec, 1
    buffer_store_dwordx2 v[4:5], v6, s[72:75], s76 offen sc1
    s_lshl_b32 s76, s2, 2
    s_add_u32 s76, s76, {HINT_OFF}
    s_mov_b64 exec, {(1<<NREP)-1}
    buffer_store_dword v6, v9, s[72:75], s76 offen sc1
    s_mov_b64 exec, -1
L_noclr:
    PROF_CLR
    s_sub_u32 s76, s7, s11
    s_add_u32 s76, s76, 7
    s_lshr_b32 s76, s76, 3
    s_barrier
    s_cmp_eq_u32 s76, 6
    s_cbranch_scc1 L6_start
    s_cmp_eq_u32 s76, 5
    s_cbranch_scc1 L5_start
    """)
    for nt in (4, 5, 6):
        a.label(f"L{nt}_start")
        body(a, nt)
    a.label("L_tail")
    def buildB(dst, src, hi):
        sel = V_SELHI if hi else V_SELLO
        for c in range(4):
            a(f"v_perm_b32 {vr(dst+c)}, {vr(src)}, {vr(src)}, {vr(sel+c)}")
    a(f"""
    v_lshlrev_b32 {vr(V_T0)}, 5, {vr(V_G)}
    v_add_u32 {vr(V_T0)}, {vr(V_T0)}, {vr(V_N)}
    v_lshlrev_b32 {vr(V_T0)}, 2, {vr(V_T0)}
    s_lshl_b32 s76, s11, 9
    v_add_u32 {vr(V_T0)}, s76, {vr(V_T0)}
    s_nop 4
    s_mov_b64 exec, s[80:81]
    """)
    for r in range(4):
        a(f"ds_write_b32 {vr(V_T0)}, {vr(V_ACC+r)} offset:{OPART+r*32}")
    a(f"""
    s_mov_b64 exec, -1
    s_cmp_ge_u32 s2, {NRED}
    s_cbranch_scc1 L_nopre
    v_lshlrev_b32 v9, 2, {vr(V_LANE)}
    global_load_dword {vr(V_CNT)}, v9, s[38:39] sc1
    """)
    a.label("L_nopre")
    a("s_waitcnt lgkmcnt(0)")
    a("s_barrier")
    for t in range(4):
        a(f"ds_read_b32 {vr(V_T0+4+t)}, {vr(V_OA+t)} offset:{OPART}")
    a("s_waitcnt lgkmcnt(0)")
    for dpp in ["quad_perm:[1,0,3,2]", "quad_perm:[2,3,0,1]", "row_half_mirror"]:
        for t in range(4):
            a(f"v_add_f32_dpp {vr(V_T0+4+t)}, {vr(V_T0+4+t)}, {vr(V_T0+4+t)} {dpp} row_mask:0xf bank_mask:0xf")
    a(f"""
    v_cvt_pk_bf16_f32 {vr(V_T0+4)}, {vr(V_T0+4)}, {vr(V_T0+5)}
    v_cvt_pk_bf16_f32 {vr(V_T0+6)}, {vr(V_T0+6)}, {vr(V_T0+7)}
    """)
    VB = 20
    VY = 36
    for t in range(4):
        buildB(VB + 4 * t, V_T0 + 4 + (t // 2) * 2, t % 2)
    for t in range(4):
        for cb in range(5):
            c = "0" if t == 0 else vr(VY + 4 * cb, 4)
            a(f"v_mfma_f32_16x16x32_bf16 {vr(VY+4*cb,4)}, {vr(R1+4*(t*5+cb),4)}, {vr(VB+4*t,4)}, {c}")
    a(f"""
    v_lshlrev_b32 {vr(V_T0)}, 3, {vr(V_G)}
    v_add_u32 {vr(V_T0)}, {vr(V_T0)}, {vr(V_N)}
    v_lshlrev_b32 {vr(V_T0)}, 4, {vr(V_T0)}
    s_mul_i32 s76, s11, 2560
    v_add_u32 {vr(V_T0)}, s76, {vr(V_T0)}
    s_nop 4
    s_mov_b64 exec, s[80:81]
    """)
    for cb in range(5):
        a(f"ds_write_b128 {vr(V_T0)}, {vr(VY+4*cb,4)} offset:{YPART+cb*512}")
    a(f"""
    s_mov_b64 exec, -1
    s_waitcnt lgkmcnt(0)
    s_barrier
    """)
    a.stamp(7)
    a(f"""
    s_cmp_gt_u32 s11, 2
    s_cbranch_scc1 L_after_store
    v_cmp_gt_u32 vcc, 160, v0
    s_and_saveexec_b64 s[86:87], vcc
    s_cbranch_execz L_tail_y_done
    v_lshlrev_b32 v4, 4, v0
    v_lshrrev_b32 v5, 2, v0
    v_and_b32 v6, 3, v0
    v_lshlrev_b32 v6, 4, v6
    v_lshl_add_u32 v5, v5, 14, v6
    """)
    for w in range(8):
        a(f"ds_read_b128 {vr(20+4*w,4)}, v4 offset:{YPART+w*2560}")
    a("s_waitcnt lgkmcnt(0)")
    for r in range(4):
        a(f"v_add_f32 v{20+r}, v{20+r}, v{24+r}")
        a(f"v_add_f32 v{28+r}, v{28+r}, v{32+r}")
        a(f"v_add_f32 v{36+r}, v{36+r}, v{40+r}")
        a(f"v_add_f32 v{44+r}, v{44+r}, v{48+r}")
    for r in range(4):
        a(f"v_add_f32 v{20+r}, v{20+r}, v{28+r}")
        a(f"v_add_f32 v{36+r}, v{36+r}, v{44+r}")
    for r in range(4):
        a(f"v_add_f32 v{20+r}, v{20+r}, v{36+r}")
    for r in range(4):
        a(f"v_min_u32 v{20+r}, 0xfffffffe, v{20+r}")
    a(f"""
    s_lshl_b32 s76, s10, 6
    buffer_store_dwordx4 v[20:23], v5, s[72:75], s76 offen sc1
    """)
    a.label("L_tail_y_done")
    a("s_mov_b64 exec, s[86:87]")
    a.label("L_after_store")
    a.stamp(8)
    a(f"""
    s_barrier
    s_cmp_lg_u32 s11, 3
    s_cbranch_scc1 L_nohint
    v_lshlrev_b32 v4, 10, {vr(V_LANE)}
    v_mov_b32 v5, 1
    s_lshl_b32 s76, s2, 2
    s_add_u32 s76, s76, {HINT_OFF}
    s_mov_b64 exec, {(1<<NREP)-1}
    buffer_store_dword v5, v4, s[72:75], s76 offen sc1
    s_mov_b64 exec, -1
    """)
    a.label("L_nohint")
    a(f"""
    s_cmp_ge_u32 s2, {NRED}
    s_cbranch_scc1 L_end
    v_lshlrev_b32 v8, 2, {vr(V_LANE)}
    s_waitcnt vmcnt(1)
    s_cmp_lt_u32 s11, 4
    s_cbranch_scc1 L_chkc
    s_waitcnt vmcnt(0)
    """)
    a.label("L_chkc")
    a(f"""
    v_cmp_ne_u32 vcc, 0x01010101, {vr(V_CNT)}
    s_cbranch_vccz L_clr_ok
    global_load_dword {vr(V_CNT)}, v8, s[38:39] sc1
    s_waitcnt vmcnt(0)
    s_branch L_chkc
    """)
    a.label("L_clr_ok")
    a(f"""
    v_lshlrev_b32 v4, 4, v0
    s_lshl_b32 s78, s2, 14
    s_add_u32 s79, s78, 8192
    s_cmp_lg_u32 s11, 7
    s_cbranch_scc1 L_hint_ok
    v_lshlrev_b32 v8, 4, {vr(V_LANE)}
    s_mul_i32 s76, s2, 52
    s_lshr_b32 s76, s76, 8
    s_mul_i32 s76, s76, 5
    s_sub_u32 s76, s2, s76
    s_lshl_b32 s76, s76, 10
    s_add_u32 s76, s76, {HINT_OFF}
    """)
    a.label("L_pollc")
    a(f"""
    buffer_load_dwordx4 v[28:31], v8, s[72:75], s76 offen sc1
    s_waitcnt vmcnt(0)
    v_and_b32 v28, v28, v29
    v_and_b32 v30, v30, v31
    v_and_b32 v28, v28, v30
    v_cmp_ne_u32 vcc, 1, v28
    s_cbranch_vccz L_hint_ok
    s_sleep {POLL_SLEEP}
    s_branch L_pollc
    """)
    a.label("L_hint_ok")
    a("s_barrier")
    a(f"""
    buffer_load_dwordx4 v[56:59], v4, s[72:75], s78 offen sc1
    buffer_load_dwordx4 v[60:63], v4, s[72:75], s79 offen sc1
    s_cmp_gt_u32 s11, 3
    s_cbranch_scc1 L_ml_done
    v_lshlrev_b32 v9, 3, v0
    s_mov_b32 s77, {ML_OFF}
    """)
    a.label("L_mlpoll")
    a(f"""
    buffer_load_dwordx2 {vr(V_ML,2)}, v9, s[72:75], s77 offen sc1
    s_waitcnt vmcnt(0)
    v_max_u32 v7, {vr(V_ML)}, {vr(V_ML+1)}
    v_cmp_eq_u32 vcc, -1, v7
    s_cbranch_vccnz L_mlpoll
    ds_write_b64 v9, {vr(V_ML,2)} offset:{MLBUF}
    s_waitcnt lgkmcnt(0)
    """)
    a.label("L_ml_done")
    def weightB(vslot, dst):
        a(f"""
        v_mul_u32_u24 v6, 171, {vr(vslot)}
        v_lshrrev_b32 v6, 10, v6
        v_mul_u32_u24 v6, 48, v6
        v_lshlrev_b32 v7, 3, {vr(vslot)}
        ds_read_b128 v[28:31], v6 offset:{MLBUF}
        ds_read_b128 v[32:35], v6 offset:{MLBUF+16}
        ds_read_b128 v[36:39], v6 offset:{MLBUF+32}
        ds_read_b32 v24, v7 offset:{MLBUF}
        s_waitcnt lgkmcnt(0)
        v_max3_f32 v7, v28, v30, v32
        v_max3_f32 v7, v7, v34, v36
        v_max_f32 v7, v7, v38
        v_sub_f32 v28, v28, v7
        v_sub_f32 v30, v30, v7
        v_sub_f32 v32, v32, v7
        v_sub_f32 v34, v34, v7
        v_sub_f32 v36, v36, v7
        v_sub_f32 v38, v38, v7
        v_sub_f32 v24, v24, v7
        v_exp_f32 v28, v28
        v_exp_f32 v30, v30
        v_exp_f32 v32, v32
        v_exp_f32 v34, v34
        v_exp_f32 v36, v36
        v_exp_f32 v38, v38
        v_exp_f32 v24, v24
        s_nop 0
        v_mul_f32 v8, v28, v29
        v_fmac_f32 v8, v30, v31
        v_fmac_f32 v8, v32, v33
        v_fmac_f32 v8, v34, v35
        v_fmac_f32 v8, v36, v37
        v_fmac_f32 v8, v38, v39
        v_rcp_f32 v8, v8
        s_nop 0
        v_mul_f32 {vr(dst)}, v24, v8
        """)
    a(f"""
    s_barrier
    v_lshrrev_b32 v10, 2, v0
    v_add_u32 v11, 128, v10
    """)
    weightB(10, V_W1)
    a("""
    s_cmp_gt_u32 s11, 3
    s_cbranch_scc1 L_wA
    """)
    weightB(11, V_W2)
    a("s_branch L_wdone")
    a.label("L_wA")
    a(f"""
    v_and_b32 v6, 0x1fe, v11
    v_lshlrev_b32 v6, 3, v6
    v_lshlrev_b32 v7, 3, v11
    ds_read_b128 v[28:31], v6 offset:{MLBUF}
    ds_read_b32 v24, v7 offset:{MLBUF}
    s_waitcnt lgkmcnt(0)
    v_max_f32 v7, v28, v30
    v_sub_f32 v28, v28, v7
    v_sub_f32 v30, v30, v7
    v_sub_f32 v24, v24, v7
    v_exp_f32 v28, v28
    v_exp_f32 v30, v30
    v_exp_f32 v24, v24
    s_nop 0
    v_mul_f32 v8, v28, v29
    v_fmac_f32 v8, v30, v31
    v_rcp_f32 v8, v8
    s_nop 0
    v_mul_f32 {vr(V_W2)}, v24, v8
    """)
    a.label("L_wdone")
    a("s_waitcnt vmcnt(0)")
    a.label("L_chkY")
    a(f"""
    v_max3_u32 v7, v56, v57, v58
    v_max3_u32 v7, v7, v59, v60
    v_max3_u32 v7, v7, v61, v62
    v_max_u32 v7, v7, v63
    v_cmp_eq_u32 vcc, -1, v7
    s_cbranch_vccz L_gotY
    buffer_load_dwordx4 v[56:59], v4, s[72:75], s78 offen sc1
    buffer_load_dwordx4 v[60:63], v4, s[72:75], s79 offen sc1
    s_waitcnt vmcnt(0)
    s_branch L_chkY
    """)
    a.label("L_gotY")
    a.stamp(9)
    for r in range(4):
        a(f"v_mul_f32 v{20+r}, v{56+r}, {vr(V_W1)}")
    for r in range(4):
        a(f"v_mul_f32 v{24+r}, v{60+r}, {vr(V_W2)}")
    a("""
    s_cmp_gt_u32 s11, 3
    s_cbranch_scc1 L_redA
    """)
    for r in range(4):
        a(f"v_add_f32 v{20+r}, v{20+r}, v{24+r}")
    a("s_nop 1")
    for dpp in ("row_shr:4", "row_shr:8"):
        for r in range(4):
            a(f"v_add_f32_dpp v{20+r}, v{20+r}, v{20+r} {dpp} row_mask:0xf bank_mask:0xf bound_ctrl:0")
    a("s_branch L_redW")
    a.label("L_redA")
    for dpp in ("row_shr:4", "row_shr:8"):
        for r in range(8):
            a(f"v_add_f32_dpp v{20+r}, v{20+r}, v{20+r} {dpp} row_mask:0xf bank_mask:0xf bound_ctrl:0")
    a.label("L_redW")
    a(f"""
    v_and_b32 v5, 3, {vr(V_LANE)}
    v_lshlrev_b32 v5, 9, v5
    v_lshl_add_u32 v5, {vr(V_G)}, 2, v5
    s_lshl_b32 s76, s11, 4
    v_add_u32 v5, s76, v5
    s_mov_b32 s78, 0xf000f000
    s_mov_b32 s79, 0xf000f000
    s_mov_b64 exec, s[78:79]
    """)
    for r in range(4):
        a(f"ds_write_b32 v5, v{20+r} offset:{FINB+r*128}")
    a("""
    s_cmp_lt_u32 s11, 4
    s_cbranch_scc1 L_noA
    """)
    a(f"""
    v_and_b32 v6, 3, {vr(V_LANE)}
    v_lshlrev_b32 v6, 8, v6
    v_lshl_add_u32 v6, {vr(V_G)}, 2, v6
    s_lshl_b32 s76, s11, 4
    s_sub_u32 s76, s76, 64
    v_add_u32 v6, s76, v6
    """)
    for r in range(4):
        a(f"ds_write_b32 v6, v{24+r} offset:{FINA+r*64}")
    a.label("L_noA")
    a(f"""
    s_mov_b64 exec, -1
    s_waitcnt lgkmcnt(0)
    s_barrier
    s_cmp_gt_u32 s11, 1
    s_cbranch_scc1 L_end
    s_mov_b32 s88, s36
    s_mov_b32 s89, s37
    s_mov_b32 s90, 2560
    s_mov_b32 s91, 0x00020000
    s_mov_b64 exec, 0xffff
    s_cmp_eq_u32 s11, 1
    s_cbranch_scc1 L_finA
    v_lshlrev_b32 v4, 7, {vr(V_LANE)}
    """)
    for k in range(8):
        a(f"ds_read_b128 {vr(20+4*k,4)}, v4 offset:{FINB+16*k}")
    a("s_waitcnt lgkmcnt(0)")
    regs = list(range(20, 52))
    while len(regs) > 1:
        nxt = []
        for i in range(0, len(regs), 2):
            a(f"v_add_f32 v{regs[i]}, v{regs[i]}, v{regs[i+1]}")
            nxt.append(regs[i])
        regs = nxt
    a("s_movk_i32 s79, 1280")
    a("s_branch L_store")
    a.label("L_finA")
    a(f"v_lshlrev_b32 v4, 6, {vr(V_LANE)}")
    for k in range(4):
        a(f"ds_read_b128 {vr(20+4*k,4)}, v4 offset:{FINA+16*k}")
    a("s_waitcnt lgkmcnt(0)")
    regs = list(range(20, 36))
    while len(regs) > 1:
        nxt = []
        for i in range(0, len(regs), 2):
            a(f"v_add_f32 v{regs[i]}, v{regs[i]}, v{regs[i+1]}")
            nxt.append(regs[i])
        regs = nxt
    a("s_movk_i32 s79, 0")
    a.label("L_store")
    a(f"""
    v_lshrrev_b32 v5, 2, {vr(V_LANE)}
    s_lshl_b32 s76, s2, 2
    v_add_u32 v5, s76, v5
    v_lshrrev_b32 v6, 5, v5
    v_lshlrev_b32 v6, 7, v6
    v_bfe_u32 v7, v5, 3, 2
    v_lshl_add_u32 v6, v7, 5, v6
    v_and_b32 v7, 7, v5
    v_add_u32 v6, v6, v7
    v_and_b32 v7, 3, {vr(V_LANE)}
    v_lshl_add_u32 v6, v7, 3, v6
    v_lshlrev_b32 v6, 1, v6
    v_cvt_pk_bf16_f32 v20, v20, v20
    buffer_store_short v20, v6, s[88:91], s79 offen
    """)
    a.label("L_end")
    if PROF:
        a.stamp(10)
        a(f"""
        s_mov_b64 exec, 1
        s_lshl_b32 s76, s2, 3
        s_add_u32 s76, s76, s11
        s_lshl_b32 s76, s76, 6
        s_add_u32 s76, s76, {4<<20}
        s_add_u32 s92, s40, s76
        s_addc_u32 s93, s41, 0
        v_mov_b32 v4, 0
        """)
        a("v_mov_b32 v20, s13")
        for i in range(1, 12):
            a(f"v_mov_b32 v{20+i}, s{16+i}")
        for q in range(3):
            a(f"global_store_dwordx4 v4, v[{20+4*q}:{23+4*q}], s[92:93] offset:{16*q}")
    a.label("L_end2")
    a("s_endpgm")

    hdr = open("cdna_kernels/" + NAME + ".s.ref").read().split("\n")
    head = []
    for ln in hdr:
        if ln.startswith("; @launch"):
            head.append(f"; @launch grid=(256,1,1) block=(512,1,1) lds={LDS_BYTES}")
            break
        head.append(ln)
    out = "\n".join(head) + "\n"
    out += f""".amdgcn_target "amdgcn-amd-amdhsa--gfx950"
.text
.globl {NAME}_kernel
.p2align 8
.type {NAME}_kernel,@function
{NAME}_kernel:
"""
    t0 = "s_memrealtime s[92:93]\n    s_waitcnt lgkmcnt(0)\n    s_mov_b32 s13, s92" if PROF else ""
    out += a.text().replace("PROF_T0", t0).replace("PROF_CLR", "\n    ".join(f"s_mov_b32 s{16+i}, 0" for i in range(1,12)) if PROF else "")
    out += f""".section .rodata,"a"
.p2align 6
.amdhsa_kernel {NAME}_kernel
  .amdhsa_next_free_vgpr 256
  .amdhsa_next_free_sgpr 102
  .amdhsa_accum_offset 256
  .amdhsa_group_segment_fixed_size 0
  .amdhsa_kernarg_size 104
  .amdhsa_user_sgpr_count 2
  .amdhsa_user_sgpr_kernarg_segment_ptr 1
  .amdhsa_system_sgpr_workgroup_id_x 1
.end_amdhsa_kernel
"""
    return out

if __name__ == "__main__":
    for o in sys.argv[2:]:
        if o == "prof": PROF = True
        elif o == "wnt": NT_W = " nt"
        elif o == "kvplain": NT_KV = ""
        elif o == "norot": ROT = False
        elif o.startswith("sleep"): POLL_SLEEP = int(o[5:])
    path = sys.argv[1] if len(sys.argv) > 1 else "cdna_kernels/" + NAME + ".s"
    open(path, "w").write(gen())
```

```python
import sys, struct

PROF = False
DBGPROF = False
NT_KV = " nt"
NT_W = ""
ROT = True
POLL_SLEEP = 4
WO_EARLY = 8
NRED = 40
NAME = "concat_heads__sliding_block_cached__gqa_block_cached__decode"

class A:
    def __init__(self):
        self.l = []
    def __call__(self, s):
        for ln in s.strip("\n").split("\n"):
            if ln.strip():
                self.l.append("    " + ln.strip())
    def stamp(self, i):
        if not PROF: return
        self(f"""
        s_memrealtime s[92:93]
        s_waitcnt lgkmcnt(0)
        s_mov_b32 s{16+i}, s92
        """)
    def label(self, s):
        self.l.append(s + ":")
    def text(self):
        return "\n".join(self.l) + "\n"

def vr(b, n=1):
    return f"v{b}" if n == 1 else f"v[{b}:{b+n-1}]"

QPART = 0
QBUF = 4096
MBUF = 4352
LBUF = 4384
OPART = 4608
YPART = 8704
MLBUF = YPART + 8 * 2560
FINB = MLBUF + 2048
FINA = FINB + 2048
LDS_BYTES = 36864
ML_OFF = 256 * 2560
HINT_OFF = ML_OFF + 2048
NREP = 5
WS_BYTES = HINT_OFF + NREP * 1024

V_TID = 0
V_LANE = 1
V_N = 2
V_G = 3
V_T0 = 4
V_SELLO = 12
V_SELHI = 16
V_X = 20
V_SC = 20
V_B0 = 44
V_B1 = 48
V_ACC = 52
V_QF = 44
V_OFFA = 60
V_OFFB = 61
V_OFFC = 62
V_OFFD = 63
V_L = 64
V_MC = 65
V_DUMMY = 66
V_CNT = 67
V_OA = 68
V_ML = 72
V_W1 = 74
V_W2 = 75
V_DL = [48, 52, 56, 76]
R1 = 80
R2 = 160

C_SCALE = 0.08838834764831845 * 1.4426950408889634
def f32bits(x):
    return struct.unpack("<I", struct.pack("<f", x))[0]

def body(a, nt):
    L = f"L{nt}"
    trk = []
    def issue(lbl, txt):
        a(txt); trk.append(lbl)
    def wait(lbl, extra=""):
        n = len(trk) - 1 - trk.index(lbl)
        a(f"s_waitcnt vmcnt({n}){extra}")
    a(f"""
    v_lshrrev_b32 {vr(V_OFFB)}, 2, {vr(V_N)}
    v_lshlrev_b32 {vr(V_OFFB)}, 8, {vr(V_OFFB)}
    v_lshl_add_u32 {vr(V_OFFB)}, {vr(V_G)}, 6, {vr(V_OFFB)}
    v_and_b32 {vr(V_OFFC)}, 3, {vr(V_N)}
    v_lshl_add_u32 {vr(V_OFFB)}, {vr(V_OFFC)}, 4, {vr(V_OFFB)}
    s_lshl_b32 s77, s11, 12
    s_lshl_b32 s76, s14, 13
    """)
    kl = [(u, j) for u in range(nt) for j in range(4)]
    ki = 0
    for t in range(20):
        issue(("wq", t), f"buffer_load_dwordx4 {vr(R1+4*t,4)}, {vr(V_OFFA)}, s[52:55], s76 offen{NT_W}")
        if t < 19:
            a("s_add_u32 s76, s76, 8192\ns_cmp_eq_u32 s76, 163840\ns_cselect_b32 s76, 0, s76")
        tgt = (len(kl) * (t + 1)) // 20
        while ki < tgt:
            u, j = kl[ki]
            issue(("K", u, j), f"buffer_load_dwordx4 {vr(R2+16*u+4*j,4)}, {vr(V_OFFB)}, s[56:59], s77 offen offset:{j*1024}{NT_KV}")
            if j == 3 and u < nt - 1:
                a("s_add_u32 s77, s77, 32768")
            ki += 1
    nK = 4 * nt
    nC = 0
    a(f"""
    v_lshlrev_b32 {vr(V_OFFC)}, 4, {vr(V_LANE)}
    s_mul_i32 s76, s11, {4*1280}
    v_mul_u32_u24 {vr(V_OFFD)}, 1280, {vr(V_G)}
    v_lshl_add_u32 {vr(V_OFFD)}, {vr(V_N)}, 4, {vr(V_OFFD)}
    v_add_u32 {vr(V_OFFD)}, s76, {vr(V_OFFD)}
    """)
    a.stamp(1)
    a(f"""
    v_and_b32 {vr(V_T0+8)}, 1, {vr(V_N)}
    v_cmp_eq_u32 vcc, 1, {vr(V_T0+8)}
    v_mov_b32 {vr(V_B0+1)}, 0x0c0c0100
    v_mov_b32 {vr(V_B0+2)}, 0x01000c0c
    v_mov_b32 {vr(V_B0+3)}, 0x0c0c0302
    v_mov_b32 {vr(V_B0+4)}, 0x03020c0c
    v_cndmask_b32 {vr(V_B0+1)}, {vr(V_B0+1)}, {vr(V_B0+2)}, vcc
    v_cndmask_b32 {vr(V_B0+3)}, {vr(V_B0+3)}, {vr(V_B0+4)}, vcc
    v_lshrrev_b32 {vr(V_B0)}, 1, {vr(V_N)}
    v_mov_b32 {vr(V_B0+2)}, 0x0c0c0c0c
    """)
    for c in range(4):
        a(f"""
        v_cmp_eq_u32 vcc, {c}, {vr(V_B0)}
        s_nop 1
        v_cndmask_b32 {vr(V_SELLO+c)}, {vr(V_B0+2)}, {vr(V_B0+1)}, vcc
        v_cndmask_b32 {vr(V_SELHI+c)}, {vr(V_B0+2)}, {vr(V_B0+3)}, vcc
        """)
    a(f"""
    v_and_b32 {vr(V_B0)}, 7, {vr(V_N)}
    v_lshlrev_b32 {vr(V_B0)}, 9, {vr(V_B0)}
    v_lshl_add_u32 {vr(V_B0)}, {vr(V_G)}, 2, {vr(V_B0)}
    s_lshl_b32 s76, s11, 4
    v_add_u32 {vr(V_B0)}, s76, {vr(V_B0)}
    """)
    for t in range(4):
        a(f"""
        s_add_u32 s76, s15, {t}
        s_and_b32 s76, s76, 3
        s_lshl_b32 s76, s76, 7
        v_add_u32 {vr(V_OA+t)}, s76, {vr(V_B0)}
        """)
    wait(("wq", 0))
    def buildB(dst, src, hi):
        sel = V_SELHI if hi else V_SELLO
        for c in range(4):
            a(f"v_perm_b32 {vr(dst+c)}, {vr(src)}, {vr(src)}, {vr(sel+c)}")
    buildB(V_B0, V_X, 0)
    for t in range(20):
        cur = V_B0 if t % 2 == 0 else V_B1
        nxt = V_B1 if t % 2 == 0 else V_B0
        if t < 19:
            buildB(nxt, V_X + (t + 1) // 2, (t + 1) % 2)
        else:
            a("s_nop 1")
        wait(("wq", t))
        c = "0" if t == 0 else vr(V_ACC, 4)
        a(f"v_mfma_f32_16x16x32_bf16 {vr(V_ACC,4)}, {vr(R1+4*t,4)}, {vr(cur,4)}, {c}")
    a.stamp(2)
    wol = [(t, cb) for t in range(4) for cb in range(5)]
    for t in range(4):
        a(f"""
        s_add_u32 s{94+t}, s15, {t}
        s_and_b32 s{94+t}, s{94+t}, 3
        s_mul_i32 s{94+t}, s{94+t}, 40960
        """)
    def wo_issue(k):
        t, cb = wol[k]
        issue(("wo", k), f"buffer_load_dwordx4 {vr(R1+4*(t*5+cb),4)}, {vr(V_OFFD)}, s[64:67], s{94+t} offen offset:{cb*256}{NT_W}")
    wi = 0
    while wi < WO_EARLY:
        wo_issue(wi); wi += 1
    a(f"""
    v_lshlrev_b32 {vr(V_T0)}, 3, {vr(V_G)}
    v_add_u32 {vr(V_T0)}, {vr(V_T0)}, {vr(V_N)}
    v_lshlrev_b32 {vr(V_T0)}, 4, {vr(V_T0)}
    s_lshl_b32 s76, s11, 9
    v_add_u32 {vr(V_T0)}, s76, {vr(V_T0)}
    s_nop 4
    s_mov_b64 exec, s[80:81]
    ds_write_b128 {vr(V_T0)}, {vr(V_ACC,4)} offset:{QPART}
    s_mov_b64 exec, -1
    s_waitcnt lgkmcnt(0)
    s_barrier
    s_cmp_lg_u32 s11, 2
    s_cbranch_scc1 {L}_noflag
    v_mov_b32 v9, 1
    v_mov_b32 v10, s2
    s_mov_b64 exec, 1
    global_store_byte v10, v9, s[38:39] sc1
    s_mov_b64 exec, -1
    """)
    a.label(f"{L}_noflag")
    a(f"""
    s_cmp_ge_u32 s11, 2
    s_cbranch_scc1 {L}_qskip
    v_lshrrev_b32 {vr(V_T0)}, 5, {vr(V_TID)}
    v_lshlrev_b32 {vr(V_T0)}, 7, {vr(V_T0)}
    v_and_b32 {vr(V_T0+1)}, 7, {vr(V_TID)}
    v_lshl_add_u32 {vr(V_T0)}, {vr(V_T0+1)}, 4, {vr(V_T0)}
    v_bfe_u32 {vr(V_T0+1)}, {vr(V_TID)}, 3, 2
    v_lshl_add_u32 {vr(V_T0)}, {vr(V_T0+1)}, 2, {vr(V_T0)}
    """)
    for w in range(8):
        a(f"ds_read_b32 {vr(V_QF+w)}, {vr(V_T0)} offset:{QPART+w*512}")
    a("s_waitcnt lgkmcnt(0)")
    a(f"""
    v_add_f32 {vr(V_QF)}, {vr(V_QF)}, {vr(V_QF+1)}
    v_add_f32 {vr(V_QF+2)}, {vr(V_QF+2)}, {vr(V_QF+3)}
    v_add_f32 {vr(V_QF+4)}, {vr(V_QF+4)}, {vr(V_QF+5)}
    v_add_f32 {vr(V_QF+6)}, {vr(V_QF+6)}, {vr(V_QF+7)}
    v_add_f32 {vr(V_QF)}, {vr(V_QF)}, {vr(V_QF+2)}
    v_add_f32 {vr(V_QF+4)}, {vr(V_QF+4)}, {vr(V_QF+6)}
    v_add_f32 {vr(V_QF)}, {vr(V_QF)}, {vr(V_QF+4)}
    v_cvt_pk_bf16_f32 {vr(V_QF)}, {vr(V_QF)}, {vr(V_QF)}
    v_lshlrev_b32 {vr(V_T0)}, 1, {vr(V_TID)}
    ds_write_b16 {vr(V_T0)}, {vr(V_QF)} offset:{QBUF}
    s_waitcnt lgkmcnt(0)
    """)
    a.label(f"{L}_qskip")
    a(f"""
    s_barrier
    v_and_b32 {vr(V_T0)}, 3, {vr(V_N)}
    v_lshl_add_u32 {vr(V_T0)}, {vr(V_G)}, 2, {vr(V_T0)}
    v_lshlrev_b32 {vr(V_T0)}, 4, {vr(V_T0)}
    """)
    a(f"ds_read_b128 {vr(V_QF,4)}, {vr(V_T0)} offset:{QBUF}")
    a("s_waitcnt lgkmcnt(0)")
    a.stamp(3)
    def qk_reduce(u):
        a("s_nop 1")
        for j in range(4):
            a(f"v_mov_b32_dpp {vr(V_SC+4*u+j)}, {vr(V_DL[j])} quad_perm:[0,0,0,0] row_mask:0xf bank_mask:0xf")
        for r in range(1, 4):
            for j in range(4):
                a(f"v_add_f32_dpp {vr(V_SC+4*u+j)}, {vr(V_DL[j]+r)}, {vr(V_SC+4*u+j)} quad_perm:[{r},{r},{r},{r}] row_mask:0xf bank_mask:0xf")
    a("s_lshl_b32 s76, s11, 12")
    for u in range(nt):
        wait(("K", u, 3))
        for j in range(4):
            a(f"v_mfma_f32_16x16x32_bf16 {vr(V_DL[j],4)}, {vr(R2+16*u+4*j,4)}, {vr(V_QF,4)}, 0")
        tgt = WO_EARLY + ((20 - WO_EARLY) * (u + 1)) // nt
        for r in range(4):
            issue(("V", u, r), f"buffer_load_dwordx4 {vr(R2+16*u+4*r,4)}, {vr(V_OFFC)}, s[60:63], s76 offen offset:{r*1024}{NT_KV}")
            if wi < tgt:
                wo_issue(wi); wi += 1
        while wi < tgt:
            wo_issue(wi); wi += 1
        qk_reduce(u)
        if u < nt - 1:
            a("s_add_u32 s76, s76, 32768")
    assert wi == 20
    a.stamp(4)
    n = 4 * nt
    a(f"v_max3_f32 {vr(V_T0)}, {vr(V_SC)}, {vr(V_SC+1)}, {vr(V_SC+2)}")
    k = 3
    while k < n:
        if k + 1 < n:
            a(f"v_max3_f32 {vr(V_T0)}, {vr(V_T0)}, {vr(V_SC+k)}, {vr(V_SC+k+1)}")
            k += 2
        else:
            a(f"v_max_f32 {vr(V_T0)}, {vr(V_T0)}, {vr(V_SC+k)}")
            k += 1
    a(f"""
    s_nop 0
    v_readlane_b32 s76, {vr(V_T0)}, 0
    v_readlane_b32 s77, {vr(V_T0)}, 16
    v_readlane_b32 s78, {vr(V_T0)}, 32
    v_readlane_b32 s79, {vr(V_T0)}, 48
    s_nop 1
    v_mov_b32 {vr(V_T0)}, s76
    v_max_f32 {vr(V_T0)}, s77, {vr(V_T0)}
    v_max_f32 {vr(V_T0)}, s78, {vr(V_T0)}
    v_max_f32 {vr(V_T0)}, s79, {vr(V_T0)}
    s_lshl_b32 s76, s11, 2
    v_mov_b32 {vr(V_T0+1)}, s76
    ds_write_b32 {vr(V_T0+1)}, {vr(V_T0)} offset:{MBUF}
    s_waitcnt lgkmcnt(0)
    s_barrier
    v_mov_b32 {vr(V_T0+1)}, 0
    ds_read_b128 {vr(V_QF,4)}, {vr(V_T0+1)} offset:{MBUF}
    ds_read_b128 {vr(V_QF+4,4)}, {vr(V_T0+1)} offset:{MBUF+16}
    s_waitcnt lgkmcnt(0)
    v_max3_f32 {vr(V_T0)}, {vr(V_QF)}, {vr(V_QF+1)}, {vr(V_QF+2)}
    v_max3_f32 {vr(V_T0)}, {vr(V_T0)}, {vr(V_QF+3)}, {vr(V_QF+4)}
    v_max3_f32 {vr(V_T0)}, {vr(V_T0)}, {vr(V_QF+5)}, {vr(V_QF+6)}
    v_max_f32 {vr(V_T0)}, {vr(V_T0)}, {vr(V_QF+7)}
    v_mul_f32 {vr(V_MC)}, s82, {vr(V_T0)}
    """)
    for k in range(n):
        a(f"v_fma_f32 {vr(V_SC+k)}, {vr(V_SC+k)}, s82, -{vr(V_MC)}")
    for k in range(n):
        a(f"v_exp_f32 {vr(V_SC+k)}, {vr(V_SC+k)}")
    a("s_nop 0")
    a(f"v_add_f32 {vr(V_L)}, {vr(V_SC)}, {vr(V_SC+1)}")
    for k in range(2, n):
        a(f"v_add_f32 {vr(V_L)}, {vr(V_L)}, {vr(V_SC+k)}")
    a(f"""
    s_lshl_b32 s76, s11, 4
    v_lshlrev_b32 {vr(V_T0)}, 2, {vr(V_G)}
    v_add_u32 {vr(V_T0)}, s76, {vr(V_T0)}
    s_mov_b64 exec, s[84:85]
    ds_write_b32 {vr(V_T0)}, {vr(V_L)} offset:{LBUF}
    s_mov_b64 exec, -1
    """)
    for k in range(0, n, 2):
        a(f"v_cvt_pk_bf16_f32 {vr(V_SC+k)}, {vr(V_SC+k)}, {vr(V_SC+k+1)}")
    a(f"""
    s_waitcnt lgkmcnt(0)
    s_barrier
    v_lshlrev_b32 v4, 2, {vr(V_LANE)}
    v_and_b32 v4, 127, v4
    ds_read_b32 v5, v4 offset:{LBUF}
    s_waitcnt lgkmcnt(0)
    s_nop 1
    v_add_f32_dpp v5, v5, v5 quad_perm:[1,0,3,2] row_mask:0xf bank_mask:0xf
    s_nop 1
    v_add_f32_dpp v5, v5, v5 quad_perm:[2,3,0,1] row_mask:0xf bank_mask:0xf
    s_nop 1
    v_add_f32_dpp v5, v5, v5 row_half_mirror row_mask:0xf bank_mask:0xf
    s_nop 1
    v_add_f32_dpp v5, v5, v5 row_mirror row_mask:0xf bank_mask:0xf
    s_nop 1
    v_readlane_b32 s76, v5, 16
    s_nop 1
    v_add_f32 v5, s76, v5
    v_min_u32 v4, 0xfffffffe, {vr(V_MC)}
    v_min_u32 v5, 0xfffffffe, v5
    s_lshl_b32 s76, s10, 3
    s_add_u32 s76, s76, {ML_OFF}
    v_mov_b32 v8, 0
    v_mov_b32 v9, 1
    v_mov_b32 v10, s2
    s_cmp_lg_u32 s11, 1
    s_cbranch_scc1 {L}_w0done
    s_mov_b64 exec, 1
    buffer_store_dwordx2 v[4:5], v8, s[72:75], s76 offen sc1
    s_mov_b64 exec, -1
    """)
    a.label(f"{L}_w0done")
    a.stamp(5)
    def psrc(u, r):
        return V_SC + 4 * u + (r // 2) * 2, r % 2
    seq = [(u, r) for u in range(nt) for r in range(4)]
    s0, h0 = psrc(*seq[0])
    buildB(V_B0, s0, h0)
    nV = 4 * nt
    for idx, (u, r) in enumerate(seq):
        cur = V_B0 if idx % 2 == 0 else V_B1
        nxt = V_B1 if idx % 2 == 0 else V_B0
        if idx + 1 < len(seq):
            s1, h1 = psrc(*seq[idx + 1])
            buildB(nxt, s1, h1)
        else:
            a("s_nop 1")
        wait(("V", u, r))
        c = "0" if idx == 0 else vr(V_ACC, 4)
        a(f"v_mfma_f32_16x16x32_bf16 {vr(V_ACC,4)}, {vr(R2+16*u+4*r,4)}, {vr(cur,4)}, {c}")
    a.stamp(6)
    a("s_branch L_tail")

def gen():
    a = A()
    a(f"""
    s_cmp_ge_u32 s2, 256
    s_cbranch_scc1 L_end2
    s_load_dwordx16 s[16:31], s[0:1], 0
    s_load_dwordx8 s[32:39], s[0:1], 64
    s_load_dwordx2 s[40:41], s[0:1], 96
    PROF_T0
    s_and_b32 s3, s2, 7
    s_lshr_b32 s4, s2, 3
    v_lshrrev_b32 v1, 6, v0
    v_and_b32 v0, 0x3ff, v0
    v_readfirstlane_b32 s11, v1
    v_and_b32 {vr(V_LANE)}, 63, v0
    v_and_b32 {vr(V_N)}, 15, {vr(V_LANE)}
    v_lshrrev_b32 {vr(V_G)}, 4, {vr(V_LANE)}
    s_mul_i32 s5, s4, 43
    s_lshr_b32 s5, s5, 8
    s_mul_i32 s6, s5, 6
    s_sub_u32 s6, s4, s6
    s_cmp_lt_u32 s6, 4
    s_cselect_b32 s7, 43, 42
    s_mul_i32 s8, s6, 43
    s_max_u32 s76, s6, 4
    s_sub_u32 s76, s76, 4
    s_sub_u32 s8, s8, s76
    s_lshl_b32 s8, s8, 4
    s_sub_u32 s77, s4, 24
    s_lshr_b32 s78, s77, 1
    s_and_b32 s79, s77, 1
    s_lshl_b32 s80, s79, 9
    s_add_u32 s80, s80, 3072
    s_cmp_lt_u32 s4, 24
    s_cselect_b32 s5, s5, s78
    s_cselect_b32 s6, s6, s79
    s_cselect_b32 s7, s7, 32
    s_cselect_b32 s8, s8, s80
    s_cselect_b32 s12, 1, 0
    s_lshl_b32 s9, s3, 2
    s_add_u32 s9, s9, s5
    s_mul_i32 s10, s9, 6
    s_add_u32 s10, s10, s6
    s_lshl_b32 s76, s9, 1
    s_add_u32 s76, s76, s6
    s_add_u32 s76, s76, 192
    s_cmp_eq_u32 s12, 1
    s_cselect_b32 s10, s10, s76
    s_mul_i32 s14, s6, 10
    s_add_u32 s14, s14, 3
    s_mul_i32 s14, s14, 43
    s_lshr_b32 s14, s14, 8
    s_lshl_b32 s14, s14, 1
    s_mul_i32 s76, s6, 10
    s_and_b32 s15, s6, 3
    s_lshl_b32 s77, s6, 1
    s_cmp_eq_u32 s12, 1
    s_cselect_b32 s14, s14, s76
    s_cselect_b32 s15, s15, s77
    {"" if ROT else "s_mov_b32 s14, 0"}
    {"" if ROT else "s_mov_b32 s15, 0"}
    s_mov_b32 s80, 0x00ff00ff
    s_mov_b32 s81, 0x00ff00ff
    s_mov_b32 s82, 0x{f32bits(C_SCALE):08x}
    s_mov_b32 s84, 0x00010001
    s_mov_b32 s85, 0x00010001
    s_mov_b32 s55, 0x00020000
    s_mov_b32 s59, 0x00020000
    s_mov_b32 s63, 0x00020000
    s_mov_b32 s67, 0x00020000
    s_mov_b32 s71, 0x00020000
    s_mov_b32 s75, 0x00020000
    s_mov_b32 s70, 1280
    s_mov_b32 s66, 163840
    s_mov_b32 s74, {WS_BYTES}
    s_lshl_b32 s58, s7, 12
    s_mov_b32 s62, s58
    s_mul_i32 s76, s11, 160
    v_mul_u32_u24 v10, 40, {vr(V_G)}
    v_add_u32 v10, s76, v10
    s_mul_i32 s76, s11, {80*8192}
    s_mov_b32 s77, {20*8192}
    v_mul_lo_u32 {vr(V_OFFA)}, s77, {vr(V_G)}
    v_lshl_add_u32 {vr(V_OFFA)}, {vr(V_N)}, 4, {vr(V_OFFA)}
    v_add_u32 {vr(V_OFFA)}, s76, {vr(V_OFFA)}
    s_lshl_b32 s78, s9, 8
    s_sub_u32 s54, {640*8192}, s78
    s_waitcnt lgkmcnt(0)
    s_cmp_eq_u32 s12, 1
    s_cselect_b64 s[48:49], s[32:33], s[22:23]
    s_cselect_b64 s[68:69], s[26:27], s[16:17]
    s_cselect_b64 s[44:45], s[28:29], s[18:19]
    s_cselect_b64 s[46:47], s[30:31], s[20:21]
    s_cselect_b64 s[50:51], s[34:35], s[24:25]
    s_add_u32 s52, s48, s78
    s_addc_u32 s53, s49, 0
    s_lshl_b32 s76, s14, 13
    """)
    a("s_lshl_b32 s76, s14, 1")
    for k in range(10):
        a(f"buffer_load_dword {vr(V_X+k)}, v10, s[68:71], s76 offen")
        if k < 9:
            a("s_add_u32 s76, s76, 4\ns_cmp_eq_u32 s76, 40\ns_cselect_b32 s76, 0, s76")
    a(f"""
    s_lshl_b32 s76, s9, 20
    s_lshl_b32 s77, s8, 8
    s_add_u32 s76, s76, s77
    s_add_u32 s56, s44, s76
    s_addc_u32 s57, s45, 0
    s_add_u32 s60, s46, s76
    s_addc_u32 s61, s47, 0
    s_mul_i32 s76, s9, 163840
    s_add_u32 s64, s50, s76
    s_addc_u32 s65, s51, 0
    s_mov_b32 s72, s40
    s_mov_b32 s73, s41
    v_mov_b32 v4, -1
    v_mov_b32 v5, -1
    v_mov_b32 v6, -1
    v_mov_b32 v7, -1
    s_mul_i32 s77, s11, 20
    v_add_u32 v8, s77, {vr(V_LANE)}
    v_lshrrev_b32 v9, 2, v8
    v_and_b32 v8, 3, v8
    v_lshlrev_b32 v8, 4, v8
    v_lshl_add_u32 v8, v9, 14, v8
    s_lshl_b32 s76, s10, 6
    s_mov_b64 exec, 0xfffff
    buffer_store_dwordx4 v[4:7], v8, s[72:75], s76 offen sc1
    s_mov_b64 exec, -1
    s_cmp_lg_u32 s11, 0
    s_cbranch_scc1 L_noclr
    v_mov_b32 v6, 0
    v_lshlrev_b32 v9, 10, {vr(V_LANE)}
    s_lshl_b32 s76, s10, 3
    s_add_u32 s76, s76, {ML_OFF}
    s_mov_b64 exec, 1
    buffer_store_dwordx2 v[4:5], v6, s[72:75], s76 offen sc1
    s_lshl_b32 s76, s2, 2
    s_add_u32 s76, s76, {HINT_OFF}
    s_mov_b64 exec, {(1<<NREP)-1}
    buffer_store_dword v6, v9, s[72:75], s76 offen sc1
    s_mov_b64 exec, -1
L_noclr:
    PROF_CLR
    s_sub_u32 s76, s7, s11
    s_add_u32 s76, s76, 7
    s_lshr_b32 s76, s76, 3
    s_cmp_eq_u32 s76, 6
    s_cbranch_scc1 L6_start
    s_cmp_eq_u32 s76, 5
    s_cbranch_scc1 L5_start
    """)
    for nt in (4, 5, 6):
        a.label(f"L{nt}_start")
        body(a, nt)
    a.label("L_tail")
    def buildB(dst, src, hi):
        sel = V_SELHI if hi else V_SELLO
        for c in range(4):
            a(f"v_perm_b32 {vr(dst+c)}, {vr(src)}, {vr(src)}, {vr(sel+c)}")
    a(f"""
    v_lshlrev_b32 {vr(V_T0)}, 5, {vr(V_G)}
    v_add_u32 {vr(V_T0)}, {vr(V_T0)}, {vr(V_N)}
    v_lshlrev_b32 {vr(V_T0)}, 2, {vr(V_T0)}
    s_lshl_b32 s76, s11, 9
    v_add_u32 {vr(V_T0)}, s76, {vr(V_T0)}
    s_nop 4
    s_mov_b64 exec, s[80:81]
    """)
    for r in range(4):
        a(f"ds_write_b32 {vr(V_T0)}, {vr(V_ACC+r)} offset:{OPART+r*32}")
    a(f"""
    s_mov_b64 exec, -1
    s_waitcnt vmcnt(0)
    s_cmp_ge_u32 s2, {NRED}
    s_cbranch_scc1 L_nopre
    v_lshlrev_b32 v9, 2, {vr(V_LANE)}
    global_load_dword {vr(V_CNT)}, v9, s[38:39] sc1
    """)
    a.label("L_nopre")
    a("s_waitcnt lgkmcnt(0)")
    a("s_barrier")
    for t in range(4):
        a(f"ds_read_b32 {vr(V_T0+4+t)}, {vr(V_OA+t)} offset:{OPART}")
    a("s_waitcnt lgkmcnt(0)")
    for dpp in ["quad_perm:[1,0,3,2]", "quad_perm:[2,3,0,1]", "row_half_mirror"]:
        for t in range(4):
            a(f"v_add_f32_dpp {vr(V_T0+4+t)}, {vr(V_T0+4+t)}, {vr(V_T0+4+t)} {dpp} row_mask:0xf bank_mask:0xf")
    a(f"""
    v_cvt_pk_bf16_f32 {vr(V_T0+4)}, {vr(V_T0+4)}, {vr(V_T0+5)}
    v_cvt_pk_bf16_f32 {vr(V_T0+6)}, {vr(V_T0+6)}, {vr(V_T0+7)}
    """)
    VB = 20
    VY = 36
    for t in range(4):
        buildB(VB + 4 * t, V_T0 + 4 + (t // 2) * 2, t % 2)
    for t in range(4):
        for cb in range(5):
            c = "0" if t == 0 else vr(VY + 4 * cb, 4)
            a(f"v_mfma_f32_16x16x32_bf16 {vr(VY+4*cb,4)}, {vr(R1+4*(t*5+cb),4)}, {vr(VB+4*t,4)}, {c}")
    a(f"""
    v_lshlrev_b32 {vr(V_T0)}, 3, {vr(V_G)}
    v_add_u32 {vr(V_T0)}, {vr(V_T0)}, {vr(V_N)}
    v_lshlrev_b32 {vr(V_T0)}, 4, {vr(V_T0)}
    s_mul_i32 s76, s11, 2560
    v_add_u32 {vr(V_T0)}, s76, {vr(V_T0)}
    s_nop 4
    s_mov_b64 exec, s[80:81]
    """)
    for cb in range(5):
        a(f"ds_write_b128 {vr(V_T0)}, {vr(VY+4*cb,4)} offset:{YPART+cb*512}")
    a(f"""
    s_mov_b64 exec, -1
    s_waitcnt lgkmcnt(0)
    s_barrier
    """)
    a.stamp(7)
    a(f"""
    s_cmp_gt_u32 s11, 2
    s_cbranch_scc1 L_after_store
    v_cmp_gt_u32 vcc, 160, v0
    s_and_saveexec_b64 s[86:87], vcc
    s_cbranch_execz L_tail_y_done
    v_lshlrev_b32 v4, 4, v0
    v_lshrrev_b32 v5, 2, v0
    v_and_b32 v6, 3, v0
    v_lshlrev_b32 v6, 4, v6
    v_lshl_add_u32 v5, v5, 14, v6
    """)
    for w in range(8):
        a(f"ds_read_b128 {vr(20+4*w,4)}, v4 offset:{YPART+w*2560}")
    a("s_waitcnt lgkmcnt(0)")
    for r in range(4):
        a(f"v_add_f32 v{20+r}, v{20+r}, v{24+r}")
        a(f"v_add_f32 v{28+r}, v{28+r}, v{32+r}")
        a(f"v_add_f32 v{36+r}, v{36+r}, v{40+r}")
        a(f"v_add_f32 v{44+r}, v{44+r}, v{48+r}")
    for r in range(4):
        a(f"v_add_f32 v{20+r}, v{20+r}, v{28+r}")
        a(f"v_add_f32 v{36+r}, v{36+r}, v{44+r}")
    for r in range(4):
        a(f"v_add_f32 v{20+r}, v{20+r}, v{36+r}")
    for r in range(4):
        a(f"v_min_u32 v{20+r}, 0xfffffffe, v{20+r}")
    a(f"""
    s_lshl_b32 s76, s10, 6
    buffer_store_dwordx4 v[20:23], v5, s[72:75], s76 offen sc1
    """)
    a.label("L_tail_y_done")
    a("s_mov_b64 exec, s[86:87]")
    a.label("L_after_store")
    a.stamp(8)
    a(f"""
    s_barrier
    s_cmp_lg_u32 s11, 3
    s_cbranch_scc1 L_nohint
    v_lshlrev_b32 v4, 10, {vr(V_LANE)}
    v_mov_b32 v5, 1
    s_lshl_b32 s76, s2, 2
    s_add_u32 s76, s76, {HINT_OFF}
    s_mov_b64 exec, {(1<<NREP)-1}
    buffer_store_dword v5, v4, s[72:75], s76 offen sc1
    s_mov_b64 exec, -1
    """)
    a.label("L_nohint")
    a(f"""
    s_cmp_ge_u32 s2, {NRED}
    s_cbranch_scc1 L_end
    v_lshlrev_b32 v8, 2, {vr(V_LANE)}
    s_waitcnt vmcnt(1)
    s_cmp_lt_u32 s11, 4
    s_cbranch_scc1 L_chkc
    s_waitcnt vmcnt(0)
    """)
    a.label("L_chkc")
    a(f"""
    v_cmp_ne_u32 vcc, 0x01010101, {vr(V_CNT)}
    s_cbranch_vccz L_clr_ok
    global_load_dword {vr(V_CNT)}, v8, s[38:39] sc1
    s_waitcnt vmcnt(0)
    s_branch L_chkc
    """)
    a.label("L_clr_ok")
    a(f"""
    v_lshlrev_b32 v4, 4, v0
    s_lshl_b32 s78, s2, 14
    s_add_u32 s79, s78, 8192
    s_cmp_lg_u32 s11, 7
    s_cbranch_scc1 L_hint_ok
    v_lshlrev_b32 v8, 4, {vr(V_LANE)}
    s_mul_i32 s76, s2, 52
    s_lshr_b32 s76, s76, 8
    s_mul_i32 s76, s76, 5
    s_sub_u32 s76, s2, s76
    s_lshl_b32 s76, s76, 10
    s_add_u32 s76, s76, {HINT_OFF}
    """)
    a.label("L_pollc")
    a(f"""
    buffer_load_dwordx4 v[28:31], v8, s[72:75], s76 offen sc1
    s_waitcnt vmcnt(0)
    v_and_b32 v28, v28, v29
    v_and_b32 v30, v30, v31
    v_and_b32 v28, v28, v30
    v_cmp_ne_u32 vcc, 1, v28
    s_cbranch_vccz L_hint_ok
    s_sleep {POLL_SLEEP}
    s_branch L_pollc
    """)
    a.label("L_hint_ok")
    a("s_barrier")
    a(f"""
    buffer_load_dwordx4 v[56:59], v4, s[72:75], s78 offen sc1
    buffer_load_dwordx4 v[60:63], v4, s[72:75], s79 offen sc1
    s_cmp_gt_u32 s11, 3
    s_cbranch_scc1 L_ml_done
    v_lshlrev_b32 v9, 3, v0
    s_mov_b32 s77, {ML_OFF}
    """)
    a.label("L_mlpoll")
    a(f"""
    buffer_load_dwordx2 {vr(V_ML,2)}, v9, s[72:75], s77 offen sc1
    s_waitcnt vmcnt(0)
    v_max_u32 v7, {vr(V_ML)}, {vr(V_ML+1)}
    v_cmp_eq_u32 vcc, -1, v7
    s_cbranch_vccnz L_mlpoll
    ds_write_b64 v9, {vr(V_ML,2)} offset:{MLBUF}
    s_waitcnt lgkmcnt(0)
    """)
    a.label("L_ml_done")
    def weightB(vslot, dst):
        a(f"""
        v_mul_u32_u24 v6, 171, {vr(vslot)}
        v_lshrrev_b32 v6, 10, v6
        v_mul_u32_u24 v6, 48, v6
        v_lshlrev_b32 v7, 3, {vr(vslot)}
        ds_read_b128 v[28:31], v6 offset:{MLBUF}
        ds_read_b128 v[32:35], v6 offset:{MLBUF+16}
        ds_read_b128 v[36:39], v6 offset:{MLBUF+32}
        ds_read_b32 v24, v7 offset:{MLBUF}
        s_waitcnt lgkmcnt(0)
        v_max3_f32 v7, v28, v30, v32
        v_max3_f32 v7, v7, v34, v36
        v_max_f32 v7, v7, v38
        v_sub_f32 v28, v28, v7
        v_sub_f32 v30, v30, v7
        v_sub_f32 v32, v32, v7
        v_sub_f32 v34, v34, v7
        v_sub_f32 v36, v36, v7
        v_sub_f32 v38, v38, v7
        v_sub_f32 v24, v24, v7
        v_exp_f32 v28, v28
        v_exp_f32 v30, v30
        v_exp_f32 v32, v32
        v_exp_f32 v34, v34
        v_exp_f32 v36, v36
        v_exp_f32 v38, v38
        v_exp_f32 v24, v24
        s_nop 0
        v_mul_f32 v8, v28, v29
        v_fmac_f32 v8, v30, v31
        v_fmac_f32 v8, v32, v33
        v_fmac_f32 v8, v34, v35
        v_fmac_f32 v8, v36, v37
        v_fmac_f32 v8, v38, v39
        v_rcp_f32 v8, v8
        s_nop 0
        v_mul_f32 {vr(dst)}, v24, v8
        """)
    a(f"""
    s_barrier
    v_lshrrev_b32 v10, 2, v0
    v_add_u32 v11, 128, v10
    """)
    weightB(10, V_W1)
    a("""
    s_cmp_gt_u32 s11, 3
    s_cbranch_scc1 L_wA
    """)
    weightB(11, V_W2)
    a("s_branch L_wdone")
    a.label("L_wA")
    a(f"""
    v_and_b32 v6, 0x1fe, v11
    v_lshlrev_b32 v6, 3, v6
    v_lshlrev_b32 v7, 3, v11
    ds_read_b128 v[28:31], v6 offset:{MLBUF}
    ds_read_b32 v24, v7 offset:{MLBUF}
    s_waitcnt lgkmcnt(0)
    v_max_f32 v7, v28, v30
    v_sub_f32 v28, v28, v7
    v_sub_f32 v30, v30, v7
    v_sub_f32 v24, v24, v7
    v_exp_f32 v28, v28
    v_exp_f32 v30, v30
    v_exp_f32 v24, v24
    s_nop 0
    v_mul_f32 v8, v28, v29
    v_fmac_f32 v8, v30, v31
    v_rcp_f32 v8, v8
    s_nop 0
    v_mul_f32 {vr(V_W2)}, v24, v8
    """)
    a.label("L_wdone")
    a("s_waitcnt vmcnt(0)")
    a.label("L_chkY")
    a(f"""
    v_max3_u32 v7, v56, v57, v58
    v_max3_u32 v7, v7, v59, v60
    v_max3_u32 v7, v7, v61, v62
    v_max_u32 v7, v7, v63
    v_cmp_eq_u32 vcc, -1, v7
    s_cbranch_vccz L_gotY
    buffer_load_dwordx4 v[56:59], v4, s[72:75], s78 offen sc1
    buffer_load_dwordx4 v[60:63], v4, s[72:75], s79 offen sc1
    s_waitcnt vmcnt(0)
    s_branch L_chkY
    """)
    a.label("L_gotY")
    a.stamp(9)
    for r in range(4):
        a(f"v_mul_f32 v{20+r}, v{56+r}, {vr(V_W1)}")
    for r in range(4):
        a(f"v_mul_f32 v{24+r}, v{60+r}, {vr(V_W2)}")
    a("""
    s_cmp_gt_u32 s11, 3
    s_cbranch_scc1 L_redA
    """)
    for r in range(4):
        a(f"v_add_f32 v{20+r}, v{20+r}, v{24+r}")
    a("s_nop 1")
    for dpp in ("row_shr:4", "row_shr:8"):
        for r in range(4):
            a(f"v_add_f32_dpp v{20+r}, v{20+r}, v{20+r} {dpp} row_mask:0xf bank_mask:0xf bound_ctrl:0")
    a("s_branch L_redW")
    a.label("L_redA")
    for dpp in ("row_shr:4", "row_shr:8"):
        for r in range(8):
            a(f"v_add_f32_dpp v{20+r}, v{20+r}, v{20+r} {dpp} row_mask:0xf bank_mask:0xf bound_ctrl:0")
    a.label("L_redW")
    a(f"""
    v_and_b32 v5, 3, {vr(V_LANE)}
    v_lshlrev_b32 v5, 9, v5
    v_lshl_add_u32 v5, {vr(V_G)}, 2, v5
    s_lshl_b32 s76, s11, 4
    v_add_u32 v5, s76, v5
    s_mov_b32 s78, 0xf000f000
    s_mov_b32 s79, 0xf000f000
    s_mov_b64 exec, s[78:79]
    """)
    for r in range(4):
        a(f"ds_write_b32 v5, v{20+r} offset:{FINB+r*128}")
    a("""
    s_cmp_lt_u32 s11, 4
    s_cbranch_scc1 L_noA
    """)
    a(f"""
    v_and_b32 v6, 3, {vr(V_LANE)}
    v_lshlrev_b32 v6, 8, v6
    v_lshl_add_u32 v6, {vr(V_G)}, 2, v6
    s_lshl_b32 s76, s11, 4
    s_sub_u32 s76, s76, 64
    v_add_u32 v6, s76, v6
    """)
    for r in range(4):
        a(f"ds_write_b32 v6, v{24+r} offset:{FINA+r*64}")
    a.label("L_noA")
    a(f"""
    s_mov_b64 exec, -1
    s_waitcnt lgkmcnt(0)
    s_barrier
    s_cmp_gt_u32 s11, 1
    s_cbranch_scc1 L_end
    s_mov_b32 s88, s36
    s_mov_b32 s89, s37
    s_mov_b32 s90, 2560
    s_mov_b32 s91, 0x00020000
    s_mov_b64 exec, 0xffff
    s_cmp_eq_u32 s11, 1
    s_cbranch_scc1 L_finA
    v_lshlrev_b32 v4, 7, {vr(V_LANE)}
    """)
    for k in range(8):
        a(f"ds_read_b128 {vr(20+4*k,4)}, v4 offset:{FINB+16*k}")
    a("s_waitcnt lgkmcnt(0)")
    regs = list(range(20, 52))
    while len(regs) > 1:
        nxt = []
        for i in range(0, len(regs), 2):
            a(f"v_add_f32 v{regs[i]}, v{regs[i]}, v{regs[i+1]}")
            nxt.append(regs[i])
        regs = nxt
    a("s_movk_i32 s79, 1280")
    a("s_branch L_store")
    a.label("L_finA")
    a(f"v_lshlrev_b32 v4, 6, {vr(V_LANE)}")
    for k in range(4):
        a(f"ds_read_b128 {vr(20+4*k,4)}, v4 offset:{FINA+16*k}")
    a("s_waitcnt lgkmcnt(0)")
    regs = list(range(20, 36))
    while len(regs) > 1:
        nxt = []
        for i in range(0, len(regs), 2):
            a(f"v_add_f32 v{regs[i]}, v{regs[i]}, v{regs[i+1]}")
            nxt.append(regs[i])
        regs = nxt
    a("s_movk_i32 s79, 0")
    a.label("L_store")
    a(f"""
    v_lshrrev_b32 v5, 2, {vr(V_LANE)}
    s_lshl_b32 s76, s2, 2
    v_add_u32 v5, s76, v5
    v_lshrrev_b32 v6, 5, v5
    v_lshlrev_b32 v6, 7, v6
    v_bfe_u32 v7, v5, 3, 2
    v_lshl_add_u32 v6, v7, 5, v6
    v_and_b32 v7, 7, v5
    v_add_u32 v6, v6, v7
    v_and_b32 v7, 3, {vr(V_LANE)}
    v_lshl_add_u32 v6, v7, 3, v6
    v_lshlrev_b32 v6, 1, v6
    v_cvt_pk_bf16_f32 v20, v20, v20
    buffer_store_short v20, v6, s[88:91], s79 offen
    """)
    a.label("L_end")
    if PROF:
        a.stamp(10)
        a(f"""
        s_mov_b64 exec, 1
        s_lshl_b32 s76, s2, 3
        s_add_u32 s76, s76, s11
        s_lshl_b32 s76, s76, 6
        s_add_u32 s76, s76, {4<<20}
        s_add_u32 s92, s40, s76
        s_addc_u32 s93, s41, 0
        v_mov_b32 v4, 0
        """)
        a("v_mov_b32 v20, s13")
        for i in range(1, 12):
            a(f"v_mov_b32 v{20+i}, s{16+i}")
        for q in range(3):
            a(f"global_store_dwordx4 v4, v[{20+4*q}:{23+4*q}], s[92:93] offset:{16*q}")
    a.label("L_end2")
    a("s_endpgm")

    hdr = open("cdna_kernels/" + NAME + ".s.ref").read().split("\n")
    head = []
    for ln in hdr:
        if ln.startswith("; @launch"):
            head.append(f"; @launch grid=(256,1,1) block=(512,1,1) lds={LDS_BYTES}")
            break
        head.append(ln)
    out = "\n".join(head) + "\n"
    out += f""".amdgcn_target "amdgcn-amd-amdhsa--gfx950"
.text
.globl {NAME}_kernel
.p2align 8
.type {NAME}_kernel,@function
{NAME}_kernel:
"""
    t0 = "s_memrealtime s[92:93]\n    s_waitcnt lgkmcnt(0)\n    s_mov_b32 s13, s92" if PROF else ""
    out += a.text().replace("PROF_T0", t0).replace("PROF_CLR", "\n    ".join(f"s_mov_b32 s{16+i}, 0" for i in range(1,12)) if PROF else "")
    out += f""".section .rodata,"a"
.p2align 6
.amdhsa_kernel {NAME}_kernel
  .amdhsa_next_free_vgpr 256
  .amdhsa_next_free_sgpr 102
  .amdhsa_accum_offset 256
  .amdhsa_group_segment_fixed_size 0
  .amdhsa_kernarg_size 104
  .amdhsa_user_sgpr_count 2
  .amdhsa_user_sgpr_kernarg_segment_ptr 1
  .amdhsa_system_sgpr_workgroup_id_x 1
.end_amdhsa_kernel
"""
    return out

if __name__ == "__main__":
    for o in sys.argv[2:]:
        if o == "prof": PROF = True
        elif o == "wnt": NT_W = " nt"
        elif o == "kvplain": NT_KV = ""
        elif o == "norot": ROT = False
        elif o.startswith("sleep"): POLL_SLEEP = int(o[5:])
        elif o.startswith("woe"): WO_EARLY = int(o[3:])
    path = sys.argv[1] if len(sys.argv) > 1 else "cdna_kernels/" + NAME + ".s"
    open(path, "w").write(gen())
```

```python
import sys, struct

PROF = False
DBG = False
DBGPROF = False
NT_KV = " nt"
NT_W = ""
ROT = True
POLL_SLEEP = 4
NRED = 40
NAME = "concat_heads__sliding_block_cached__gqa_block_cached__decode"

class A:
    def __init__(self):
        self.l = []
    def __call__(self, s):
        for ln in s.strip("\n").split("\n"):
            if ln.strip():
                self.l.append("    " + ln.strip())
    def stamp(self, i):
        if not PROF: return
        self(f"""
        s_memrealtime s[92:93]
        s_waitcnt lgkmcnt(0)
        s_mov_b32 s{16+i}, s92
        """)
    def label(self, s):
        self.l.append(s + ":")
    def text(self):
        return "\n".join(self.l) + "\n"

def vr(b, n=1):
    return f"v{b}" if n == 1 else f"v[{b}:{b+n-1}]"

QPART = 0
QBUF = 4096
MBUF = 4352
LBUF = 4384
OPART = 4608
YPART = 8704
MLBUF = YPART + 8 * 2560
FINB = MLBUF + 2048
FINA = FINB + 2048
LDS_BYTES = 36864
ML_OFF = 256 * 2560
HINT_OFF = ML_OFF + 2048
NREP = 5
WS_BYTES = HINT_OFF + NREP * 1024

V_TID = 0
V_LANE = 1
V_N = 2
V_G = 3
V_T0 = 4
V_SELLO = 12
V_SELHI = 16
V_X = 20
V_SC = 20
V_B0 = 44
V_B1 = 48
V_ACC = 52
V_QF = 44
V_OFFA = 60
V_OFFB = 61
V_OFFC = 62
V_OFFD = 63
V_L = 64
V_MC = 65
V_DUMMY = 66
V_CNT = 67
V_OA = 68
V_ML = 72
V_W1 = 74
V_W2 = 75
V_DL = [48, 52, 56, 76]
R1 = 80
R2 = 160

C_SCALE = 0.08838834764831845 * 1.4426950408889634
def f32bits(x):
    return struct.unpack("<I", struct.pack("<f", x))[0]

def body(a, nt):
    L = f"L{nt}"
    a(f"""
    v_lshrrev_b32 {vr(V_OFFB)}, 2, {vr(V_N)}
    v_lshlrev_b32 {vr(V_OFFB)}, 8, {vr(V_OFFB)}
    v_lshl_add_u32 {vr(V_OFFB)}, {vr(V_G)}, 6, {vr(V_OFFB)}
    v_and_b32 {vr(V_OFFC)}, 3, {vr(V_N)}
    v_lshl_add_u32 {vr(V_OFFB)}, {vr(V_OFFC)}, 4, {vr(V_OFFB)}
    s_lshl_b32 s76, s11, 12
    """)
    for u in range(nt):
        for j in range(4):
            a(f"buffer_load_dwordx4 {vr(R2+16*u+4*j,4)}, {vr(V_OFFB)}, s[56:59], s76 offen offset:{j*1024}{NT_KV}")
        if u < nt - 1:
            a("s_add_u32 s76, s76, 32768")
    nK = 4 * nt
    nC = 0
    a(f"""
    v_lshlrev_b32 {vr(V_OFFC)}, 4, {vr(V_LANE)}
    s_mul_i32 s76, s11, {4*1280}
    v_mul_u32_u24 {vr(V_OFFD)}, 1280, {vr(V_G)}
    v_lshl_add_u32 {vr(V_OFFD)}, {vr(V_N)}, 4, {vr(V_OFFD)}
    v_add_u32 {vr(V_OFFD)}, s76, {vr(V_OFFD)}
    """)
    a.stamp(1)
    a(f"""
    v_and_b32 {vr(V_T0+8)}, 1, {vr(V_N)}
    v_cmp_eq_u32 vcc, 1, {vr(V_T0+8)}
    v_mov_b32 {vr(V_B0+1)}, 0x0c0c0100
    v_mov_b32 {vr(V_B0+2)}, 0x01000c0c
    v_mov_b32 {vr(V_B0+3)}, 0x0c0c0302
    v_mov_b32 {vr(V_B0+4)}, 0x03020c0c
    v_cndmask_b32 {vr(V_B0+1)}, {vr(V_B0+1)}, {vr(V_B0+2)}, vcc
    v_cndmask_b32 {vr(V_B0+3)}, {vr(V_B0+3)}, {vr(V_B0+4)}, vcc
    v_lshrrev_b32 {vr(V_B0)}, 1, {vr(V_N)}
    v_mov_b32 {vr(V_B0+2)}, 0x0c0c0c0c
    """)
    for c in range(4):
        a(f"""
        v_cmp_eq_u32 vcc, {c}, {vr(V_B0)}
        s_nop 1
        v_cndmask_b32 {vr(V_SELLO+c)}, {vr(V_B0+2)}, {vr(V_B0+1)}, vcc
        v_cndmask_b32 {vr(V_SELHI+c)}, {vr(V_B0+2)}, {vr(V_B0+3)}, vcc
        """)
    a(f"""
    v_and_b32 {vr(V_B0)}, 7, {vr(V_N)}
    v_lshlrev_b32 {vr(V_B0)}, 9, {vr(V_B0)}
    v_lshl_add_u32 {vr(V_B0)}, {vr(V_G)}, 2, {vr(V_B0)}
    s_lshl_b32 s76, s11, 4
    v_add_u32 {vr(V_B0)}, s76, {vr(V_B0)}
    """)
    for t in range(4):
        a(f"""
        s_add_u32 s76, s15, {t}
        s_and_b32 s76, s76, 3
        s_lshl_b32 s76, s76, 7
        v_add_u32 {vr(V_OA+t)}, s76, {vr(V_B0)}
        """)
    a(f"s_waitcnt vmcnt({nK+nC})")
    def buildB(dst, src, hi):
        sel = V_SELHI if hi else V_SELLO
        for c in range(4):
            a(f"v_perm_b32 {vr(dst+c)}, {vr(src)}, {vr(src)}, {vr(sel+c)}")
    buildB(V_B0, V_X, 0)
    for t in range(20):
        cur = V_B0 if t % 2 == 0 else V_B1
        nxt = V_B1 if t % 2 == 0 else V_B0
        if t < 19:
            buildB(nxt, V_X + (t + 1) // 2, (t + 1) % 2)
        else:
            a("s_nop 1")
        c = "0" if t == 0 else vr(V_ACC, 4)
        a(f"v_mfma_f32_16x16x32_bf16 {vr(V_ACC,4)}, {vr(R1+4*t,4)}, {vr(cur,4)}, {c}")
    a.stamp(2)
    a(f"""
    v_lshlrev_b32 {vr(V_T0)}, 3, {vr(V_G)}
    v_add_u32 {vr(V_T0)}, {vr(V_T0)}, {vr(V_N)}
    v_lshlrev_b32 {vr(V_T0)}, 4, {vr(V_T0)}
    s_lshl_b32 s76, s11, 9
    v_add_u32 {vr(V_T0)}, s76, {vr(V_T0)}
    s_nop 4
    s_mov_b64 exec, s[80:81]
    ds_write_b128 {vr(V_T0)}, {vr(V_ACC,4)} offset:{QPART}
    s_mov_b64 exec, -1
    s_waitcnt lgkmcnt(0)
    s_barrier
    s_cmp_lg_u32 s11, 2
    s_cbranch_scc1 {L}_noflag
    v_mov_b32 v9, 1
    v_mov_b32 v10, s2
    s_mov_b64 exec, 1
    global_store_byte v10, v9, s[38:39] sc1
    s_mov_b64 exec, -1
    """)
    a.label(f"{L}_noflag")
    a(f"""
    s_cmp_ge_u32 s11, 2
    s_cbranch_scc1 {L}_qskip
    v_lshrrev_b32 {vr(V_T0)}, 5, {vr(V_TID)}
    v_lshlrev_b32 {vr(V_T0)}, 7, {vr(V_T0)}
    v_and_b32 {vr(V_T0+1)}, 7, {vr(V_TID)}
    v_lshl_add_u32 {vr(V_T0)}, {vr(V_T0+1)}, 4, {vr(V_T0)}
    v_bfe_u32 {vr(V_T0+1)}, {vr(V_TID)}, 3, 2
    v_lshl_add_u32 {vr(V_T0)}, {vr(V_T0+1)}, 2, {vr(V_T0)}
    """)
    for w in range(8):
        a(f"ds_read_b32 {vr(V_QF+w)}, {vr(V_T0)} offset:{QPART+w*512}")
    a("s_waitcnt lgkmcnt(0)")
    a(f"""
    v_add_f32 {vr(V_QF)}, {vr(V_QF)}, {vr(V_QF+1)}
    v_add_f32 {vr(V_QF+2)}, {vr(V_QF+2)}, {vr(V_QF+3)}
    v_add_f32 {vr(V_QF+4)}, {vr(V_QF+4)}, {vr(V_QF+5)}
    v_add_f32 {vr(V_QF+6)}, {vr(V_QF+6)}, {vr(V_QF+7)}
    v_add_f32 {vr(V_QF)}, {vr(V_QF)}, {vr(V_QF+2)}
    v_add_f32 {vr(V_QF+4)}, {vr(V_QF+4)}, {vr(V_QF+6)}
    v_add_f32 {vr(V_QF)}, {vr(V_QF)}, {vr(V_QF+4)}
    v_cvt_pk_bf16_f32 {vr(V_QF)}, {vr(V_QF)}, {vr(V_QF)}
    v_lshlrev_b32 {vr(V_T0)}, 1, {vr(V_TID)}
    ds_write_b16 {vr(V_T0)}, {vr(V_QF)} offset:{QBUF}
    s_waitcnt lgkmcnt(0)
    """)
    a.label(f"{L}_qskip")
    a(f"""
    s_barrier
    v_and_b32 {vr(V_T0)}, 3, {vr(V_N)}
    v_lshl_add_u32 {vr(V_T0)}, {vr(V_G)}, 2, {vr(V_T0)}
    v_lshlrev_b32 {vr(V_T0)}, 4, {vr(V_T0)}
    """)
    a(f"ds_read_b128 {vr(V_QF,4)}, {vr(V_T0)} offset:{QBUF}")
    for t in range(4):
        a(f"""
        s_add_u32 s76, s15, {t}
        s_and_b32 s76, s76, 3
        s_mul_i32 s76, s76, 40960
        """)
        for cb in range(5):
            a(f"buffer_load_dwordx4 {vr(R1+4*(t*5+cb),4)}, {vr(V_OFFD)}, s[64:67], s76 offen offset:{cb*256}{NT_W}")
    a("s_waitcnt lgkmcnt(0)")
    a.stamp(3)
    def qk_reduce(u):
        a("s_nop 1")
        for j in range(4):
            a(f"v_mov_b32_dpp {vr(V_SC+4*u+j)}, {vr(V_DL[j])} quad_perm:[0,0,0,0] row_mask:0xf bank_mask:0xf")
        for r in range(1, 4):
            for j in range(4):
                a(f"v_add_f32_dpp {vr(V_SC+4*u+j)}, {vr(V_DL[j]+r)}, {vr(V_SC+4*u+j)} quad_perm:[{r},{r},{r},{r}] row_mask:0xf bank_mask:0xf")
    a("s_lshl_b32 s76, s11, 12")
    for u in range(nt):
        a(f"s_waitcnt vmcnt({4*(nt-1-u)+nC+20+4*u})")
        for j in range(4):
            a(f"v_mfma_f32_16x16x32_bf16 {vr(V_DL[j],4)}, {vr(R2+16*u+4*j,4)}, {vr(V_QF,4)}, 0")
        for r in range(4):
            a(f"buffer_load_dwordx4 {vr(R2+16*u+4*r,4)}, {vr(V_OFFC)}, s[60:63], s76 offen offset:{r*1024}{NT_KV}")
        qk_reduce(u)
        if u < nt - 1:
            a("s_add_u32 s76, s76, 32768")
    a.stamp(4)
    n = 4 * nt
    a(f"v_max3_f32 {vr(V_T0)}, {vr(V_SC)}, {vr(V_SC+1)}, {vr(V_SC+2)}")
    k = 3
    while k < n:
        if k + 1 < n:
            a(f"v_max3_f32 {vr(V_T0)}, {vr(V_T0)}, {vr(V_SC+k)}, {vr(V_SC+k+1)}")
            k += 2
        else:
            a(f"v_max_f32 {vr(V_T0)}, {vr(V_T0)}, {vr(V_SC+k)}")
            k += 1
    a(f"""
    s_nop 0
    v_readlane_b32 s76, {vr(V_T0)}, 0
    v_readlane_b32 s77, {vr(V_T0)}, 16
    v_readlane_b32 s78, {vr(V_T0)}, 32
    v_readlane_b32 s79, {vr(V_T0)}, 48
    s_nop 1
    v_mov_b32 {vr(V_T0)}, s76
    v_max_f32 {vr(V_T0)}, s77, {vr(V_T0)}
    v_max_f32 {vr(V_T0)}, s78, {vr(V_T0)}
    v_max_f32 {vr(V_T0)}, s79, {vr(V_T0)}
    s_lshl_b32 s76, s11, 2
    v_mov_b32 {vr(V_T0+1)}, s76
    ds_write_b32 {vr(V_T0+1)}, {vr(V_T0)} offset:{MBUF}
    s_waitcnt lgkmcnt(0)
    s_barrier
    v_mov_b32 {vr(V_T0+1)}, 0
    ds_read_b128 {vr(V_QF,4)}, {vr(V_T0+1)} offset:{MBUF}
    ds_read_b128 {vr(V_QF+4,4)}, {vr(V_T0+1)} offset:{MBUF+16}
    s_waitcnt lgkmcnt(0)
    v_max3_f32 {vr(V_T0)}, {vr(V_QF)}, {vr(V_QF+1)}, {vr(V_QF+2)}
    v_max3_f32 {vr(V_T0)}, {vr(V_T0)}, {vr(V_QF+3)}, {vr(V_QF+4)}
    v_max3_f32 {vr(V_T0)}, {vr(V_T0)}, {vr(V_QF+5)}, {vr(V_QF+6)}
    v_max_f32 {vr(V_T0)}, {vr(V_T0)}, {vr(V_QF+7)}
    v_mul_f32 {vr(V_MC)}, s82, {vr(V_T0)}
    """)
    for k in range(n):
        a(f"v_fma_f32 {vr(V_SC+k)}, {vr(V_SC+k)}, s82, -{vr(V_MC)}")
    for k in range(n):
        a(f"v_exp_f32 {vr(V_SC+k)}, {vr(V_SC+k)}")
    a("s_nop 0")
    a(f"v_add_f32 {vr(V_L)}, {vr(V_SC)}, {vr(V_SC+1)}")
    for k in range(2, n):
        a(f"v_add_f32 {vr(V_L)}, {vr(V_L)}, {vr(V_SC+k)}")
    a(f"""
    s_lshl_b32 s76, s11, 4
    v_lshlrev_b32 {vr(V_T0)}, 2, {vr(V_G)}
    v_add_u32 {vr(V_T0)}, s76, {vr(V_T0)}
    s_mov_b64 exec, s[84:85]
    ds_write_b32 {vr(V_T0)}, {vr(V_L)} offset:{LBUF}
    s_mov_b64 exec, -1
    """)
    for k in range(0, n, 2):
        a(f"v_cvt_pk_bf16_f32 {vr(V_SC+k)}, {vr(V_SC+k)}, {vr(V_SC+k+1)}")
    a(f"""
    s_waitcnt lgkmcnt(0)
    s_barrier
    v_lshlrev_b32 v4, 2, {vr(V_LANE)}
    v_and_b32 v4, 127, v4
    ds_read_b32 v5, v4 offset:{LBUF}
    s_waitcnt lgkmcnt(0)
    s_nop 1
    v_add_f32_dpp v5, v5, v5 quad_perm:[1,0,3,2] row_mask:0xf bank_mask:0xf
    s_nop 1
    v_add_f32_dpp v5, v5, v5 quad_perm:[2,3,0,1] row_mask:0xf bank_mask:0xf
    s_nop 1
    v_add_f32_dpp v5, v5, v5 row_half_mirror row_mask:0xf bank_mask:0xf
    s_nop 1
    v_add_f32_dpp v5, v5, v5 row_mirror row_mask:0xf bank_mask:0xf
    s_nop 1
    v_readlane_b32 s76, v5, 16
    s_nop 1
    v_add_f32 v5, s76, v5
    v_min_u32 v4, 0xfffffffe, {vr(V_MC)}
    v_min_u32 v5, 0xfffffffe, v5
    s_lshl_b32 s76, s10, 3
    s_add_u32 s76, s76, {ML_OFF}
    v_mov_b32 v8, 0
    v_mov_b32 v9, 1
    v_mov_b32 v10, s2
    s_cmp_lg_u32 s11, 1
    s_cbranch_scc1 {L}_w0done
    s_mov_b64 exec, 1
    buffer_store_dwordx2 v[4:5], v8, s[72:75], s76 offen sc1
    s_mov_b64 exec, -1
    """)
    a.label(f"{L}_w0done")
    a.stamp(5)
    def psrc(u, r):
        return V_SC + 4 * u + (r // 2) * 2, r % 2
    seq = [(u, r) for u in range(nt) for r in range(4)]
    s0, h0 = psrc(*seq[0])
    buildB(V_B0, s0, h0)
    nV = 4 * nt
    for idx, (u, r) in enumerate(seq):
        cur = V_B0 if idx % 2 == 0 else V_B1
        nxt = V_B1 if idx % 2 == 0 else V_B0
        if idx + 1 < len(seq):
            s1, h1 = psrc(*seq[idx + 1])
            buildB(nxt, s1, h1)
        else:
            a("s_nop 1")
        a(f"s_waitcnt vmcnt({nV-1-idx})")
        c = "0" if idx == 0 else vr(V_ACC, 4)
        a(f"v_mfma_f32_16x16x32_bf16 {vr(V_ACC,4)}, {vr(R2+16*u+4*r,4)}, {vr(cur,4)}, {c}")
    a.stamp(6)
    a("s_branch L_tail")

def gen():
    a = A()
    a(f"""
    s_cmp_ge_u32 s2, 256
    s_cbranch_scc1 L_end2
    s_load_dwordx16 s[16:31], s[0:1], 0
    s_load_dwordx8 s[32:39], s[0:1], 64
    s_load_dwordx2 s[40:41], s[0:1], 96
    PROF_T0
    s_and_b32 s3, s2, 7
    s_lshr_b32 s4, s2, 3
    v_lshrrev_b32 v1, 6, v0
    v_and_b32 v0, 0x3ff, v0
    v_readfirstlane_b32 s11, v1
    v_and_b32 {vr(V_LANE)}, 63, v0
    v_and_b32 {vr(V_N)}, 15, {vr(V_LANE)}
    v_lshrrev_b32 {vr(V_G)}, 4, {vr(V_LANE)}
    s_mul_i32 s5, s4, 43
    s_lshr_b32 s5, s5, 8
    s_mul_i32 s6, s5, 6
    s_sub_u32 s6, s4, s6
    s_cmp_lt_u32 s6, 4
    s_cselect_b32 s7, 43, 42
    s_mul_i32 s8, s6, 43
    s_max_u32 s76, s6, 4
    s_sub_u32 s76, s76, 4
    s_sub_u32 s8, s8, s76
    s_lshl_b32 s8, s8, 4
    s_sub_u32 s77, s4, 24
    s_lshr_b32 s78, s77, 1
    s_and_b32 s79, s77, 1
    s_lshl_b32 s80, s79, 9
    s_add_u32 s80, s80, 3072
    s_cmp_lt_u32 s4, 24
    s_cselect_b32 s5, s5, s78
    s_cselect_b32 s6, s6, s79
    s_cselect_b32 s7, s7, 32
    s_cselect_b32 s8, s8, s80
    s_cselect_b32 s12, 1, 0
    s_lshl_b32 s9, s3, 2
    s_add_u32 s9, s9, s5
    s_mul_i32 s10, s9, 6
    s_add_u32 s10, s10, s6
    s_lshl_b32 s76, s9, 1
    s_add_u32 s76, s76, s6
    s_add_u32 s76, s76, 192
    s_cmp_eq_u32 s12, 1
    s_cselect_b32 s10, s10, s76
    s_mul_i32 s14, s6, 10
    s_add_u32 s14, s14, 3
    s_mul_i32 s14, s14, 43
    s_lshr_b32 s14, s14, 8
    s_lshl_b32 s14, s14, 1
    s_mul_i32 s76, s6, 10
    s_and_b32 s15, s6, 3
    s_lshl_b32 s77, s6, 1
    s_cmp_eq_u32 s12, 1
    s_cselect_b32 s14, s14, s76
    s_cselect_b32 s15, s15, s77
    {"" if ROT else "s_mov_b32 s14, 0"}
    {"" if ROT else "s_mov_b32 s15, 0"}
    s_mov_b32 s80, 0x00ff00ff
    s_mov_b32 s81, 0x00ff00ff
    s_mov_b32 s82, 0x{f32bits(C_SCALE):08x}
    s_mov_b32 s84, 0x00010001
    s_mov_b32 s85, 0x00010001
    s_mov_b32 s55, 0x00020000
    s_mov_b32 s59, 0x00020000
    s_mov_b32 s63, 0x00020000
    s_mov_b32 s67, 0x00020000
    s_mov_b32 s71, 0x00020000
    s_mov_b32 s75, 0x00020000
    s_mov_b32 s70, 1280
    s_mov_b32 s66, 163840
    s_mov_b32 s74, {WS_BYTES}
    s_lshl_b32 s58, s7, 12
    s_mov_b32 s62, s58
    s_mul_i32 s76, s11, 160
    v_mul_u32_u24 v10, 40, {vr(V_G)}
    v_add_u32 v10, s76, v10
    s_mul_i32 s76, s11, {80*8192}
    s_mov_b32 s77, {20*8192}
    v_mul_lo_u32 {vr(V_OFFA)}, s77, {vr(V_G)}
    v_lshl_add_u32 {vr(V_OFFA)}, {vr(V_N)}, 4, {vr(V_OFFA)}
    v_add_u32 {vr(V_OFFA)}, s76, {vr(V_OFFA)}
    s_lshl_b32 s78, s9, 8
    s_sub_u32 s54, {640*8192}, s78
    s_waitcnt lgkmcnt(0)
    s_cmp_eq_u32 s12, 1
    s_cselect_b64 s[48:49], s[32:33], s[22:23]
    s_cselect_b64 s[68:69], s[26:27], s[16:17]
    s_cselect_b64 s[44:45], s[28:29], s[18:19]
    s_cselect_b64 s[46:47], s[30:31], s[20:21]
    s_cselect_b64 s[50:51], s[34:35], s[24:25]
    s_add_u32 s52, s48, s78
    s_addc_u32 s53, s49, 0
    s_lshl_b32 s76, s14, 13
    """)
    for t in range(20):
        a(f"buffer_load_dwordx4 {vr(R1+4*t,4)}, {vr(V_OFFA)}, s[52:55], s76 offen{NT_W}")
        if t < 19:
            a("s_add_u32 s76, s76, 8192\ns_cmp_eq_u32 s76, 163840\ns_cselect_b32 s76, 0, s76")
    XL = []
    a("s_lshl_b32 s76, s14, 1")
    for k in range(10):
        a(f"buffer_load_dword {vr(V_X+k)}, v10, s[68:71], s76 offen")
        if k < 9:
            a("s_add_u32 s76, s76, 4\ns_cmp_eq_u32 s76, 40\ns_cselect_b32 s76, 0, s76")
    a(f"""
    s_lshl_b32 s76, s9, 20
    s_lshl_b32 s77, s8, 8
    s_add_u32 s76, s76, s77
    s_add_u32 s56, s44, s76
    s_addc_u32 s57, s45, 0
    s_add_u32 s60, s46, s76
    s_addc_u32 s61, s47, 0
    s_mul_i32 s76, s9, 163840
    s_add_u32 s64, s50, s76
    s_addc_u32 s65, s51, 0
    s_mov_b32 s72, s40
    s_mov_b32 s73, s41
    v_mov_b32 v4, -1
    v_mov_b32 v5, -1
    v_mov_b32 v6, -1
    v_mov_b32 v7, -1
    s_mul_i32 s77, s11, 20
    v_add_u32 v8, s77, {vr(V_LANE)}
    v_lshrrev_b32 v9, 2, v8
    v_and_b32 v8, 3, v8
    v_lshlrev_b32 v8, 4, v8
    v_lshl_add_u32 v8, v9, 14, v8
    s_lshl_b32 s76, s10, 6
    s_mov_b64 exec, 0xfffff
    buffer_store_dwordx4 v[4:7], v8, s[72:75], s76 offen sc1
    s_mov_b64 exec, -1
    s_cmp_lg_u32 s11, 0
    s_cbranch_scc1 L_noclr
    v_mov_b32 v6, 0
    v_lshlrev_b32 v9, 10, {vr(V_LANE)}
    s_lshl_b32 s76, s10, 3
    s_add_u32 s76, s76, {ML_OFF}
    s_mov_b64 exec, 1
    buffer_store_dwordx2 v[4:5], v6, s[72:75], s76 offen sc1
    s_lshl_b32 s76, s2, 2
    s_add_u32 s76, s76, {HINT_OFF}
    s_mov_b64 exec, {(1<<NREP)-1}
    buffer_store_dword v6, v9, s[72:75], s76 offen sc1
    s_mov_b64 exec, -1
L_noclr:
    PROF_CLR
    s_sub_u32 s76, s7, s11
    s_add_u32 s76, s76, 7
    s_lshr_b32 s76, s76, 3
    s_barrier
    s_cmp_eq_u32 s76, 6
    s_cbranch_scc1 L6_start
    s_cmp_eq_u32 s76, 5
    s_cbranch_scc1 L5_start
    """)
    for nt in (4, 5, 6):
        a.label(f"L{nt}_start")
        body(a, nt)
    a.label("L_tail")
    def buildB(dst, src, hi):
        sel = V_SELHI if hi else V_SELLO
        for c in range(4):
            a(f"v_perm_b32 {vr(dst+c)}, {vr(src)}, {vr(src)}, {vr(sel+c)}")
    a(f"""
    v_lshlrev_b32 {vr(V_T0)}, 5, {vr(V_G)}
    v_add_u32 {vr(V_T0)}, {vr(V_T0)}, {vr(V_N)}
    v_lshlrev_b32 {vr(V_T0)}, 2, {vr(V_T0)}
    s_lshl_b32 s76, s11, 9
    v_add_u32 {vr(V_T0)}, s76, {vr(V_T0)}
    s_nop 4
    s_mov_b64 exec, s[80:81]
    """)
    for r in range(4):
        a(f"ds_write_b32 {vr(V_T0)}, {vr(V_ACC+r)} offset:{OPART+r*32}")
    a(f"""
    s_mov_b64 exec, -1
    s_cmp_ge_u32 s2, {NRED}
    s_cbranch_scc1 L_nopre
    v_lshlrev_b32 v9, 2, {vr(V_LANE)}
    global_load_dword {vr(V_CNT)}, v9, s[38:39] sc1
    """)
    if DBG:
        a.label("L_dchk")
        a(f"""
        s_waitcnt vmcnt(0)
        v_cmp_ne_u32 vcc, 0x01010101, {vr(V_CNT)}
        s_cbranch_vccz L_nopre
        global_load_dword {vr(V_CNT)}, v9, s[38:39] sc1
        s_branch L_dchk
        """)
    a.label("L_nopre")
    a("s_waitcnt lgkmcnt(0)")
    a("s_barrier")
    for t in range(4):
        a(f"ds_read_b32 {vr(V_T0+4+t)}, {vr(V_OA+t)} offset:{OPART}")
    a("s_waitcnt lgkmcnt(0)")
    for dpp in ["quad_perm:[1,0,3,2]", "quad_perm:[2,3,0,1]", "row_half_mirror"]:
        for t in range(4):
            a(f"v_add_f32_dpp {vr(V_T0+4+t)}, {vr(V_T0+4+t)}, {vr(V_T0+4+t)} {dpp} row_mask:0xf bank_mask:0xf")
    a(f"""
    v_cvt_pk_bf16_f32 {vr(V_T0+4)}, {vr(V_T0+4)}, {vr(V_T0+5)}
    v_cvt_pk_bf16_f32 {vr(V_T0+6)}, {vr(V_T0+6)}, {vr(V_T0+7)}
    """)
    VB = 20
    VY = 36
    for t in range(4):
        buildB(VB + 4 * t, V_T0 + 4 + (t // 2) * 2, t % 2)
    for t in range(4):
        for cb in range(5):
            c = "0" if t == 0 else vr(VY + 4 * cb, 4)
            a(f"v_mfma_f32_16x16x32_bf16 {vr(VY+4*cb,4)}, {vr(R1+4*(t*5+cb),4)}, {vr(VB+4*t,4)}, {c}")
    a(f"""
    v_lshlrev_b32 {vr(V_T0)}, 3, {vr(V_G)}
    v_add_u32 {vr(V_T0)}, {vr(V_T0)}, {vr(V_N)}
    v_lshlrev_b32 {vr(V_T0)}, 4, {vr(V_T0)}
    s_mul_i32 s76, s11, 2560
    v_add_u32 {vr(V_T0)}, s76, {vr(V_T0)}
    s_nop 4
    s_mov_b64 exec, s[80:81]
    """)
    for cb in range(5):
        a(f"ds_write_b128 {vr(V_T0)}, {vr(VY+4*cb,4)} offset:{YPART+cb*512}")
    a(f"""
    s_mov_b64 exec, -1
    s_waitcnt lgkmcnt(0)
    s_barrier
    """)
    a.stamp(7)
    a(f"""
    s_cmp_gt_u32 s11, 2
    s_cbranch_scc1 L_after_store
    v_cmp_gt_u32 vcc, 160, v0
    s_and_saveexec_b64 s[86:87], vcc
    s_cbranch_execz L_tail_y_done
    v_lshlrev_b32 v4, 4, v0
    v_lshrrev_b32 v5, 2, v0
    v_and_b32 v6, 3, v0
    v_lshlrev_b32 v6, 4, v6
    v_lshl_add_u32 v5, v5, 14, v6
    """)
    for w in range(8):
        a(f"ds_read_b128 {vr(20+4*w,4)}, v4 offset:{YPART+w*2560}")
    a("s_waitcnt lgkmcnt(0)")
    for r in range(4):
        a(f"v_add_f32 v{20+r}, v{20+r}, v{24+r}")
        a(f"v_add_f32 v{28+r}, v{28+r}, v{32+r}")
        a(f"v_add_f32 v{36+r}, v{36+r}, v{40+r}")
        a(f"v_add_f32 v{44+r}, v{44+r}, v{48+r}")
    for r in range(4):
        a(f"v_add_f32 v{20+r}, v{20+r}, v{28+r}")
        a(f"v_add_f32 v{36+r}, v{36+r}, v{44+r}")
    for r in range(4):
        a(f"v_add_f32 v{20+r}, v{20+r}, v{36+r}")
    for r in range(4):
        a(f"v_min_u32 v{20+r}, 0xfffffffe, v{20+r}")
    a(f"""
    s_lshl_b32 s76, s10, 6
    buffer_store_dwordx4 v[20:23], v5, s[72:75], s76 offen sc1
    """)
    a.label("L_tail_y_done")
    a("s_mov_b64 exec, s[86:87]")
    a.label("L_after_store")
    a.stamp(8)
    a(f"""
    s_barrier
    s_cmp_lg_u32 s11, 3
    s_cbranch_scc1 L_nohint
    v_lshlrev_b32 v4, 10, {vr(V_LANE)}
    v_mov_b32 v5, 1
    s_lshl_b32 s76, s2, 2
    s_add_u32 s76, s76, {HINT_OFF}
    s_mov_b64 exec, {(1<<NREP)-1}
    buffer_store_dword v5, v4, s[72:75], s76 offen sc1
    s_mov_b64 exec, -1
    """)
    a.label("L_nohint")
    a(f"""
    s_cmp_ge_u32 s2, {NRED}
    s_cbranch_scc1 L_end
    v_lshlrev_b32 v8, 2, {vr(V_LANE)}
    s_waitcnt vmcnt(1)
    s_cmp_lt_u32 s11, 4
    s_cbranch_scc1 L_chkc
    s_waitcnt vmcnt(0)
    """)
    a.label("L_chkc")
    a(f"""
    v_cmp_ne_u32 vcc, 0x01010101, {vr(V_CNT)}
    s_cbranch_vccz L_clr_ok
    global_load_dword {vr(V_CNT)}, v8, s[38:39] sc1
    s_waitcnt vmcnt(0)
    s_branch L_chkc
    """)
    a.label("L_clr_ok")
    a(f"""
    v_lshlrev_b32 v4, 4, v0
    s_lshl_b32 s78, s2, 14
    s_add_u32 s79, s78, 8192
    s_cmp_lg_u32 s11, 7
    s_cbranch_scc1 L_hint_ok
    v_lshlrev_b32 v8, 4, {vr(V_LANE)}
    s_mul_i32 s76, s2, 52
    s_lshr_b32 s76, s76, 8
    s_mul_i32 s76, s76, 5
    s_sub_u32 s76, s2, s76
    s_lshl_b32 s76, s76, 10
    s_add_u32 s76, s76, {HINT_OFF}
    """)
    a.label("L_pollc")
    a(f"""
    buffer_load_dwordx4 v[28:31], v8, s[72:75], s76 offen sc1
    s_waitcnt vmcnt(0)
    v_and_b32 v28, v28, v29
    v_and_b32 v30, v30, v31
    v_and_b32 v28, v28, v30
    v_cmp_ne_u32 vcc, 1, v28
    s_cbranch_vccz L_hint_ok
    s_sleep {POLL_SLEEP}
    s_branch L_pollc
    """)
    a.label("L_hint_ok")
    a("s_barrier")
    a(f"""
    buffer_load_dwordx4 v[56:59], v4, s[72:75], s78 offen sc1
    buffer_load_dwordx4 v[60:63], v4, s[72:75], s79 offen sc1
    s_cmp_gt_u32 s11, 3
    s_cbranch_scc1 L_ml_done
    v_lshlrev_b32 v9, 3, v0
    s_mov_b32 s77, {ML_OFF}
    """)
    a.label("L_mlpoll")
    a(f"""
    buffer_load_dwordx2 {vr(V_ML,2)}, v9, s[72:75], s77 offen sc1
    s_waitcnt vmcnt(0)
    v_max_u32 v7, {vr(V_ML)}, {vr(V_ML+1)}
    v_cmp_eq_u32 vcc, -1, v7
    s_cbranch_vccnz L_mlpoll
    ds_write_b64 v9, {vr(V_ML,2)} offset:{MLBUF}
    s_waitcnt lgkmcnt(0)
    """)
    a.label("L_ml_done")
    def weightB(vslot, dst):
        a(f"""
        v_mul_u32_u24 v6, 171, {vr(vslot)}
        v_lshrrev_b32 v6, 10, v6
        v_mul_u32_u24 v6, 48, v6
        v_lshlrev_b32 v7, 3, {vr(vslot)}
        ds_read_b128 v[28:31], v6 offset:{MLBUF}
        ds_read_b128 v[32:35], v6 offset:{MLBUF+16}
        ds_read_b128 v[36:39], v6 offset:{MLBUF+32}
        ds_read_b32 v24, v7 offset:{MLBUF}
        s_waitcnt lgkmcnt(0)
        v_max3_f32 v7, v28, v30, v32
        v_max3_f32 v7, v7, v34, v36
        v_max_f32 v7, v7, v38
        v_sub_f32 v28, v28, v7
        v_sub_f32 v30, v30, v7
        v_sub_f32 v32, v32, v7
        v_sub_f32 v34, v34, v7
        v_sub_f32 v36, v36, v7
        v_sub_f32 v38, v38, v7
        v_sub_f32 v24, v24, v7
        v_exp_f32 v28, v28
        v_exp_f32 v30, v30
        v_exp_f32 v32, v32
        v_exp_f32 v34, v34
        v_exp_f32 v36, v36
        v_exp_f32 v38, v38
        v_exp_f32 v24, v24
        s_nop 0
        v_mul_f32 v8, v28, v29
        v_fmac_f32 v8, v30, v31
        v_fmac_f32 v8, v32, v33
        v_fmac_f32 v8, v34, v35
        v_fmac_f32 v8, v36, v37
        v_fmac_f32 v8, v38, v39
        v_rcp_f32 v8, v8
        s_nop 0
        v_mul_f32 {vr(dst)}, v24, v8
        """)
    a(f"""
    s_barrier
    v_lshrrev_b32 v10, 2, v0
    v_add_u32 v11, 128, v10
    """)
    weightB(10, V_W1)
    a("""
    s_cmp_gt_u32 s11, 3
    s_cbranch_scc1 L_wA
    """)
    weightB(11, V_W2)
    a("s_branch L_wdone")
    a.label("L_wA")
    a(f"""
    v_and_b32 v6, 0x1fe, v11
    v_lshlrev_b32 v6, 3, v6
    v_lshlrev_b32 v7, 3, v11
    ds_read_b128 v[28:31], v6 offset:{MLBUF}
    ds_read_b32 v24, v7 offset:{MLBUF}
    s_waitcnt lgkmcnt(0)
    v_max_f32 v7, v28, v30
    v_sub_f32 v28, v28, v7
    v_sub_f32 v30, v30, v7
    v_sub_f32 v24, v24, v7
    v_exp_f32 v28, v28
    v_exp_f32 v30, v30
    v_exp_f32 v24, v24
    s_nop 0
    v_mul_f32 v8, v28, v29
    v_fmac_f32 v8, v30, v31
    v_rcp_f32 v8, v8
    s_nop 0
    v_mul_f32 {vr(V_W2)}, v24, v8
    """)
    a.label("L_wdone")
    a("s_waitcnt vmcnt(0)")
    a.label("L_chkY")
    a(f"""
    v_max3_u32 v7, v56, v57, v58
    v_max3_u32 v7, v7, v59, v60
    v_max3_u32 v7, v7, v61, v62
    v_max_u32 v7, v7, v63
    v_cmp_eq_u32 vcc, -1, v7
    s_cbranch_vccz L_gotY
    buffer_load_dwordx4 v[56:59], v4, s[72:75], s78 offen sc1
    buffer_load_dwordx4 v[60:63], v4, s[72:75], s79 offen sc1
    s_waitcnt vmcnt(0)
    s_branch L_chkY
    """)
    a.label("L_gotY")
    a.stamp(9)
    for r in range(4):
        a(f"v_mul_f32 v{20+r}, v{56+r}, {vr(V_W1)}")
    for r in range(4):
        a(f"v_mul_f32 v{24+r}, v{60+r}, {vr(V_W2)}")
    a("""
    s_cmp_gt_u32 s11, 3
    s_cbranch_scc1 L_redA
    """)
    for r in range(4):
        a(f"v_add_f32 v{20+r}, v{20+r}, v{24+r}")
    a("s_nop 1")
    for dpp in ("row_shr:4", "row_shr:8"):
        for r in range(4):
            a(f"v_add_f32_dpp v{20+r}, v{20+r}, v{20+r} {dpp} row_mask:0xf bank_mask:0xf bound_ctrl:0")
    a("s_branch L_redW")
    a.label("L_redA")
    for dpp in ("row_shr:4", "row_shr:8"):
        for r in range(8):
            a(f"v_add_f32_dpp v{20+r}, v{20+r}, v{20+r} {dpp} row_mask:0xf bank_mask:0xf bound_ctrl:0")
    a.label("L_redW")
    a(f"""
    v_and_b32 v5, 3, {vr(V_LANE)}
    v_lshlrev_b32 v5, 9, v5
    v_lshl_add_u32 v5, {vr(V_G)}, 2, v5
    s_lshl_b32 s76, s11, 4
    v_add_u32 v5, s76, v5
    s_mov_b32 s78, 0xf000f000
    s_mov_b32 s79, 0xf000f000
    s_mov_b64 exec, s[78:79]
    """)
    for r in range(4):
        a(f"ds_write_b32 v5, v{20+r} offset:{FINB+r*128}")
    a("""
    s_cmp_lt_u32 s11, 4
    s_cbranch_scc1 L_noA
    """)
    a(f"""
    v_and_b32 v6, 3, {vr(V_LANE)}
    v_lshlrev_b32 v6, 8, v6
    v_lshl_add_u32 v6, {vr(V_G)}, 2, v6
    s_lshl_b32 s76, s11, 4
    s_sub_u32 s76, s76, 64
    v_add_u32 v6, s76, v6
    """)
    for r in range(4):
        a(f"ds_write_b32 v6, v{24+r} offset:{FINA+r*64}")
    a.label("L_noA")
    a(f"""
    s_mov_b64 exec, -1
    s_waitcnt lgkmcnt(0)
    s_barrier
    s_cmp_gt_u32 s11, 1
    s_cbranch_scc1 L_end
    s_mov_b32 s88, s36
    s_mov_b32 s89, s37
    s_mov_b32 s90, 2560
    s_mov_b32 s91, 0x00020000
    s_mov_b64 exec, 0xffff
    s_cmp_eq_u32 s11, 1
    s_cbranch_scc1 L_finA
    v_lshlrev_b32 v4, 7, {vr(V_LANE)}
    """)
    for k in range(8):
        a(f"ds_read_b128 {vr(20+4*k,4)}, v4 offset:{FINB+16*k}")
    a("s_waitcnt lgkmcnt(0)")
    regs = list(range(20, 52))
    while len(regs) > 1:
        nxt = []
        for i in range(0, len(regs), 2):
            a(f"v_add_f32 v{regs[i]}, v{regs[i]}, v{regs[i+1]}")
            nxt.append(regs[i])
        regs = nxt
    a("s_movk_i32 s79, 1280")
    a("s_branch L_store")
    a.label("L_finA")
    a(f"v_lshlrev_b32 v4, 6, {vr(V_LANE)}")
    for k in range(4):
        a(f"ds_read_b128 {vr(20+4*k,4)}, v4 offset:{FINA+16*k}")
    a("s_waitcnt lgkmcnt(0)")
    regs = list(range(20, 36))
    while len(regs) > 1:
        nxt = []
        for i in range(0, len(regs), 2):
            a(f"v_add_f32 v{regs[i]}, v{regs[i]}, v{regs[i+1]}")
            nxt.append(regs[i])
        regs = nxt
    a("s_movk_i32 s79, 0")
    a.label("L_store")
    a(f"""
    v_lshrrev_b32 v5, 2, {vr(V_LANE)}
    s_lshl_b32 s76, s2, 2
    v_add_u32 v5, s76, v5
    v_lshrrev_b32 v6, 5, v5
    v_lshlrev_b32 v6, 7, v6
    v_bfe_u32 v7, v5, 3, 2
    v_lshl_add_u32 v6, v7, 5, v6
    v_and_b32 v7, 7, v5
    v_add_u32 v6, v6, v7
    v_and_b32 v7, 3, {vr(V_LANE)}
    v_lshl_add_u32 v6, v7, 3, v6
    v_lshlrev_b32 v6, 1, v6
    v_cvt_pk_bf16_f32 v20, v20, v20
    buffer_store_short v20, v6, s[88:91], s79 offen
    """)
    a.label("L_end")
    if PROF:
        a.stamp(10)
        a(f"""
        s_mov_b64 exec, 1
        s_lshl_b32 s76, s2, 3
        s_add_u32 s76, s76, s11
        s_lshl_b32 s76, s76, 6
        s_add_u32 s76, s76, {4<<20}
        s_add_u32 s92, s40, s76
        s_addc_u32 s93, s41, 0
        v_mov_b32 v4, 0
        """)
        a("v_mov_b32 v20, s13")
        for i in range(1, 12):
            a(f"v_mov_b32 v{20+i}, s{16+i}")
        if DBG:
            a(f"""
            s_cmp_lg_u32 s76, {4<<20}
            s_cbranch_scc1 L_end2
            """)
            for q in range(3):
                a(f"global_store_dwordx4 v4, v[{20+4*q}:{23+4*q}], s[38:39] offset:{16*q}")
        else:
          for q in range(3):
            a(f"global_store_dwordx4 v4, v[{20+4*q}:{23+4*q}], s[92:93] offset:{16*q}")
    a.label("L_end2")
    a("s_endpgm")

    hdr = open("cdna_kernels/" + NAME + ".s.ref").read().split("\n")
    head = []
    for ln in hdr:
        if ln.startswith("; @launch"):
            head.append(f"; @launch grid=(256,1,1) block=(512,1,1) lds={LDS_BYTES}")
            break
        head.append(ln)
    out = "\n".join(head) + "\n"
    out += f""".amdgcn_target "amdgcn-amd-amdhsa--gfx950"
.text
.globl {NAME}_kernel
.p2align 8
.type {NAME}_kernel,@function
{NAME}_kernel:
"""
    t0 = "s_memrealtime s[92:93]\n    s_waitcnt lgkmcnt(0)\n    s_mov_b32 s13, s92" if PROF else ""
    out += a.text().replace("PROF_T0", t0).replace("PROF_CLR", "\n    ".join(f"s_mov_b32 s{16+i}, 0" for i in range(1,12)) if PROF else "")
    out += f""".section .rodata,"a"
.p2align 6
.amdhsa_kernel {NAME}_kernel
  .amdhsa_next_free_vgpr 256
  .amdhsa_next_free_sgpr 102
  .amdhsa_accum_offset 256
  .amdhsa_group_segment_fixed_size 0
  .amdhsa_kernarg_size 104
  .amdhsa_user_sgpr_count 2
  .amdhsa_user_sgpr_kernarg_segment_ptr 1
  .amdhsa_system_sgpr_workgroup_id_x 1
.end_amdhsa_kernel
"""
    return out

if __name__ == "__main__":
    for o in sys.argv[2:]:
        if o == "prof": PROF = True
        elif o == "dbg": PROF = True; DBG = True
        elif o == "wnt": NT_W = " nt"
        elif o == "kvplain": NT_KV = ""
        elif o == "norot": ROT = False
        elif o.startswith("sleep"): POLL_SLEEP = int(o[5:])
    path = sys.argv[1] if len(sys.argv) > 1 else "cdna_kernels/" + NAME + ".s"
    open(path, "w").write(gen())
```

```python
import sys, struct

PROF = False
DBGPROF = False
NT_KV = " nt"
NT_W = ""
ROT = True
POLL_SLEEP = 4
NRED = 40
NAME = "concat_heads__sliding_block_cached__gqa_block_cached__decode"

class A:
    def __init__(self):
        self.l = []
    def __call__(self, s):
        for ln in s.strip("\n").split("\n"):
            if ln.strip():
                self.l.append("    " + ln.strip())
    def stamp(self, i):
        if not PROF: return
        self(f"""
        s_memrealtime s[92:93]
        s_waitcnt lgkmcnt(0)
        s_mov_b32 s{16+i}, s92
        """)
    def label(self, s):
        self.l.append(s + ":")
    def text(self):
        return "\n".join(self.l) + "\n"

def vr(b, n=1):
    return f"v{b}" if n == 1 else f"v[{b}:{b+n-1}]"

QPART = 0
QBUF = 4096
MBUF = 4352
LBUF = 4384
OPART = 4608
YPART = 8704
MLBUF = YPART + 8 * 2560
FINB = MLBUF + 2048
FINA = FINB + 2048
LDS_BYTES = 36864
ML_OFF = 256 * 2560
HINT_OFF = ML_OFF + 2048
NREP = 5
WS_BYTES = HINT_OFF + NREP * 1024

V_TID = 0
V_LANE = 1
V_N = 2
V_G = 3
V_T0 = 4
V_SELLO = 12
V_SELHI = 16
V_X = 20
V_SC = 20
V_B0 = 44
V_B1 = 48
V_ACC = 52
V_QF = 44
V_OFFA = 60
V_OFFB = 61
V_OFFC = 62
V_OFFD = 63
V_L = 64
V_MC = 65
V_DUMMY = 66
V_CNT = 67
V_OA = 68
V_ML = 72
V_W1 = 74
V_W2 = 75
V_DL = [48, 52, 56, 76]
R1 = 80
R2 = 160

C_SCALE = 0.08838834764831845 * 1.4426950408889634
def f32bits(x):
    return struct.unpack("<I", struct.pack("<f", x))[0]

def body(a, nt):
    L = f"L{nt}"
    a(f"""
    v_lshrrev_b32 {vr(V_OFFB)}, 2, {vr(V_N)}
    v_lshlrev_b32 {vr(V_OFFB)}, 8, {vr(V_OFFB)}
    v_lshl_add_u32 {vr(V_OFFB)}, {vr(V_G)}, 6, {vr(V_OFFB)}
    v_and_b32 {vr(V_OFFC)}, 3, {vr(V_N)}
    v_lshl_add_u32 {vr(V_OFFB)}, {vr(V_OFFC)}, 4, {vr(V_OFFB)}
    s_lshl_b32 s76, s11, 12
    """)
    for u in range(nt):
        for j in range(4):
            a(f"buffer_load_dwordx4 {vr(R2+16*u+4*j,4)}, {vr(V_OFFB)}, s[56:59], s76 offen offset:{j*1024}{NT_KV}")
        if u < nt - 1:
            a("s_add_u32 s76, s76, 32768")
    nK = 4 * nt
    nC = 0
    a(f"""
    v_lshlrev_b32 {vr(V_OFFC)}, 4, {vr(V_LANE)}
    s_mul_i32 s76, s11, {4*1280}
    v_mul_u32_u24 {vr(V_OFFD)}, 1280, {vr(V_G)}
    v_lshl_add_u32 {vr(V_OFFD)}, {vr(V_N)}, 4, {vr(V_OFFD)}
    v_add_u32 {vr(V_OFFD)}, s76, {vr(V_OFFD)}
    """)
    a.stamp(1)
    a(f"""
    v_and_b32 {vr(V_T0+8)}, 1, {vr(V_N)}
    v_cmp_eq_u32 vcc, 1, {vr(V_T0+8)}
    v_mov_b32 {vr(V_B0+1)}, 0x0c0c0100
    v_mov_b32 {vr(V_B0+2)}, 0x01000c0c
    v_mov_b32 {vr(V_B0+3)}, 0x0c0c0302
    v_mov_b32 {vr(V_B0+4)}, 0x03020c0c
    v_cndmask_b32 {vr(V_B0+1)}, {vr(V_B0+1)}, {vr(V_B0+2)}, vcc
    v_cndmask_b32 {vr(V_B0+3)}, {vr(V_B0+3)}, {vr(V_B0+4)}, vcc
    v_lshrrev_b32 {vr(V_B0)}, 1, {vr(V_N)}
    v_mov_b32 {vr(V_B0+2)}, 0x0c0c0c0c
    """)
    for c in range(4):
        a(f"""
        v_cmp_eq_u32 vcc, {c}, {vr(V_B0)}
        s_nop 1
        v_cndmask_b32 {vr(V_SELLO+c)}, {vr(V_B0+2)}, {vr(V_B0+1)}, vcc
        v_cndmask_b32 {vr(V_SELHI+c)}, {vr(V_B0+2)}, {vr(V_B0+3)}, vcc
        """)
    a(f"""
    v_and_b32 {vr(V_B0)}, 7, {vr(V_N)}
    v_lshlrev_b32 {vr(V_B0)}, 9, {vr(V_B0)}
    v_lshl_add_u32 {vr(V_B0)}, {vr(V_G)}, 2, {vr(V_B0)}
    s_lshl_b32 s76, s11, 4
    v_add_u32 {vr(V_B0)}, s76, {vr(V_B0)}
    """)
    for t in range(4):
        a(f"""
        s_add_u32 s76, s15, {t}
        s_and_b32 s76, s76, 3
        s_lshl_b32 s76, s76, 7
        v_add_u32 {vr(V_OA+t)}, s76, {vr(V_B0)}
        """)
    a(f"s_waitcnt vmcnt({nK+nC})")
    def buildB(dst, src, hi):
        sel = V_SELHI if hi else V_SELLO
        for c in range(4):
            a(f"v_perm_b32 {vr(dst+c)}, {vr(src)}, {vr(src)}, {vr(sel+c)}")
    buildB(V_B0, V_X, 0)
    for t in range(20):
        cur = V_B0 if t % 2 == 0 else V_B1
        nxt = V_B1 if t % 2 == 0 else V_B0
        if t < 19:
            buildB(nxt, V_X + (t + 1) // 2, (t + 1) % 2)
        else:
            a("s_nop 1")
        c = "0" if t == 0 else vr(V_ACC, 4)
        a(f"v_mfma_f32_16x16x32_bf16 {vr(V_ACC,4)}, {vr(R1+4*t,4)}, {vr(cur,4)}, {c}")
    a.stamp(2)
    a(f"""
    v_lshlrev_b32 {vr(V_T0)}, 3, {vr(V_G)}
    v_add_u32 {vr(V_T0)}, {vr(V_T0)}, {vr(V_N)}
    v_lshlrev_b32 {vr(V_T0)}, 4, {vr(V_T0)}
    s_lshl_b32 s76, s11, 9
    v_add_u32 {vr(V_T0)}, s76, {vr(V_T0)}
    s_nop 4
    s_mov_b64 exec, s[80:81]
    ds_write_b128 {vr(V_T0)}, {vr(V_ACC,4)} offset:{QPART}
    s_mov_b64 exec, -1
    s_waitcnt lgkmcnt(0)
    s_barrier
    s_cmp_lg_u32 s11, 2
    s_cbranch_scc1 {L}_noflag
    v_mov_b32 v9, 1
    v_mov_b32 v10, s2
    s_mov_b64 exec, 1
    global_store_byte v10, v9, s[38:39] sc1
    s_mov_b64 exec, -1
    """)
    a.label(f"{L}_noflag")
    a(f"""
    s_cmp_ge_u32 s11, 2
    s_cbranch_scc1 {L}_qskip
    v_lshrrev_b32 {vr(V_T0)}, 5, {vr(V_TID)}
    v_lshlrev_b32 {vr(V_T0)}, 7, {vr(V_T0)}
    v_and_b32 {vr(V_T0+1)}, 7, {vr(V_TID)}
    v_lshl_add_u32 {vr(V_T0)}, {vr(V_T0+1)}, 4, {vr(V_T0)}
    v_bfe_u32 {vr(V_T0+1)}, {vr(V_TID)}, 3, 2
    v_lshl_add_u32 {vr(V_T0)}, {vr(V_T0+1)}, 2, {vr(V_T0)}
    """)
    for w in range(8):
        a(f"ds_read_b32 {vr(V_QF+w)}, {vr(V_T0)} offset:{QPART+w*512}")
    a("s_waitcnt lgkmcnt(0)")
    a(f"""
    v_add_f32 {vr(V_QF)}, {vr(V_QF)}, {vr(V_QF+1)}
    v_add_f32 {vr(V_QF+2)}, {vr(V_QF+2)}, {vr(V_QF+3)}
    v_add_f32 {vr(V_QF+4)}, {vr(V_QF+4)}, {vr(V_QF+5)}
    v_add_f32 {vr(V_QF+6)}, {vr(V_QF+6)}, {vr(V_QF+7)}
    v_add_f32 {vr(V_QF)}, {vr(V_QF)}, {vr(V_QF+2)}
    v_add_f32 {vr(V_QF+4)}, {vr(V_QF+4)}, {vr(V_QF+6)}
    v_add_f32 {vr(V_QF)}, {vr(V_QF)}, {vr(V_QF+4)}
    v_cvt_pk_bf16_f32 {vr(V_QF)}, {vr(V_QF)}, {vr(V_QF)}
    v_lshlrev_b32 {vr(V_T0)}, 1, {vr(V_TID)}
    ds_write_b16 {vr(V_T0)}, {vr(V_QF)} offset:{QBUF}
    s_waitcnt lgkmcnt(0)
    """)
    a.label(f"{L}_qskip")
    a(f"""
    s_barrier
    v_and_b32 {vr(V_T0)}, 3, {vr(V_N)}
    v_lshl_add_u32 {vr(V_T0)}, {vr(V_G)}, 2, {vr(V_T0)}
    v_lshlrev_b32 {vr(V_T0)}, 4, {vr(V_T0)}
    """)
    a(f"ds_read_b128 {vr(V_QF,4)}, {vr(V_T0)} offset:{QBUF}")
    for t in range(4):
        a(f"""
        s_add_u32 s76, s15, {t}
        s_and_b32 s76, s76, 3
        s_mul_i32 s76, s76, 40960
        """)
        for cb in range(5):
            a(f"buffer_load_dwordx4 {vr(R1+4*(t*5+cb),4)}, {vr(V_OFFD)}, s[64:67], s76 offen offset:{cb*256}{NT_W}")
    a("s_waitcnt lgkmcnt(0)")
    a.stamp(3)
    def qk_reduce(u):
        a("s_nop 1")
        for j in range(4):
            a(f"v_mov_b32_dpp {vr(V_SC+4*u+j)}, {vr(V_DL[j])} quad_perm:[0,0,0,0] row_mask:0xf bank_mask:0xf")
        for r in range(1, 4):
            for j in range(4):
                a(f"v_add_f32_dpp {vr(V_SC+4*u+j)}, {vr(V_DL[j]+r)}, {vr(V_SC+4*u+j)} quad_perm:[{r},{r},{r},{r}] row_mask:0xf bank_mask:0xf")
    a("s_lshl_b32 s76, s11, 12")
    for u in range(nt):
        a(f"s_waitcnt vmcnt({4*(nt-1-u)+nC+20+4*u})")
        for j in range(4):
            a(f"v_mfma_f32_16x16x32_bf16 {vr(V_DL[j],4)}, {vr(R2+16*u+4*j,4)}, {vr(V_QF,4)}, 0")
        for r in range(4):
            a(f"buffer_load_dwordx4 {vr(R2+16*u+4*r,4)}, {vr(V_OFFC)}, s[60:63], s76 offen offset:{r*1024}{NT_KV}")
        qk_reduce(u)
        if u < nt - 1:
            a("s_add_u32 s76, s76, 32768")
    a.stamp(4)
    n = 4 * nt
    a(f"v_max3_f32 {vr(V_T0)}, {vr(V_SC)}, {vr(V_SC+1)}, {vr(V_SC+2)}")
    k = 3
    while k < n:
        if k + 1 < n:
            a(f"v_max3_f32 {vr(V_T0)}, {vr(V_T0)}, {vr(V_SC+k)}, {vr(V_SC+k+1)}")
            k += 2
        else:
            a(f"v_max_f32 {vr(V_T0)}, {vr(V_T0)}, {vr(V_SC+k)}")
            k += 1
    a(f"""
    s_nop 0
    v_readlane_b32 s76, {vr(V_T0)}, 0
    v_readlane_b32 s77, {vr(V_T0)}, 16
    v_readlane_b32 s78, {vr(V_T0)}, 32
    v_readlane_b32 s79, {vr(V_T0)}, 48
    s_nop 1
    v_mov_b32 {vr(V_T0)}, s76
    v_max_f32 {vr(V_T0)}, s77, {vr(V_T0)}
    v_max_f32 {vr(V_T0)}, s78, {vr(V_T0)}
    v_max_f32 {vr(V_T0)}, s79, {vr(V_T0)}
    s_lshl_b32 s76, s11, 2
    v_mov_b32 {vr(V_T0+1)}, s76
    ds_write_b32 {vr(V_T0+1)}, {vr(V_T0)} offset:{MBUF}
    s_waitcnt lgkmcnt(0)
    s_barrier
    v_mov_b32 {vr(V_T0+1)}, 0
    ds_read_b128 {vr(V_QF,4)}, {vr(V_T0+1)} offset:{MBUF}
    ds_read_b128 {vr(V_QF+4,4)}, {vr(V_T0+1)} offset:{MBUF+16}
    s_waitcnt lgkmcnt(0)
    v_max3_f32 {vr(V_T0)}, {vr(V_QF)}, {vr(V_QF+1)}, {vr(V_QF+2)}
    v_max3_f32 {vr(V_T0)}, {vr(V_T0)}, {vr(V_QF+3)}, {vr(V_QF+4)}
    v_max3_f32 {vr(V_T0)}, {vr(V_T0)}, {vr(V_QF+5)}, {vr(V_QF+6)}
    v_max_f32 {vr(V_T0)}, {vr(V_T0)}, {vr(V_QF+7)}
    v_mul_f32 {vr(V_MC)}, s82, {vr(V_T0)}
    """)
    for k in range(n):
        a(f"v_fma_f32 {vr(V_SC+k)}, {vr(V_SC+k)}, s82, -{vr(V_MC)}")
    for k in range(n):
        a(f"v_exp_f32 {vr(V_SC+k)}, {vr(V_SC+k)}")
    a("s_nop 0")
    a(f"v_add_f32 {vr(V_L)}, {vr(V_SC)}, {vr(V_SC+1)}")
    for k in range(2, n):
        a(f"v_add_f32 {vr(V_L)}, {vr(V_L)}, {vr(V_SC+k)}")
    a(f"""
    s_lshl_b32 s76, s11, 4
    v_lshlrev_b32 {vr(V_T0)}, 2, {vr(V_G)}
    v_add_u32 {vr(V_T0)}, s76, {vr(V_T0)}
    s_mov_b64 exec, s[84:85]
    ds_write_b32 {vr(V_T0)}, {vr(V_L)} offset:{LBUF}
    s_mov_b64 exec, -1
    """)
    for k in range(0, n, 2):
        a(f"v_cvt_pk_bf16_f32 {vr(V_SC+k)}, {vr(V_SC+k)}, {vr(V_SC+k+1)}")
    a(f"""
    s_waitcnt lgkmcnt(0)
    s_barrier
    v_lshlrev_b32 v4, 2, {vr(V_LANE)}
    v_and_b32 v4, 127, v4
    ds_read_b32 v5, v4 offset:{LBUF}
    s_waitcnt lgkmcnt(0)
    s_nop 1
    v_add_f32_dpp v5, v5, v5 quad_perm:[1,0,3,2] row_mask:0xf bank_mask:0xf
    s_nop 1
    v_add_f32_dpp v5, v5, v5 quad_perm:[2,3,0,1] row_mask:0xf bank_mask:0xf
    s_nop 1
    v_add_f32_dpp v5, v5, v5 row_half_mirror row_mask:0xf bank_mask:0xf
    s_nop 1
    v_add_f32_dpp v5, v5, v5 row_mirror row_mask:0xf bank_mask:0xf
    s_nop 1
    v_readlane_b32 s76, v5, 16
    s_nop 1
    v_add_f32 v5, s76, v5
    v_min_u32 v4, 0xfffffffe, {vr(V_MC)}
    v_min_u32 v5, 0xfffffffe, v5
    s_lshl_b32 s76, s10, 3
    s_add_u32 s76, s76, {ML_OFF}
    v_mov_b32 v8, 0
    v_mov_b32 v9, 1
    v_mov_b32 v10, s2
    s_cmp_lg_u32 s11, 1
    s_cbranch_scc1 {L}_w0done
    s_mov_b64 exec, 1
    buffer_store_dwordx2 v[4:5], v8, s[72:75], s76 offen sc1
    s_mov_b64 exec, -1
    """)
    a.label(f"{L}_w0done")
    a.stamp(5)
    def psrc(u, r):
        return V_SC + 4 * u + (r // 2) * 2, r % 2
    seq = [(u, r) for u in range(nt) for r in range(4)]
    s0, h0 = psrc(*seq[0])
    buildB(V_B0, s0, h0)
    nV = 4 * nt
    for idx, (u, r) in enumerate(seq):
        cur = V_B0 if idx % 2 == 0 else V_B1
        nxt = V_B1 if idx % 2 == 0 else V_B0
        if idx + 1 < len(seq):
            s1, h1 = psrc(*seq[idx + 1])
            buildB(nxt, s1, h1)
        else:
            a("s_nop 1")
        a(f"s_waitcnt vmcnt({nV-1-idx})")
        c = "0" if idx == 0 else vr(V_ACC, 4)
        a(f"v_mfma_f32_16x16x32_bf16 {vr(V_ACC,4)}, {vr(R2+16*u+4*r,4)}, {vr(cur,4)}, {c}")
    a.stamp(6)
    a("s_branch L_tail")

def gen():
    a = A()
    a(f"""
    s_cmp_ge_u32 s2, 256
    s_cbranch_scc1 L_end2
    s_load_dwordx16 s[16:31], s[0:1], 0
    s_load_dwordx8 s[32:39], s[0:1], 64
    s_load_dwordx2 s[40:41], s[0:1], 96
    PROF_T0
    s_and_b32 s3, s2, 7
    s_lshr_b32 s4, s2, 3
    v_lshrrev_b32 v1, 6, v0
    v_and_b32 v0, 0x3ff, v0
    v_readfirstlane_b32 s11, v1
    v_and_b32 {vr(V_LANE)}, 63, v0
    v_and_b32 {vr(V_N)}, 15, {vr(V_LANE)}
    v_lshrrev_b32 {vr(V_G)}, 4, {vr(V_LANE)}
    s_mul_i32 s5, s4, 43
    s_lshr_b32 s5, s5, 8
    s_mul_i32 s6, s5, 6
    s_sub_u32 s6, s4, s6
    s_cmp_lt_u32 s6, 4
    s_cselect_b32 s7, 43, 42
    s_mul_i32 s8, s6, 43
    s_max_u32 s76, s6, 4
    s_sub_u32 s76, s76, 4
    s_sub_u32 s8, s8, s76
    s_lshl_b32 s8, s8, 4
    s_sub_u32 s77, s4, 24
    s_lshr_b32 s78, s77, 1
    s_and_b32 s79, s77, 1
    s_lshl_b32 s80, s79, 9
    s_add_u32 s80, s80, 3072
    s_cmp_lt_u32 s4, 24
    s_cselect_b32 s5, s5, s78
    s_cselect_b32 s6, s6, s79
    s_cselect_b32 s7, s7, 32
    s_cselect_b32 s8, s8, s80
    s_cselect_b32 s12, 1, 0
    s_lshl_b32 s9, s3, 2
    s_add_u32 s9, s9, s5
    s_mul_i32 s10, s9, 6
    s_add_u32 s10, s10, s6
    s_lshl_b32 s76, s9, 1
    s_add_u32 s76, s76, s6
    s_add_u32 s76, s76, 192
    s_cmp_eq_u32 s12, 1
    s_cselect_b32 s10, s10, s76
    s_mul_i32 s14, s6, 10
    s_add_u32 s14, s14, 3
    s_mul_i32 s14, s14, 43
    s_lshr_b32 s14, s14, 8
    s_lshl_b32 s14, s14, 1
    s_mul_i32 s76, s6, 10
    s_and_b32 s15, s6, 3
    s_lshl_b32 s77, s6, 1
    s_cmp_eq_u32 s12, 1
    s_cselect_b32 s14, s14, s76
    s_cselect_b32 s15, s15, s77
    {"" if ROT else "s_mov_b32 s14, 0"}
    {"" if ROT else "s_mov_b32 s15, 0"}
    s_mov_b32 s80, 0x00ff00ff
    s_mov_b32 s81, 0x00ff00ff
    s_mov_b32 s82, 0x{f32bits(C_SCALE):08x}
    s_mov_b32 s84, 0x00010001
    s_mov_b32 s85, 0x00010001
    s_mov_b32 s55, 0x00020000
    s_mov_b32 s59, 0x00020000
    s_mov_b32 s63, 0x00020000
    s_mov_b32 s67, 0x00020000
    s_mov_b32 s71, 0x00020000
    s_mov_b32 s75, 0x00020000
    s_mov_b32 s70, 1280
    s_mov_b32 s66, 163840
    s_mov_b32 s74, {WS_BYTES}
    s_lshl_b32 s58, s7, 12
    s_mov_b32 s62, s58
    s_mul_i32 s76, s11, 160
    v_mul_u32_u24 v10, 40, {vr(V_G)}
    v_add_u32 v10, s76, v10
    s_mul_i32 s76, s11, {80*8192}
    s_mov_b32 s77, {20*8192}
    v_mul_lo_u32 {vr(V_OFFA)}, s77, {vr(V_G)}
    v_lshl_add_u32 {vr(V_OFFA)}, {vr(V_N)}, 4, {vr(V_OFFA)}
    v_add_u32 {vr(V_OFFA)}, s76, {vr(V_OFFA)}
    s_lshl_b32 s78, s9, 8
    s_sub_u32 s54, {640*8192}, s78
    s_waitcnt lgkmcnt(0)
    s_cmp_eq_u32 s12, 1
    s_cselect_b64 s[48:49], s[32:33], s[22:23]
    s_cselect_b64 s[68:69], s[26:27], s[16:17]
    s_cselect_b64 s[44:45], s[28:29], s[18:19]
    s_cselect_b64 s[46:47], s[30:31], s[20:21]
    s_cselect_b64 s[50:51], s[34:35], s[24:25]
    s_add_u32 s52, s48, s78
    s_addc_u32 s53, s49, 0
    s_lshl_b32 s76, s14, 13
    """)
    for t in range(20):
        a(f"buffer_load_dwordx4 {vr(R1+4*t,4)}, {vr(V_OFFA)}, s[52:55], s76 offen{NT_W}")
        if t < 19:
            a("s_add_u32 s76, s76, 8192\ns_cmp_eq_u32 s76, 163840\ns_cselect_b32 s76, 0, s76")
    XL = []
    a("s_lshl_b32 s76, s14, 1")
    for k in range(10):
        a(f"buffer_load_dword {vr(V_X+k)}, v10, s[68:71], s76 offen")
        if k < 9:
            a("s_add_u32 s76, s76, 4\ns_cmp_eq_u32 s76, 40\ns_cselect_b32 s76, 0, s76")
    a(f"""
    s_lshl_b32 s76, s9, 20
    s_lshl_b32 s77, s8, 8
    s_add_u32 s76, s76, s77
    s_add_u32 s56, s44, s76
    s_addc_u32 s57, s45, 0
    s_add_u32 s60, s46, s76
    s_addc_u32 s61, s47, 0
    s_mul_i32 s76, s9, 163840
    s_add_u32 s64, s50, s76
    s_addc_u32 s65, s51, 0
    s_mov_b32 s72, s40
    s_mov_b32 s73, s41
    v_mov_b32 v4, -1
    v_mov_b32 v5, -1
    v_mov_b32 v6, -1
    v_mov_b32 v7, -1
    s_mul_i32 s77, s11, 20
    v_add_u32 v8, s77, {vr(V_LANE)}
    v_lshrrev_b32 v9, 2, v8
    v_and_b32 v8, 3, v8
    v_lshlrev_b32 v8, 4, v8
    v_lshl_add_u32 v8, v9, 14, v8
    s_lshl_b32 s76, s10, 6
    s_mov_b64 exec, 0xfffff
    buffer_store_dwordx4 v[4:7], v8, s[72:75], s76 offen sc1
    s_mov_b64 exec, -1
    s_cmp_lg_u32 s11, 0
    s_cbranch_scc1 L_noclr
    v_mov_b32 v6, 0
    v_lshlrev_b32 v9, 10, {vr(V_LANE)}
    s_lshl_b32 s76, s10, 3
    s_add_u32 s76, s76, {ML_OFF}
    s_mov_b64 exec, 1
    buffer_store_dwordx2 v[4:5], v6, s[72:75], s76 offen sc1
    s_lshl_b32 s76, s2, 2
    s_add_u32 s76, s76, {HINT_OFF}
    s_mov_b64 exec, {(1<<NREP)-1}
    buffer_store_dword v6, v9, s[72:75], s76 offen sc1
    s_mov_b64 exec, -1
L_noclr:
    PROF_CLR
    s_sub_u32 s76, s7, s11
    s_add_u32 s76, s76, 7
    s_lshr_b32 s76, s76, 3
    s_barrier
    s_cmp_eq_u32 s76, 6
    s_cbranch_scc1 L6_start
    s_cmp_eq_u32 s76, 5
    s_cbranch_scc1 L5_start
    """)
    for nt in (4, 5, 6):
        a.label(f"L{nt}_start")
        body(a, nt)
    a.label("L_tail")
    def buildB(dst, src, hi):
        sel = V_SELHI if hi else V_SELLO
        for c in range(4):
            a(f"v_perm_b32 {vr(dst+c)}, {vr(src)}, {vr(src)}, {vr(sel+c)}")
    a(f"""
    v_lshlrev_b32 {vr(V_T0)}, 5, {vr(V_G)}
    v_add_u32 {vr(V_T0)}, {vr(V_T0)}, {vr(V_N)}
    v_lshlrev_b32 {vr(V_T0)}, 2, {vr(V_T0)}
    s_lshl_b32 s76, s11, 9
    v_add_u32 {vr(V_T0)}, s76, {vr(V_T0)}
    s_nop 4
    s_mov_b64 exec, s[80:81]
    """)
    for r in range(4):
        a(f"ds_write_b32 {vr(V_T0)}, {vr(V_ACC+r)} offset:{OPART+r*32}")
    a(f"""
    s_mov_b64 exec, -1
    s_cmp_ge_u32 s2, {NRED}
    s_cbranch_scc1 L_nopre
    v_lshlrev_b32 v9, 2, {vr(V_LANE)}
    global_load_dword {vr(V_CNT)}, v9, s[38:39] sc1
    """)
    a.label("L_nopre")
    a("s_waitcnt lgkmcnt(0)")
    a("s_barrier")
    for t in range(4):
        a(f"ds_read_b32 {vr(V_T0+4+t)}, {vr(V_OA+t)} offset:{OPART}")
    a("s_waitcnt lgkmcnt(0)")
    for dpp in ["quad_perm:[1,0,3,2]", "quad_perm:[2,3,0,1]", "row_half_mirror"]:
        for t in range(4):
            a(f"v_add_f32_dpp {vr(V_T0+4+t)}, {vr(V_T0+4+t)}, {vr(V_T0+4+t)} {dpp} row_mask:0xf bank_mask:0xf")
    a(f"""
    v_cvt_pk_bf16_f32 {vr(V_T0+4)}, {vr(V_T0+4)}, {vr(V_T0+5)}
    v_cvt_pk_bf16_f32 {vr(V_T0+6)}, {vr(V_T0+6)}, {vr(V_T0+7)}
    """)
    VB = 20
    VY = 36
    for t in range(4):
        buildB(VB + 4 * t, V_T0 + 4 + (t // 2) * 2, t % 2)
    for t in range(4):
        for cb in range(5):
            c = "0" if t == 0 else vr(VY + 4 * cb, 4)
            a(f"v_mfma_f32_16x16x32_bf16 {vr(VY+4*cb,4)}, {vr(R1+4*(t*5+cb),4)}, {vr(VB+4*t,4)}, {c}")
    a(f"""
    v_lshlrev_b32 {vr(V_T0)}, 3, {vr(V_G)}
    v_add_u32 {vr(V_T0)}, {vr(V_T0)}, {vr(V_N)}
    v_lshlrev_b32 {vr(V_T0)}, 4, {vr(V_T0)}
    s_mul_i32 s76, s11, 2560
    v_add_u32 {vr(V_T0)}, s76, {vr(V_T0)}
    s_nop 4
    s_mov_b64 exec, s[80:81]
    """)
    for cb in range(5):
        a(f"ds_write_b128 {vr(V_T0)}, {vr(VY+4*cb,4)} offset:{YPART+cb*512}")
    a(f"""
    s_mov_b64 exec, -1
    s_waitcnt lgkmcnt(0)
    s_barrier
    """)
    a.stamp(7)
    a(f"""
    s_cmp_gt_u32 s11, 2
    s_cbranch_scc1 L_after_store
    v_cmp_gt_u32 vcc, 160, v0
    s_and_saveexec_b64 s[86:87], vcc
    s_cbranch_execz L_tail_y_done
    v_lshlrev_b32 v4, 4, v0
    v_lshrrev_b32 v5, 2, v0
    v_and_b32 v6, 3, v0
    v_lshlrev_b32 v6, 4, v6
    v_lshl_add_u32 v5, v5, 14, v6
    """)
    for w in range(8):
        a(f"ds_read_b128 {vr(20+4*w,4)}, v4 offset:{YPART+w*2560}")
    a("s_waitcnt lgkmcnt(0)")
    for r in range(4):
        a(f"v_add_f32 v{20+r}, v{20+r}, v{24+r}")
        a(f"v_add_f32 v{28+r}, v{28+r}, v{32+r}")
        a(f"v_add_f32 v{36+r}, v{36+r}, v{40+r}")
        a(f"v_add_f32 v{44+r}, v{44+r}, v{48+r}")
    for r in range(4):
        a(f"v_add_f32 v{20+r}, v{20+r}, v{28+r}")
        a(f"v_add_f32 v{36+r}, v{36+r}, v{44+r}")
    for r in range(4):
        a(f"v_add_f32 v{20+r}, v{20+r}, v{36+r}")
    for r in range(4):
        a(f"v_min_u32 v{20+r}, 0xfffffffe, v{20+r}")
    a(f"""
    s_lshl_b32 s76, s10, 6
    buffer_store_dwordx4 v[20:23], v5, s[72:75], s76 offen sc1
    """)
    a.label("L_tail_y_done")
    a("s_mov_b64 exec, s[86:87]")
    a.label("L_after_store")
    a.stamp(8)
    a(f"""
    s_barrier
    s_cmp_lg_u32 s11, 3
    s_cbranch_scc1 L_nohint
    v_lshlrev_b32 v4, 10, {vr(V_LANE)}
    v_mov_b32 v5, 1
    s_lshl_b32 s76, s2, 2
    s_add_u32 s76, s76, {HINT_OFF}
    s_mov_b64 exec, {(1<<NREP)-1}
    buffer_store_dword v5, v4, s[72:75], s76 offen sc1
    s_mov_b64 exec, -1
    """)
    a.label("L_nohint")
    a(f"""
    s_cmp_ge_u32 s2, {NRED}
    s_cbranch_scc1 L_end
    v_lshlrev_b32 v8, 2, {vr(V_LANE)}
    s_waitcnt vmcnt(1)
    s_cmp_lt_u32 s11, 4
    s_cbranch_scc1 L_chkc
    s_waitcnt vmcnt(0)
    """)
    a.label("L_chkc")
    a(f"""
    v_cmp_ne_u32 vcc, 0x01010101, {vr(V_CNT)}
    s_cbranch_vccz L_clr_ok
    global_load_dword {vr(V_CNT)}, v8, s[38:39] sc1
    s_waitcnt vmcnt(0)
    s_branch L_chkc
    """)
    a.label("L_clr_ok")
    a(f"""
    v_lshlrev_b32 v4, 4, v0
    s_lshl_b32 s78, s2, 14
    s_add_u32 s79, s78, 8192
    s_cmp_lg_u32 s11, 7
    s_cbranch_scc1 L_hint_ok
    v_lshlrev_b32 v8, 4, {vr(V_LANE)}
    s_mul_i32 s76, s2, 52
    s_lshr_b32 s76, s76, 8
    s_mul_i32 s76, s76, 5
    s_sub_u32 s76, s2, s76
    s_lshl_b32 s76, s76, 10
    s_add_u32 s76, s76, {HINT_OFF}
    """)
    a.label("L_pollc")
    a(f"""
    buffer_load_dwordx4 v[28:31], v8, s[72:75], s76 offen sc1
    s_waitcnt vmcnt(0)
    v_and_b32 v28, v28, v29
    v_and_b32 v30, v30, v31
    v_and_b32 v28, v28, v30
    v_cmp_ne_u32 vcc, 1, v28
    s_cbranch_vccz L_hint_ok
    s_sleep {POLL_SLEEP}
    s_branch L_pollc
    """)
    a.label("L_hint_ok")
    a("s_barrier")
    a(f"""
    buffer_load_dwordx4 v[56:59], v4, s[72:75], s78 offen sc1
    buffer_load_dwordx4 v[60:63], v4, s[72:75], s79 offen sc1
    s_cmp_gt_u32 s11, 3
    s_cbranch_scc1 L_ml_done
    v_lshlrev_b32 v9, 3, v0
    s_mov_b32 s77, {ML_OFF}
    """)
    a.label("L_mlpoll")
    a(f"""
    buffer_load_dwordx2 {vr(V_ML,2)}, v9, s[72:75], s77 offen sc1
    s_waitcnt vmcnt(0)
    v_max_u32 v7, {vr(V_ML)}, {vr(V_ML+1)}
    v_cmp_eq_u32 vcc, -1, v7
    s_cbranch_vccnz L_mlpoll
    ds_write_b64 v9, {vr(V_ML,2)} offset:{MLBUF}
    s_waitcnt lgkmcnt(0)
    """)
    a.label("L_ml_done")
    def weightB(vslot, dst):
        a(f"""
        v_mul_u32_u24 v6, 171, {vr(vslot)}
        v_lshrrev_b32 v6, 10, v6
        v_mul_u32_u24 v6, 48, v6
        v_lshlrev_b32 v7, 3, {vr(vslot)}
        ds_read_b128 v[28:31], v6 offset:{MLBUF}
        ds_read_b128 v[32:35], v6 offset:{MLBUF+16}
        ds_read_b128 v[36:39], v6 offset:{MLBUF+32}
        ds_read_b32 v24, v7 offset:{MLBUF}
        s_waitcnt lgkmcnt(0)
        v_max3_f32 v7, v28, v30, v32
        v_max3_f32 v7, v7, v34, v36
        v_max_f32 v7, v7, v38
        v_sub_f32 v28, v28, v7
        v_sub_f32 v30, v30, v7
        v_sub_f32 v32, v32, v7
        v_sub_f32 v34, v34, v7
        v_sub_f32 v36, v36, v7
        v_sub_f32 v38, v38, v7
        v_sub_f32 v24, v24, v7
        v_exp_f32 v28, v28
        v_exp_f32 v30, v30
        v_exp_f32 v32, v32
        v_exp_f32 v34, v34
        v_exp_f32 v36, v36
        v_exp_f32 v38, v38
        v_exp_f32 v24, v24
        s_nop 0
        v_mul_f32 v8, v28, v29
        v_fmac_f32 v8, v30, v31
        v_fmac_f32 v8, v32, v33
        v_fmac_f32 v8, v34, v35
        v_fmac_f32 v8, v36, v37
        v_fmac_f32 v8, v38, v39
        v_rcp_f32 v8, v8
        s_nop 0
        v_mul_f32 {vr(dst)}, v24, v8
        """)
    a(f"""
    s_barrier
    v_lshrrev_b32 v10, 2, v0
    v_add_u32 v11, 128, v10
    """)
    weightB(10, V_W1)
    a("""
    s_cmp_gt_u32 s11, 3
    s_cbranch_scc1 L_wA
    """)
    weightB(11, V_W2)
    a("s_branch L_wdone")
    a.label("L_wA")
    a(f"""
    v_and_b32 v6, 0x1fe, v11
    v_lshlrev_b32 v6, 3, v6
    v_lshlrev_b32 v7, 3, v11
    ds_read_b128 v[28:31], v6 offset:{MLBUF}
    ds_read_b32 v24, v7 offset:{MLBUF}
    s_waitcnt lgkmcnt(0)
    v_max_f32 v7, v28, v30
    v_sub_f32 v28, v28, v7
    v_sub_f32 v30, v30, v7
    v_sub_f32 v24, v24, v7
    v_exp_f32 v28, v28
    v_exp_f32 v30, v30
    v_exp_f32 v24, v24
    s_nop 0
    v_mul_f32 v8, v28, v29
    v_fmac_f32 v8, v30, v31
    v_rcp_f32 v8, v8
    s_nop 0
    v_mul_f32 {vr(V_W2)}, v24, v8
    """)
    a.label("L_wdone")
    a("s_waitcnt vmcnt(0)")
    a.label("L_chkY")
    a(f"""
    v_max3_u32 v7, v56, v57, v58
    v_max3_u32 v7, v7, v59, v60
    v_max3_u32 v7, v7, v61, v62
    v_max_u32 v7, v7, v63
    v_cmp_eq_u32 vcc, -1, v7
    s_cbranch_vccz L_gotY
    buffer_load_dwordx4 v[56:59], v4, s[72:75], s78 offen sc1
    buffer_load_dwordx4 v[60:63], v4, s[72:75], s79 offen sc1
    s_waitcnt vmcnt(0)
    s_branch L_chkY
    """)
    a.label("L_gotY")
    a.stamp(9)
    for r in range(4):
        a(f"v_mul_f32 v{20+r}, v{56+r}, {vr(V_W1)}")
    for r in range(4):
        a(f"v_mul_f32 v{24+r}, v{60+r}, {vr(V_W2)}")
    a("""
    s_cmp_gt_u32 s11, 3
    s_cbranch_scc1 L_redA
    """)
    for r in range(4):
        a(f"v_add_f32 v{20+r}, v{20+r}, v{24+r}")
    a("s_nop 1")
    for dpp in ("row_shr:4", "row_shr:8"):
        for r in range(4):
            a(f"v_add_f32_dpp v{20+r}, v{20+r}, v{20+r} {dpp} row_mask:0xf bank_mask:0xf bound_ctrl:0")
    a("s_branch L_redW")
    a.label("L_redA")
    for dpp in ("row_shr:4", "row_shr:8"):
        for r in range(8):
            a(f"v_add_f32_dpp v{20+r}, v{20+r}, v{20+r} {dpp} row_mask:0xf bank_mask:0xf bound_ctrl:0")
    a.label("L_redW")
    a(f"""
    v_and_b32 v5, 3, {vr(V_LANE)}
    v_lshlrev_b32 v5, 9, v5
    v_lshl_add_u32 v5, {vr(V_G)}, 2, v5
    s_lshl_b32 s76, s11, 4
    v_add_u32 v5, s76, v5
    s_mov_b32 s78, 0xf000f000
    s_mov_b32 s79, 0xf000f000
    s_mov_b64 exec, s[78:79]
    """)
    for r in range(4):
        a(f"ds_write_b32 v5, v{20+r} offset:{FINB+r*128}")
    a("""
    s_cmp_lt_u32 s11, 4
    s_cbranch_scc1 L_noA
    """)
    a(f"""
    v_and_b32 v6, 3, {vr(V_LANE)}
    v_lshlrev_b32 v6, 8, v6
    v_lshl_add_u32 v6, {vr(V_G)}, 2, v6
    s_lshl_b32 s76, s11, 4
    s_sub_u32 s76, s76, 64
    v_add_u32 v6, s76, v6
    """)
    for r in range(4):
        a(f"ds_write_b32 v6, v{24+r} offset:{FINA+r*64}")
    a.label("L_noA")
    a(f"""
    s_mov_b64 exec, -1
    s_waitcnt lgkmcnt(0)
    s_barrier
    s_cmp_gt_u32 s11, 1
    s_cbranch_scc1 L_end
    s_mov_b32 s88, s36
    s_mov_b32 s89, s37
    s_mov_b32 s90, 2560
    s_mov_b32 s91, 0x00020000
    s_mov_b64 exec, 0xffff
    s_cmp_eq_u32 s11, 1
    s_cbranch_scc1 L_finA
    v_lshlrev_b32 v4, 7, {vr(V_LANE)}
    """)
    for k in range(8):
        a(f"ds_read_b128 {vr(20+4*k,4)}, v4 offset:{FINB+16*k}")
    a("s_waitcnt lgkmcnt(0)")
    regs = list(range(20, 52))
    while len(regs) > 1:
        nxt = []
        for i in range(0, len(regs), 2):
            a(f"v_add_f32 v{regs[i]}, v{regs[i]}, v{regs[i+1]}")
            nxt.append(regs[i])
        regs = nxt
    a("s_movk_i32 s79, 1280")
    a("s_branch L_store")
    a.label("L_finA")
    a(f"v_lshlrev_b32 v4, 6, {vr(V_LANE)}")
    for k in range(4):
        a(f"ds_read_b128 {vr(20+4*k,4)}, v4 offset:{FINA+16*k}")
    a("s_waitcnt lgkmcnt(0)")
    regs = list(range(20, 36))
    while len(regs) > 1:
        nxt = []
        for i in range(0, len(regs), 2):
            a(f"v_add_f32 v{regs[i]}, v{regs[i]}, v{regs[i+1]}")
            nxt.append(regs[i])
        regs = nxt
    a("s_movk_i32 s79, 0")
    a.label("L_store")
    a(f"""
    v_lshrrev_b32 v5, 2, {vr(V_LANE)}
    s_lshl_b32 s76, s2, 2
    v_add_u32 v5, s76, v5
    v_lshrrev_b32 v6, 5, v5
    v_lshlrev_b32 v6, 7, v6
    v_bfe_u32 v7, v5, 3, 2
    v_lshl_add_u32 v6, v7, 5, v6
    v_and_b32 v7, 7, v5
    v_add_u32 v6, v6, v7
    v_and_b32 v7, 3, {vr(V_LANE)}
    v_lshl_add_u32 v6, v7, 3, v6
    v_lshlrev_b32 v6, 1, v6
    v_cvt_pk_bf16_f32 v20, v20, v20
    buffer_store_short v20, v6, s[88:91], s79 offen
    """)
    a.label("L_end")
    if PROF:
        a.stamp(10)
        a(f"""
        s_mov_b64 exec, 1
        s_lshl_b32 s76, s2, 3
        s_add_u32 s76, s76, s11
        s_lshl_b32 s76, s76, 6
        s_add_u32 s76, s76, {4<<20}
        s_add_u32 s92, s40, s76
        s_addc_u32 s93, s41, 0
        v_mov_b32 v4, 0
        """)
        a("v_mov_b32 v20, s13")
        for i in range(1, 12):
            a(f"v_mov_b32 v{20+i}, s{16+i}")
        for q in range(3):
            a(f"global_store_dwordx4 v4, v[{20+4*q}:{23+4*q}], s[92:93] offset:{16*q}")
    a.label("L_end2")
    a("s_endpgm")

    hdr = open("cdna_kernels/" + NAME + ".s.ref").read().split("\n")
    head = []
    for ln in hdr:
        if ln.startswith("; @launch"):
            head.append(f"; @launch grid=(256,1,1) block=(512,1,1) lds={LDS_BYTES}")
            break
        head.append(ln)
    out = "\n".join(head) + "\n"
    out += f""".amdgcn_target "amdgcn-amd-amdhsa--gfx950"
.text
.globl {NAME}_kernel
.p2align 8
.type {NAME}_kernel,@function
{NAME}_kernel:
"""
    t0 = "s_memrealtime s[92:93]\n    s_waitcnt lgkmcnt(0)\n    s_mov_b32 s13, s92" if PROF else ""
    out += a.text().replace("PROF_T0", t0).replace("PROF_CLR", "\n    ".join(f"s_mov_b32 s{16+i}, 0" for i in range(1,12)) if PROF else "")
    out += f""".section .rodata,"a"
.p2align 6
.amdhsa_kernel {NAME}_kernel
  .amdhsa_next_free_vgpr 256
  .amdhsa_next_free_sgpr 102
  .amdhsa_accum_offset 256
  .amdhsa_group_segment_fixed_size 0
  .amdhsa_kernarg_size 104
  .amdhsa_user_sgpr_count 2
  .amdhsa_user_sgpr_kernarg_segment_ptr 1
  .amdhsa_system_sgpr_workgroup_id_x 1
.end_amdhsa_kernel
"""
    return out

if __name__ == "__main__":
    for o in sys.argv[2:]:
        if o == "prof": PROF = True
        elif o == "wnt": NT_W = " nt"
        elif o == "kvplain": NT_KV = ""
        elif o == "norot": ROT = False
        elif o.startswith("sleep"): POLL_SLEEP = int(o[5:])
    path = sys.argv[1] if len(sys.argv) > 1 else "cdna_kernels/" + NAME + ".s"
    open(path, "w").write(gen())
```

```python
import sys, struct

PROF = False
DBG = False
DBGPROF = False
NT_KV = " nt"
NT_W = ""
ROT = True
POLL_SLEEP = 4
NRED = 40
NAME = "concat_heads__sliding_block_cached__gqa_block_cached__decode"

class A:
    def __init__(self):
        self.l = []
    def __call__(self, s):
        for ln in s.strip("\n").split("\n"):
            if ln.strip():
                self.l.append("    " + ln.strip())
    def stamp(self, i):
        if not PROF: return
        self(f"""
        s_memrealtime s[92:93]
        s_waitcnt lgkmcnt(0)
        s_mov_b32 s{16+i}, s92
        """)
    def label(self, s):
        self.l.append(s + ":")
    def text(self):
        return "\n".join(self.l) + "\n"

def vr(b, n=1):
    return f"v{b}" if n == 1 else f"v[{b}:{b+n-1}]"

QPART = 0
QBUF = 4096
MBUF = 4352
LBUF = 4384
OPART = 4608
YPART = 8704
MLBUF = YPART + 8 * 2560
FINB = MLBUF + 2048
FINA = FINB + 2048
LDS_BYTES = 36864
ML_OFF = 256 * 2560
NREP = 5
WS_BYTES = ML_OFF + NREP * 2048

V_TID = 0
V_LANE = 1
V_N = 2
V_G = 3
V_T0 = 4
V_SELLO = 12
V_SELHI = 16
V_X = 20
V_SC = 20
V_B0 = 44
V_B1 = 48
V_ACC = 52
V_QF = 44
V_OFFA = 60
V_OFFB = 61
V_OFFC = 62
V_OFFD = 63
V_L = 64
V_MC = 65
V_DUMMY = 66
V_CNT = 67
V_OA = 68
V_ML = 72
V_W1 = 74
V_W2 = 75
V_DL = [48, 52, 56, 76]
R1 = 80
R2 = 160

C_SCALE = 0.08838834764831845 * 1.4426950408889634
def f32bits(x):
    return struct.unpack("<I", struct.pack("<f", x))[0]

def body(a, nt):
    L = f"L{nt}"
    a(f"""
    v_lshrrev_b32 {vr(V_OFFB)}, 2, {vr(V_N)}
    v_lshlrev_b32 {vr(V_OFFB)}, 8, {vr(V_OFFB)}
    v_lshl_add_u32 {vr(V_OFFB)}, {vr(V_G)}, 6, {vr(V_OFFB)}
    v_and_b32 {vr(V_OFFC)}, 3, {vr(V_N)}
    v_lshl_add_u32 {vr(V_OFFB)}, {vr(V_OFFC)}, 4, {vr(V_OFFB)}
    s_lshl_b32 s76, s11, 12
    """)
    for u in range(nt):
        for j in range(4):
            a(f"buffer_load_dwordx4 {vr(R2+16*u+4*j,4)}, {vr(V_OFFB)}, s[56:59], s76 offen offset:{j*1024}{NT_KV}")
        if u < nt - 1:
            a("s_add_u32 s76, s76, 32768")
    nK = 4 * nt
    nC = 0
    a(f"""
    v_lshlrev_b32 {vr(V_OFFC)}, 4, {vr(V_LANE)}
    s_mul_i32 s76, s11, {4*1280}
    v_mul_u32_u24 {vr(V_OFFD)}, 1280, {vr(V_G)}
    v_lshl_add_u32 {vr(V_OFFD)}, {vr(V_N)}, 4, {vr(V_OFFD)}
    v_add_u32 {vr(V_OFFD)}, s76, {vr(V_OFFD)}
    """)
    a.stamp(1)
    a(f"""
    v_and_b32 {vr(V_T0+8)}, 1, {vr(V_N)}
    v_cmp_eq_u32 vcc, 1, {vr(V_T0+8)}
    v_mov_b32 {vr(V_B0+1)}, 0x0c0c0100
    v_mov_b32 {vr(V_B0+2)}, 0x01000c0c
    v_mov_b32 {vr(V_B0+3)}, 0x0c0c0302
    v_mov_b32 {vr(V_B0+4)}, 0x03020c0c
    v_cndmask_b32 {vr(V_B0+1)}, {vr(V_B0+1)}, {vr(V_B0+2)}, vcc
    v_cndmask_b32 {vr(V_B0+3)}, {vr(V_B0+3)}, {vr(V_B0+4)}, vcc
    v_lshrrev_b32 {vr(V_B0)}, 1, {vr(V_N)}
    v_mov_b32 {vr(V_B0+2)}, 0x0c0c0c0c
    """)
    for c in range(4):
        a(f"""
        v_cmp_eq_u32 vcc, {c}, {vr(V_B0)}
        s_nop 1
        v_cndmask_b32 {vr(V_SELLO+c)}, {vr(V_B0+2)}, {vr(V_B0+1)}, vcc
        v_cndmask_b32 {vr(V_SELHI+c)}, {vr(V_B0+2)}, {vr(V_B0+3)}, vcc
        """)
    a(f"""
    v_and_b32 {vr(V_B0)}, 7, {vr(V_N)}
    v_lshlrev_b32 {vr(V_B0)}, 9, {vr(V_B0)}
    v_lshl_add_u32 {vr(V_B0)}, {vr(V_G)}, 2, {vr(V_B0)}
    s_lshl_b32 s76, s11, 4
    v_add_u32 {vr(V_B0)}, s76, {vr(V_B0)}
    """)
    for t in range(4):
        a(f"""
        s_add_u32 s76, s15, {t}
        s_and_b32 s76, s76, 3
        s_lshl_b32 s76, s76, 7
        v_add_u32 {vr(V_OA+t)}, s76, {vr(V_B0)}
        """)
    a(f"s_waitcnt vmcnt({nK+nC})")
    def buildB(dst, src, hi):
        sel = V_SELHI if hi else V_SELLO
        for c in range(4):
            a(f"v_perm_b32 {vr(dst+c)}, {vr(src)}, {vr(src)}, {vr(sel+c)}")
    buildB(V_B0, V_X, 0)
    for t in range(20):
        cur = V_B0 if t % 2 == 0 else V_B1
        nxt = V_B1 if t % 2 == 0 else V_B0
        if t < 19:
            buildB(nxt, V_X + (t + 1) // 2, (t + 1) % 2)
        else:
            a("s_nop 1")
        c = "0" if t == 0 else vr(V_ACC, 4)
        a(f"v_mfma_f32_16x16x32_bf16 {vr(V_ACC,4)}, {vr(R1+4*t,4)}, {vr(cur,4)}, {c}")
    a.stamp(2)
    a(f"""
    v_lshlrev_b32 {vr(V_T0)}, 3, {vr(V_G)}
    v_add_u32 {vr(V_T0)}, {vr(V_T0)}, {vr(V_N)}
    v_lshlrev_b32 {vr(V_T0)}, 4, {vr(V_T0)}
    s_lshl_b32 s76, s11, 9
    v_add_u32 {vr(V_T0)}, s76, {vr(V_T0)}
    s_nop 4
    s_mov_b64 exec, s[80:81]
    ds_write_b128 {vr(V_T0)}, {vr(V_ACC,4)} offset:{QPART}
    s_mov_b64 exec, -1
    s_waitcnt lgkmcnt(0)
    s_barrier
    s_cmp_lg_u32 s11, 2
    s_cbranch_scc1 {L}_noflag
    v_mov_b32 v9, 1
    v_mov_b32 v10, s2
    s_mov_b64 exec, 1
    global_store_byte v10, v9, s[38:39] sc1
    s_mov_b64 exec, -1
    """)
    a.label(f"{L}_noflag")
    a(f"""
    s_cmp_ge_u32 s11, 2
    s_cbranch_scc1 {L}_qskip
    v_lshrrev_b32 {vr(V_T0)}, 5, {vr(V_TID)}
    v_lshlrev_b32 {vr(V_T0)}, 7, {vr(V_T0)}
    v_and_b32 {vr(V_T0+1)}, 7, {vr(V_TID)}
    v_lshl_add_u32 {vr(V_T0)}, {vr(V_T0+1)}, 4, {vr(V_T0)}
    v_bfe_u32 {vr(V_T0+1)}, {vr(V_TID)}, 3, 2
    v_lshl_add_u32 {vr(V_T0)}, {vr(V_T0+1)}, 2, {vr(V_T0)}
    """)
    for w in range(8):
        a(f"ds_read_b32 {vr(V_QF+w)}, {vr(V_T0)} offset:{QPART+w*512}")
    a("s_waitcnt lgkmcnt(0)")
    a(f"""
    v_add_f32 {vr(V_QF)}, {vr(V_QF)}, {vr(V_QF+1)}
    v_add_f32 {vr(V_QF+2)}, {vr(V_QF+2)}, {vr(V_QF+3)}
    v_add_f32 {vr(V_QF+4)}, {vr(V_QF+4)}, {vr(V_QF+5)}
    v_add_f32 {vr(V_QF+6)}, {vr(V_QF+6)}, {vr(V_QF+7)}
    v_add_f32 {vr(V_QF)}, {vr(V_QF)}, {vr(V_QF+2)}
    v_add_f32 {vr(V_QF+4)}, {vr(V_QF+4)}, {vr(V_QF+6)}
    v_add_f32 {vr(V_QF)}, {vr(V_QF)}, {vr(V_QF+4)}
    v_cvt_pk_bf16_f32 {vr(V_QF)}, {vr(V_QF)}, {vr(V_QF)}
    v_lshlrev_b32 {vr(V_T0)}, 1, {vr(V_TID)}
    ds_write_b16 {vr(V_T0)}, {vr(V_QF)} offset:{QBUF}
    s_waitcnt lgkmcnt(0)
    """)
    a.label(f"{L}_qskip")
    a(f"""
    s_barrier
    v_and_b32 {vr(V_T0)}, 3, {vr(V_N)}
    v_lshl_add_u32 {vr(V_T0)}, {vr(V_G)}, 2, {vr(V_T0)}
    v_lshlrev_b32 {vr(V_T0)}, 4, {vr(V_T0)}
    """)
    a(f"ds_read_b128 {vr(V_QF,4)}, {vr(V_T0)} offset:{QBUF}")
    for t in range(4):
        a(f"""
        s_add_u32 s76, s15, {t}
        s_and_b32 s76, s76, 3
        s_mul_i32 s76, s76, 40960
        """)
        for cb in range(5):
            a(f"buffer_load_dwordx4 {vr(R1+4*(t*5+cb),4)}, {vr(V_OFFD)}, s[64:67], s76 offen offset:{cb*256}{NT_W}")
    a("s_waitcnt lgkmcnt(0)")
    a.stamp(3)
    def qk_reduce(u):
        a("s_nop 1")
        for j in range(4):
            a(f"v_mov_b32_dpp {vr(V_SC+4*u+j)}, {vr(V_DL[j])} quad_perm:[0,0,0,0] row_mask:0xf bank_mask:0xf")
        for r in range(1, 4):
            for j in range(4):
                a(f"v_add_f32_dpp {vr(V_SC+4*u+j)}, {vr(V_DL[j]+r)}, {vr(V_SC+4*u+j)} quad_perm:[{r},{r},{r},{r}] row_mask:0xf bank_mask:0xf")
    a("s_lshl_b32 s76, s11, 12")
    for u in range(nt):
        a(f"s_waitcnt vmcnt({4*(nt-1-u)+nC+20+4*u})")
        for j in range(4):
            a(f"v_mfma_f32_16x16x32_bf16 {vr(V_DL[j],4)}, {vr(R2+16*u+4*j,4)}, {vr(V_QF,4)}, 0")
        for r in range(4):
            a(f"buffer_load_dwordx4 {vr(R2+16*u+4*r,4)}, {vr(V_OFFC)}, s[60:63], s76 offen offset:{r*1024}{NT_KV}")
        qk_reduce(u)
        if u < nt - 1:
            a("s_add_u32 s76, s76, 32768")
    a.stamp(4)
    n = 4 * nt
    a(f"v_max3_f32 {vr(V_T0)}, {vr(V_SC)}, {vr(V_SC+1)}, {vr(V_SC+2)}")
    k = 3
    while k < n:
        if k + 1 < n:
            a(f"v_max3_f32 {vr(V_T0)}, {vr(V_T0)}, {vr(V_SC+k)}, {vr(V_SC+k+1)}")
            k += 2
        else:
            a(f"v_max_f32 {vr(V_T0)}, {vr(V_T0)}, {vr(V_SC+k)}")
            k += 1
    a(f"""
    s_nop 0
    v_readlane_b32 s76, {vr(V_T0)}, 0
    v_readlane_b32 s77, {vr(V_T0)}, 16
    v_readlane_b32 s78, {vr(V_T0)}, 32
    v_readlane_b32 s79, {vr(V_T0)}, 48
    s_nop 1
    v_mov_b32 {vr(V_T0)}, s76
    v_max_f32 {vr(V_T0)}, s77, {vr(V_T0)}
    v_max_f32 {vr(V_T0)}, s78, {vr(V_T0)}
    v_max_f32 {vr(V_T0)}, s79, {vr(V_T0)}
    s_lshl_b32 s76, s11, 2
    v_mov_b32 {vr(V_T0+1)}, s76
    ds_write_b32 {vr(V_T0+1)}, {vr(V_T0)} offset:{MBUF}
    s_waitcnt lgkmcnt(0)
    s_barrier
    v_mov_b32 {vr(V_T0+1)}, 0
    ds_read_b128 {vr(V_QF,4)}, {vr(V_T0+1)} offset:{MBUF}
    ds_read_b128 {vr(V_QF+4,4)}, {vr(V_T0+1)} offset:{MBUF+16}
    s_waitcnt lgkmcnt(0)
    v_max3_f32 {vr(V_T0)}, {vr(V_QF)}, {vr(V_QF+1)}, {vr(V_QF+2)}
    v_max3_f32 {vr(V_T0)}, {vr(V_T0)}, {vr(V_QF+3)}, {vr(V_QF+4)}
    v_max3_f32 {vr(V_T0)}, {vr(V_T0)}, {vr(V_QF+5)}, {vr(V_QF+6)}
    v_max_f32 {vr(V_T0)}, {vr(V_T0)}, {vr(V_QF+7)}
    v_mul_f32 {vr(V_MC)}, s82, {vr(V_T0)}
    """)
    for k in range(n):
        a(f"v_fma_f32 {vr(V_SC+k)}, {vr(V_SC+k)}, s82, -{vr(V_MC)}")
    for k in range(n):
        a(f"v_exp_f32 {vr(V_SC+k)}, {vr(V_SC+k)}")
    a("s_nop 0")
    a(f"v_add_f32 {vr(V_L)}, {vr(V_SC)}, {vr(V_SC+1)}")
    for k in range(2, n):
        a(f"v_add_f32 {vr(V_L)}, {vr(V_L)}, {vr(V_SC+k)}")
    a(f"""
    s_lshl_b32 s76, s11, 4
    v_lshlrev_b32 {vr(V_T0)}, 2, {vr(V_G)}
    v_add_u32 {vr(V_T0)}, s76, {vr(V_T0)}
    s_mov_b64 exec, s[84:85]
    ds_write_b32 {vr(V_T0)}, {vr(V_L)} offset:{LBUF}
    s_mov_b64 exec, -1
    """)
    for k in range(0, n, 2):
        a(f"v_cvt_pk_bf16_f32 {vr(V_SC+k)}, {vr(V_SC+k)}, {vr(V_SC+k+1)}")
    a(f"""
    s_waitcnt lgkmcnt(0)
    s_barrier
    v_lshlrev_b32 v4, 2, {vr(V_LANE)}
    v_and_b32 v4, 127, v4
    ds_read_b32 v5, v4 offset:{LBUF}
    s_waitcnt lgkmcnt(0)
    s_nop 1
    v_add_f32_dpp v5, v5, v5 quad_perm:[1,0,3,2] row_mask:0xf bank_mask:0xf
    s_nop 1
    v_add_f32_dpp v5, v5, v5 quad_perm:[2,3,0,1] row_mask:0xf bank_mask:0xf
    s_nop 1
    v_add_f32_dpp v5, v5, v5 row_half_mirror row_mask:0xf bank_mask:0xf
    s_nop 1
    v_add_f32_dpp v5, v5, v5 row_mirror row_mask:0xf bank_mask:0xf
    s_nop 1
    v_readlane_b32 s76, v5, 16
    s_nop 1
    v_add_f32 v5, s76, v5
    v_min_u32 {vr(V_ML)}, 0xfffffffe, {vr(V_MC)}
    v_min_u32 {vr(V_ML+1)}, 0xfffffffe, v5
    """)
    a.stamp(5)
    def psrc(u, r):
        return V_SC + 4 * u + (r // 2) * 2, r % 2
    seq = [(u, r) for u in range(nt) for r in range(4)]
    s0, h0 = psrc(*seq[0])
    buildB(V_B0, s0, h0)
    nV = 4 * nt
    for idx, (u, r) in enumerate(seq):
        cur = V_B0 if idx % 2 == 0 else V_B1
        nxt = V_B1 if idx % 2 == 0 else V_B0
        if idx + 1 < len(seq):
            s1, h1 = psrc(*seq[idx + 1])
            buildB(nxt, s1, h1)
        else:
            a("s_nop 1")
        a(f"s_waitcnt vmcnt({nV-1-idx})")
        c = "0" if idx == 0 else vr(V_ACC, 4)
        a(f"v_mfma_f32_16x16x32_bf16 {vr(V_ACC,4)}, {vr(R2+16*u+4*r,4)}, {vr(cur,4)}, {c}")
    a.stamp(6)
    a("s_branch L_tail")

def gen():
    a = A()
    a(f"""
    s_cmp_ge_u32 s2, 256
    s_cbranch_scc1 L_end2
    s_load_dwordx16 s[16:31], s[0:1], 0
    s_load_dwordx8 s[32:39], s[0:1], 64
    s_load_dwordx2 s[40:41], s[0:1], 96
    PROF_T0
    s_and_b32 s3, s2, 7
    s_lshr_b32 s4, s2, 3
    v_lshrrev_b32 v1, 6, v0
    v_and_b32 v0, 0x3ff, v0
    v_readfirstlane_b32 s11, v1
    v_and_b32 {vr(V_LANE)}, 63, v0
    v_and_b32 {vr(V_N)}, 15, {vr(V_LANE)}
    v_lshrrev_b32 {vr(V_G)}, 4, {vr(V_LANE)}
    s_mul_i32 s5, s4, 43
    s_lshr_b32 s5, s5, 8
    s_mul_i32 s6, s5, 6
    s_sub_u32 s6, s4, s6
    s_cmp_lt_u32 s6, 4
    s_cselect_b32 s7, 43, 42
    s_mul_i32 s8, s6, 43
    s_max_u32 s76, s6, 4
    s_sub_u32 s76, s76, 4
    s_sub_u32 s8, s8, s76
    s_lshl_b32 s8, s8, 4
    s_sub_u32 s77, s4, 24
    s_lshr_b32 s78, s77, 1
    s_and_b32 s79, s77, 1
    s_lshl_b32 s80, s79, 9
    s_add_u32 s80, s80, 3072
    s_cmp_lt_u32 s4, 24
    s_cselect_b32 s5, s5, s78
    s_cselect_b32 s6, s6, s79
    s_cselect_b32 s7, s7, 32
    s_cselect_b32 s8, s8, s80
    s_cselect_b32 s12, 1, 0
    s_lshl_b32 s9, s3, 2
    s_add_u32 s9, s9, s5
    s_mul_i32 s10, s9, 6
    s_add_u32 s10, s10, s6
    s_lshl_b32 s76, s9, 1
    s_add_u32 s76, s76, s6
    s_add_u32 s76, s76, 192
    s_cmp_eq_u32 s12, 1
    s_cselect_b32 s10, s10, s76
    s_mul_i32 s14, s6, 10
    s_add_u32 s14, s14, 3
    s_mul_i32 s14, s14, 43
    s_lshr_b32 s14, s14, 8
    s_lshl_b32 s14, s14, 1
    s_mul_i32 s76, s6, 10
    s_and_b32 s15, s6, 3
    s_lshl_b32 s77, s6, 1
    s_cmp_eq_u32 s12, 1
    s_cselect_b32 s14, s14, s76
    s_cselect_b32 s15, s15, s77
    {"" if ROT else "s_mov_b32 s14, 0"}
    {"" if ROT else "s_mov_b32 s15, 0"}
    s_mov_b32 s80, 0x00ff00ff
    s_mov_b32 s81, 0x00ff00ff
    s_mov_b32 s82, 0x{f32bits(C_SCALE):08x}
    s_mov_b32 s84, 0x00010001
    s_mov_b32 s85, 0x00010001
    s_mov_b32 s55, 0x00020000
    s_mov_b32 s59, 0x00020000
    s_mov_b32 s63, 0x00020000
    s_mov_b32 s67, 0x00020000
    s_mov_b32 s71, 0x00020000
    s_mov_b32 s75, 0x00020000
    s_mov_b32 s70, 1280
    s_mov_b32 s66, 163840
    s_mov_b32 s74, {WS_BYTES}
    s_lshl_b32 s58, s7, 12
    s_mov_b32 s62, s58
    s_mul_i32 s76, s11, 160
    v_mul_u32_u24 v10, 40, {vr(V_G)}
    v_add_u32 v10, s76, v10
    s_mul_i32 s76, s11, {80*8192}
    s_mov_b32 s77, {20*8192}
    v_mul_lo_u32 {vr(V_OFFA)}, s77, {vr(V_G)}
    v_lshl_add_u32 {vr(V_OFFA)}, {vr(V_N)}, 4, {vr(V_OFFA)}
    v_add_u32 {vr(V_OFFA)}, s76, {vr(V_OFFA)}
    s_lshl_b32 s78, s9, 8
    s_sub_u32 s54, {640*8192}, s78
    s_waitcnt lgkmcnt(0)
    s_cmp_eq_u32 s12, 1
    s_cselect_b64 s[48:49], s[32:33], s[22:23]
    s_cselect_b64 s[68:69], s[26:27], s[16:17]
    s_cselect_b64 s[44:45], s[28:29], s[18:19]
    s_cselect_b64 s[46:47], s[30:31], s[20:21]
    s_cselect_b64 s[50:51], s[34:35], s[24:25]
    s_add_u32 s52, s48, s78
    s_addc_u32 s53, s49, 0
    s_lshl_b32 s76, s14, 13
    """)
    for t in range(20):
        a(f"buffer_load_dwordx4 {vr(R1+4*t,4)}, {vr(V_OFFA)}, s[52:55], s76 offen{NT_W}")
        if t < 19:
            a("s_add_u32 s76, s76, 8192\ns_cmp_eq_u32 s76, 163840\ns_cselect_b32 s76, 0, s76")
    XL = []
    a("s_lshl_b32 s76, s14, 1")
    for k in range(10):
        a(f"buffer_load_dword {vr(V_X+k)}, v10, s[68:71], s76 offen")
        if k < 9:
            a("s_add_u32 s76, s76, 4\ns_cmp_eq_u32 s76, 40\ns_cselect_b32 s76, 0, s76")
    a(f"""
    s_lshl_b32 s76, s9, 20
    s_lshl_b32 s77, s8, 8
    s_add_u32 s76, s76, s77
    s_add_u32 s56, s44, s76
    s_addc_u32 s57, s45, 0
    s_add_u32 s60, s46, s76
    s_addc_u32 s61, s47, 0
    s_mul_i32 s76, s9, 163840
    s_add_u32 s64, s50, s76
    s_addc_u32 s65, s51, 0
    s_mov_b32 s72, s40
    s_mov_b32 s73, s41
    v_mov_b32 v4, -1
    v_mov_b32 v5, -1
    v_mov_b32 v6, -1
    v_mov_b32 v7, -1
    s_mul_i32 s77, s11, 20
    v_add_u32 v8, s77, {vr(V_LANE)}
    v_lshrrev_b32 v9, 2, v8
    v_and_b32 v8, 3, v8
    v_lshlrev_b32 v8, 4, v8
    v_lshl_add_u32 v8, v9, 14, v8
    s_lshl_b32 s76, s10, 6
    s_mov_b64 exec, 0xfffff
    buffer_store_dwordx4 v[4:7], v8, s[72:75], s76 offen sc1
    s_mov_b64 exec, -1
    s_cmp_lg_u32 s11, 0
    s_cbranch_scc1 L_noclr
    v_lshlrev_b32 v9, 11, {vr(V_LANE)}
    s_lshl_b32 s76, s10, 3
    s_add_u32 s76, s76, {ML_OFF}
    s_mov_b64 exec, {(1<<NREP)-1}
    buffer_store_dwordx2 v[4:5], v9, s[72:75], s76 offen sc1
    s_mov_b64 exec, -1
L_noclr:
    PROF_CLR
    s_sub_u32 s76, s7, s11
    s_add_u32 s76, s76, 7
    s_lshr_b32 s76, s76, 3
    s_barrier
    s_cmp_eq_u32 s76, 6
    s_cbranch_scc1 L6_start
    s_cmp_eq_u32 s76, 5
    s_cbranch_scc1 L5_start
    """)
    for nt in (4, 5, 6):
        a.label(f"L{nt}_start")
        body(a, nt)
    a.label("L_tail")
    def buildB(dst, src, hi):
        sel = V_SELHI if hi else V_SELLO
        for c in range(4):
            a(f"v_perm_b32 {vr(dst+c)}, {vr(src)}, {vr(src)}, {vr(sel+c)}")
    a(f"""
    v_lshlrev_b32 {vr(V_T0)}, 5, {vr(V_G)}
    v_add_u32 {vr(V_T0)}, {vr(V_T0)}, {vr(V_N)}
    v_lshlrev_b32 {vr(V_T0)}, 2, {vr(V_T0)}
    s_lshl_b32 s76, s11, 9
    v_add_u32 {vr(V_T0)}, s76, {vr(V_T0)}
    s_nop 4
    s_mov_b64 exec, s[80:81]
    """)
    for r in range(4):
        a(f"ds_write_b32 {vr(V_T0)}, {vr(V_ACC+r)} offset:{OPART+r*32}")
    a(f"""
    s_mov_b64 exec, -1
    s_cmp_lg_u32 s11, 7
    s_cbranch_scc1 L_nomlst
    v_lshlrev_b32 v9, 11, {vr(V_LANE)}
    s_lshl_b32 s76, s10, 3
    s_add_u32 s76, s76, {ML_OFF}
    s_mov_b64 exec, {(1<<NREP)-1}
    buffer_store_dwordx2 {vr(V_ML,2)}, v9, s[72:75], s76 offen sc1
    s_mov_b64 exec, -1
L_nomlst:
    s_cmp_ge_u32 s2, {NRED}
    s_cbranch_scc1 L_nopre
    v_lshlrev_b32 v9, 2, {vr(V_LANE)}
    global_load_dword {vr(V_CNT)}, v9, s[38:39] sc1
    """)
    if DBG:
        a.label("L_dchk")
        a(f"""
        s_waitcnt vmcnt(0)
        v_cmp_ne_u32 vcc, 0x01010101, {vr(V_CNT)}
        s_cbranch_vccz L_nopre
        global_load_dword {vr(V_CNT)}, v9, s[38:39] sc1
        s_branch L_dchk
        """)
    a.label("L_nopre")
    a("s_waitcnt lgkmcnt(0)")
    a("s_barrier")
    for t in range(4):
        a(f"ds_read_b32 {vr(V_T0+4+t)}, {vr(V_OA+t)} offset:{OPART}")
    a("s_waitcnt lgkmcnt(0)")
    for dpp in ["quad_perm:[1,0,3,2]", "quad_perm:[2,3,0,1]", "row_half_mirror"]:
        for t in range(4):
            a(f"v_add_f32_dpp {vr(V_T0+4+t)}, {vr(V_T0+4+t)}, {vr(V_T0+4+t)} {dpp} row_mask:0xf bank_mask:0xf")
    a(f"""
    v_cvt_pk_bf16_f32 {vr(V_T0+4)}, {vr(V_T0+4)}, {vr(V_T0+5)}
    v_cvt_pk_bf16_f32 {vr(V_T0+6)}, {vr(V_T0+6)}, {vr(V_T0+7)}
    """)
    VB = 20
    VY = 36
    for t in range(4):
        buildB(VB + 4 * t, V_T0 + 4 + (t // 2) * 2, t % 2)
    for t in range(4):
        for cb in range(5):
            c = "0" if t == 0 else vr(VY + 4 * cb, 4)
            a(f"v_mfma_f32_16x16x32_bf16 {vr(VY+4*cb,4)}, {vr(R1+4*(t*5+cb),4)}, {vr(VB+4*t,4)}, {c}")
    a(f"""
    v_lshlrev_b32 {vr(V_T0)}, 3, {vr(V_G)}
    v_add_u32 {vr(V_T0)}, {vr(V_T0)}, {vr(V_N)}
    v_lshlrev_b32 {vr(V_T0)}, 4, {vr(V_T0)}
    s_mul_i32 s76, s11, 2560
    v_add_u32 {vr(V_T0)}, s76, {vr(V_T0)}
    s_nop 4
    s_mov_b64 exec, s[80:81]
    """)
    for cb in range(5):
        a(f"ds_write_b128 {vr(V_T0)}, {vr(VY+4*cb,4)} offset:{YPART+cb*512}")
    a(f"""
    s_mov_b64 exec, -1
    s_waitcnt lgkmcnt(0)
    s_barrier
    """)
    a.stamp(7)
    a(f"""
    s_cmp_gt_u32 s11, 2
    s_cbranch_scc1 L_after_store
    v_cmp_gt_u32 vcc, 160, v0
    s_and_saveexec_b64 s[86:87], vcc
    s_cbranch_execz L_tail_y_done
    v_lshlrev_b32 v4, 4, v0
    v_lshrrev_b32 v5, 2, v0
    v_and_b32 v6, 3, v0
    v_lshlrev_b32 v6, 4, v6
    v_lshl_add_u32 v5, v5, 14, v6
    """)
    for w in range(8):
        a(f"ds_read_b128 {vr(20+4*w,4)}, v4 offset:{YPART+w*2560}")
    a("s_waitcnt lgkmcnt(0)")
    for r in range(4):
        a(f"v_add_f32 v{20+r}, v{20+r}, v{24+r}")
        a(f"v_add_f32 v{28+r}, v{28+r}, v{32+r}")
        a(f"v_add_f32 v{36+r}, v{36+r}, v{40+r}")
        a(f"v_add_f32 v{44+r}, v{44+r}, v{48+r}")
    for r in range(4):
        a(f"v_add_f32 v{20+r}, v{20+r}, v{28+r}")
        a(f"v_add_f32 v{36+r}, v{36+r}, v{44+r}")
    for r in range(4):
        a(f"v_add_f32 v{20+r}, v{20+r}, v{36+r}")
    for r in range(4):
        a(f"v_min_u32 v{20+r}, 0xfffffffe, v{20+r}")
    a(f"""
    s_lshl_b32 s76, s10, 6
    buffer_store_dwordx4 v[20:23], v5, s[72:75], s76 offen sc1
    """)
    a.label("L_tail_y_done")
    a("s_mov_b64 exec, s[86:87]")
    a.label("L_after_store")
    a.stamp(8)
    a(f"""
    s_cmp_ge_u32 s2, {NRED}
    s_cbranch_scc1 L_end
    v_lshlrev_b32 v8, 2, {vr(V_LANE)}
    s_waitcnt vmcnt(1)
    s_cmp_lt_u32 s11, 3
    s_cbranch_scc1 L_chkc
    s_waitcnt vmcnt(0)
    """)
    a.label("L_chkc")
    a(f"""
    v_cmp_ne_u32 vcc, 0x01010101, {vr(V_CNT)}
    s_cbranch_vccz L_clr_ok
    global_load_dword {vr(V_CNT)}, v8, s[38:39] sc1
    s_waitcnt vmcnt(0)
    s_branch L_chkc
    """)
    a.label("L_clr_ok")
    a(f"""
    v_lshlrev_b32 v4, 4, v0
    s_lshl_b32 s78, s2, 14
    s_add_u32 s79, s78, 8192
    """)
    a(f"""
    s_cmp_gt_u32 s11, 3
    s_cbranch_scc1 L_ml_done
    v_lshlrev_b32 v9, 3, v0
    s_mul_i32 s76, s2, 52
    s_lshr_b32 s76, s76, 8
    s_mul_i32 s76, s76, 5
    s_sub_u32 s76, s2, s76
    s_lshl_b32 s76, s76, 11
    s_add_u32 s77, s76, {ML_OFF}
    """)
    a.label("L_mlpoll")
    a(f"""
    buffer_load_dwordx2 {vr(V_ML,2)}, v9, s[72:75], s77 offen sc1
    s_waitcnt vmcnt(0)
    v_max_u32 v7, {vr(V_ML)}, {vr(V_ML+1)}
    v_cmp_eq_u32 vcc, -1, v7
    s_cbranch_vccz L_mlok
    s_sleep {POLL_SLEEP}
    s_branch L_mlpoll
    """)
    a.label("L_mlok")
    a(f"""
    ds_write_b64 v9, {vr(V_ML,2)} offset:{MLBUF}
    s_waitcnt lgkmcnt(0)
    """)
    a.label("L_ml_done")
    def weightB(vslot, dst):
        a(f"""
        v_mul_u32_u24 v6, 171, {vr(vslot)}
        v_lshrrev_b32 v6, 10, v6
        v_mul_u32_u24 v6, 48, v6
        v_lshlrev_b32 v7, 3, {vr(vslot)}
        ds_read_b128 v[28:31], v6 offset:{MLBUF}
        ds_read_b128 v[32:35], v6 offset:{MLBUF+16}
        ds_read_b128 v[36:39], v6 offset:{MLBUF+32}
        ds_read_b32 v24, v7 offset:{MLBUF}
        s_waitcnt lgkmcnt(0)
        v_max3_f32 v7, v28, v30, v32
        v_max3_f32 v7, v7, v34, v36
        v_max_f32 v7, v7, v38
        v_sub_f32 v28, v28, v7
        v_sub_f32 v30, v30, v7
        v_sub_f32 v32, v32, v7
        v_sub_f32 v34, v34, v7
        v_sub_f32 v36, v36, v7
        v_sub_f32 v38, v38, v7
        v_sub_f32 v24, v24, v7
        v_exp_f32 v28, v28
        v_exp_f32 v30, v30
        v_exp_f32 v32, v32
        v_exp_f32 v34, v34
        v_exp_f32 v36, v36
        v_exp_f32 v38, v38
        v_exp_f32 v24, v24
        s_nop 0
        v_mul_f32 v8, v28, v29
        v_fmac_f32 v8, v30, v31
        v_fmac_f32 v8, v32, v33
        v_fmac_f32 v8, v34, v35
        v_fmac_f32 v8, v36, v37
        v_fmac_f32 v8, v38, v39
        v_rcp_f32 v8, v8
        s_nop 0
        v_mul_f32 {vr(dst)}, v24, v8
        """)
    a(f"""
    s_barrier
    buffer_load_dwordx4 v[56:59], v4, s[72:75], s78 offen sc1
    buffer_load_dwordx4 v[60:63], v4, s[72:75], s79 offen sc1
    v_lshrrev_b32 v10, 2, v0
    v_add_u32 v11, 128, v10
    """)
    weightB(10, V_W1)
    a("""
    s_cmp_gt_u32 s11, 3
    s_cbranch_scc1 L_wA
    """)
    weightB(11, V_W2)
    a("s_branch L_wdone")
    a.label("L_wA")
    a(f"""
    v_and_b32 v6, 0x1fe, v11
    v_lshlrev_b32 v6, 3, v6
    v_lshlrev_b32 v7, 3, v11
    ds_read_b128 v[28:31], v6 offset:{MLBUF}
    ds_read_b32 v24, v7 offset:{MLBUF}
    s_waitcnt lgkmcnt(0)
    v_max_f32 v7, v28, v30
    v_sub_f32 v28, v28, v7
    v_sub_f32 v30, v30, v7
    v_sub_f32 v24, v24, v7
    v_exp_f32 v28, v28
    v_exp_f32 v30, v30
    v_exp_f32 v24, v24
    s_nop 0
    v_mul_f32 v8, v28, v29
    v_fmac_f32 v8, v30, v31
    v_rcp_f32 v8, v8
    s_nop 0
    v_mul_f32 {vr(V_W2)}, v24, v8
    """)
    a.label("L_wdone")
    a("s_waitcnt vmcnt(0)")
    a.label("L_chkY")
    a(f"""
    v_max3_u32 v7, v56, v57, v58
    v_max3_u32 v7, v7, v59, v60
    v_max3_u32 v7, v7, v61, v62
    v_max_u32 v7, v7, v63
    v_cmp_eq_u32 vcc, -1, v7
    s_cbranch_vccz L_gotY
    buffer_load_dwordx4 v[56:59], v4, s[72:75], s78 offen sc1
    buffer_load_dwordx4 v[60:63], v4, s[72:75], s79 offen sc1
    s_waitcnt vmcnt(0)
    s_branch L_chkY
    """)
    a.label("L_gotY")
    a.stamp(9)
    for r in range(4):
        a(f"v_mul_f32 v{20+r}, v{56+r}, {vr(V_W1)}")
    for r in range(4):
        a(f"v_mul_f32 v{24+r}, v{60+r}, {vr(V_W2)}")
    a("""
    s_cmp_gt_u32 s11, 3
    s_cbranch_scc1 L_redA
    """)
    for r in range(4):
        a(f"v_add_f32 v{20+r}, v{20+r}, v{24+r}")
    a("s_nop 1")
    for dpp in ("row_shr:4", "row_shr:8"):
        for r in range(4):
            a(f"v_add_f32_dpp v{20+r}, v{20+r}, v{20+r} {dpp} row_mask:0xf bank_mask:0xf bound_ctrl:0")
    a("s_branch L_redW")
    a.label("L_redA")
    for dpp in ("row_shr:4", "row_shr:8"):
        for r in range(8):
            a(f"v_add_f32_dpp v{20+r}, v{20+r}, v{20+r} {dpp} row_mask:0xf bank_mask:0xf bound_ctrl:0")
    a.label("L_redW")
    a(f"""
    v_and_b32 v5, 3, {vr(V_LANE)}
    v_lshlrev_b32 v5, 9, v5
    v_lshl_add_u32 v5, {vr(V_G)}, 2, v5
    s_lshl_b32 s76, s11, 4
    v_add_u32 v5, s76, v5
    s_mov_b32 s78, 0xf000f000
    s_mov_b32 s79, 0xf000f000
    s_mov_b64 exec, s[78:79]
    """)
    for r in range(4):
        a(f"ds_write_b32 v5, v{20+r} offset:{FINB+r*128}")
    a("""
    s_cmp_lt_u32 s11, 4
    s_cbranch_scc1 L_noA
    """)
    a(f"""
    v_and_b32 v6, 3, {vr(V_LANE)}
    v_lshlrev_b32 v6, 8, v6
    v_lshl_add_u32 v6, {vr(V_G)}, 2, v6
    s_lshl_b32 s76, s11, 4
    s_sub_u32 s76, s76, 64
    v_add_u32 v6, s76, v6
    """)
    for r in range(4):
        a(f"ds_write_b32 v6, v{24+r} offset:{FINA+r*64}")
    a.label("L_noA")
    a(f"""
    s_mov_b64 exec, -1
    s_waitcnt lgkmcnt(0)
    s_barrier
    s_cmp_gt_u32 s11, 1
    s_cbranch_scc1 L_end
    s_mov_b32 s88, s36
    s_mov_b32 s89, s37
    s_mov_b32 s90, 2560
    s_mov_b32 s91, 0x00020000
    s_mov_b64 exec, 0xffff
    s_cmp_eq_u32 s11, 1
    s_cbranch_scc1 L_finA
    v_lshlrev_b32 v4, 7, {vr(V_LANE)}
    """)
    for k in range(8):
        a(f"ds_read_b128 {vr(20+4*k,4)}, v4 offset:{FINB+16*k}")
    a("s_waitcnt lgkmcnt(0)")
    regs = list(range(20, 52))
    while len(regs) > 1:
        nxt = []
        for i in range(0, len(regs), 2):
            a(f"v_add_f32 v{regs[i]}, v{regs[i]}, v{regs[i+1]}")
            nxt.append(regs[i])
        regs = nxt
    a("s_movk_i32 s79, 1280")
    a("s_branch L_store")
    a.label("L_finA")
    a(f"v_lshlrev_b32 v4, 6, {vr(V_LANE)}")
    for k in range(4):
        a(f"ds_read_b128 {vr(20+4*k,4)}, v4 offset:{FINA+16*k}")
    a("s_waitcnt lgkmcnt(0)")
    regs = list(range(20, 36))
    while len(regs) > 1:
        nxt = []
        for i in range(0, len(regs), 2):
            a(f"v_add_f32 v{regs[i]}, v{regs[i]}, v{regs[i+1]}")
            nxt.append(regs[i])
        regs = nxt
    a("s_movk_i32 s79, 0")
    a.label("L_store")
    a(f"""
    v_lshrrev_b32 v5, 2, {vr(V_LANE)}
    s_lshl_b32 s76, s2, 2
    v_add_u32 v5, s76, v5
    v_lshrrev_b32 v6, 5, v5
    v_lshlrev_b32 v6, 7, v6
    v_bfe_u32 v7, v5, 3, 2
    v_lshl_add_u32 v6, v7, 5, v6
    v_and_b32 v7, 7, v5
    v_add_u32 v6, v6, v7
    v_and_b32 v7, 3, {vr(V_LANE)}
    v_lshl_add_u32 v6, v7, 3, v6
    v_lshlrev_b32 v6, 1, v6
    v_cvt_pk_bf16_f32 v20, v20, v20
    buffer_store_short v20, v6, s[88:91], s79 offen
    """)
    a.label("L_end")
    if PROF:
        a.stamp(10)
        a(f"""
        s_mov_b64 exec, 1
        s_lshl_b32 s76, s2, 3
        s_add_u32 s76, s76, s11
        s_lshl_b32 s76, s76, 6
        s_add_u32 s76, s76, {4<<20}
        s_add_u32 s92, s40, s76
        s_addc_u32 s93, s41, 0
        v_mov_b32 v4, 0
        """)
        a("v_mov_b32 v20, s13")
        for i in range(1, 12):
            a(f"v_mov_b32 v{20+i}, s{16+i}")
        if DBG:
            a(f"""
            s_cmp_lg_u32 s76, {4<<20}
            s_cbranch_scc1 L_end2
            """)
            for q in range(3):
                a(f"global_store_dwordx4 v4, v[{20+4*q}:{23+4*q}], s[38:39] offset:{16*q}")
        else:
          for q in range(3):
            a(f"global_store_dwordx4 v4, v[{20+4*q}:{23+4*q}], s[92:93] offset:{16*q}")
    a.label("L_end2")
    a("s_endpgm")

    hdr = open("cdna_kernels/" + NAME + ".s.ref").read().split("\n")
    head = []
    for ln in hdr:
        if ln.startswith("; @launch"):
            head.append(f"; @launch grid=(256,1,1) block=(512,1,1) lds={LDS_BYTES}")
            break
        head.append(ln)
    out = "\n".join(head) + "\n"
    out += f""".amdgcn_target "amdgcn-amd-amdhsa--gfx950"
.text
.globl {NAME}_kernel
.p2align 8
.type {NAME}_kernel,@function
{NAME}_kernel:
"""
    t0 = "s_memrealtime s[92:93]\n    s_waitcnt lgkmcnt(0)\n    s_mov_b32 s13, s92" if PROF else ""
    out += a.text().replace("PROF_T0", t0).replace("PROF_CLR", "\n    ".join(f"s_mov_b32 s{16+i}, 0" for i in range(1,12)) if PROF else "")
    out += f""".section .rodata,"a"
.p2align 6
.amdhsa_kernel {NAME}_kernel
  .amdhsa_next_free_vgpr 256
  .amdhsa_next_free_sgpr 102
  .amdhsa_accum_offset 256
  .amdhsa_group_segment_fixed_size 0
  .amdhsa_kernarg_size 104
  .amdhsa_user_sgpr_count 2
  .amdhsa_user_sgpr_kernarg_segment_ptr 1
  .amdhsa_system_sgpr_workgroup_id_x 1
.end_amdhsa_kernel
"""
    return out

if __name__ == "__main__":
    for o in sys.argv[2:]:
        if o == "prof": PROF = True
        elif o == "dbg": PROF = True; DBG = True
        elif o == "wnt": NT_W = " nt"
        elif o == "kvplain": NT_KV = ""
        elif o == "norot": ROT = False
        elif o.startswith("sleep"): POLL_SLEEP = int(o[5:])
    path = sys.argv[1] if len(sys.argv) > 1 else "cdna_kernels/" + NAME + ".s"
    open(path, "w").write(gen())
```

```python
import sys, struct

PROF = False
DBG = False
DBGPROF = False
NT_KV = " nt"
NT_W = ""
ROT = True
POLL_SLEEP = 4
PRIO = 0
NOBAR0 = False
NRED = 40
NAME = "concat_heads__sliding_block_cached__gqa_block_cached__decode"

class A:
    def __init__(self):
        self.l = []
    def __call__(self, s):
        for ln in s.strip("\n").split("\n"):
            if ln.strip():
                self.l.append("    " + ln.strip())
    def stamp(self, i):
        if not PROF: return
        self(f"""
        s_memrealtime s[92:93]
        s_waitcnt lgkmcnt(0)
        s_mov_b32 s{16+i}, s92
        """)
    def label(self, s):
        self.l.append(s + ":")
    def text(self):
        return "\n".join(self.l) + "\n"

def vr(b, n=1):
    return f"v{b}" if n == 1 else f"v[{b}:{b+n-1}]"

QPART = 0
QBUF = 4096
MBUF = 4352
LBUF = 4384
OPART = 4608
YPART = 8704
MLBUF = YPART + 8 * 2560
FINB = MLBUF + 2048
FINA = FINB + 2048
LDS_BYTES = 36864
ML_OFF = 256 * 2560
NREP = 5
WS_BYTES = ML_OFF + NREP * 2048

V_TID = 0
V_LANE = 1
V_N = 2
V_G = 3
V_T0 = 4
V_SELLO = 12
V_SELHI = 16
V_X = 20
V_SC = 20
V_B0 = 44
V_B1 = 48
V_ACC = 52
V_QF = 44
V_OFFA = 60
V_OFFB = 61
V_OFFC = 62
V_OFFD = 63
V_L = 64
V_MC = 65
V_DUMMY = 66
V_CNT = 67
V_OA = 68
V_ML = 72
V_W1 = 74
V_W2 = 75
V_DL = [48, 52, 56, 76]
R1 = 80
R2 = 160

C_SCALE = 0.08838834764831845 * 1.4426950408889634
def f32bits(x):
    return struct.unpack("<I", struct.pack("<f", x))[0]

def body(a, nt):
    L = f"L{nt}"
    a(f"""
    v_lshrrev_b32 {vr(V_OFFB)}, 2, {vr(V_N)}
    v_lshlrev_b32 {vr(V_OFFB)}, 8, {vr(V_OFFB)}
    v_lshl_add_u32 {vr(V_OFFB)}, {vr(V_G)}, 6, {vr(V_OFFB)}
    v_and_b32 {vr(V_OFFC)}, 3, {vr(V_N)}
    v_lshl_add_u32 {vr(V_OFFB)}, {vr(V_OFFC)}, 4, {vr(V_OFFB)}
    s_lshl_b32 s76, s11, 12
    """)
    for u in range(nt):
        for j in range(4):
            a(f"buffer_load_dwordx4 {vr(R2+16*u+4*j,4)}, {vr(V_OFFB)}, s[56:59], s76 offen offset:{j*1024}{NT_KV}")
        if u < nt - 1:
            a("s_add_u32 s76, s76, 32768")
    nK = 4 * nt
    nC = 0
    a(f"""
    v_lshlrev_b32 {vr(V_OFFC)}, 4, {vr(V_LANE)}
    s_mul_i32 s76, s11, {4*1280}
    v_mul_u32_u24 {vr(V_OFFD)}, 1280, {vr(V_G)}
    v_lshl_add_u32 {vr(V_OFFD)}, {vr(V_N)}, 4, {vr(V_OFFD)}
    v_add_u32 {vr(V_OFFD)}, s76, {vr(V_OFFD)}
    """)
    a.stamp(1)
    a(f"""
    v_and_b32 {vr(V_T0+8)}, 1, {vr(V_N)}
    v_cmp_eq_u32 vcc, 1, {vr(V_T0+8)}
    v_mov_b32 {vr(V_B0+1)}, 0x0c0c0100
    v_mov_b32 {vr(V_B0+2)}, 0x01000c0c
    v_mov_b32 {vr(V_B0+3)}, 0x0c0c0302
    v_mov_b32 {vr(V_B0+4)}, 0x03020c0c
    v_cndmask_b32 {vr(V_B0+1)}, {vr(V_B0+1)}, {vr(V_B0+2)}, vcc
    v_cndmask_b32 {vr(V_B0+3)}, {vr(V_B0+3)}, {vr(V_B0+4)}, vcc
    v_lshrrev_b32 {vr(V_B0)}, 1, {vr(V_N)}
    v_mov_b32 {vr(V_B0+2)}, 0x0c0c0c0c
    """)
    for c in range(4):
        a(f"""
        v_cmp_eq_u32 vcc, {c}, {vr(V_B0)}
        s_nop 1
        v_cndmask_b32 {vr(V_SELLO+c)}, {vr(V_B0+2)}, {vr(V_B0+1)}, vcc
        v_cndmask_b32 {vr(V_SELHI+c)}, {vr(V_B0+2)}, {vr(V_B0+3)}, vcc
        """)
    a(f"""
    v_and_b32 {vr(V_B0)}, 7, {vr(V_N)}
    v_lshlrev_b32 {vr(V_B0)}, 9, {vr(V_B0)}
    v_lshl_add_u32 {vr(V_B0)}, {vr(V_G)}, 2, {vr(V_B0)}
    s_lshl_b32 s76, s11, 4
    v_add_u32 {vr(V_B0)}, s76, {vr(V_B0)}
    """)
    for t in range(4):
        a(f"""
        s_add_u32 s76, s15, {t}
        s_and_b32 s76, s76, 3
        s_lshl_b32 s76, s76, 7
        v_add_u32 {vr(V_OA+t)}, s76, {vr(V_B0)}
        """)
    a(f"s_waitcnt vmcnt({nK+nC})")
    def buildB(dst, src, hi):
        sel = V_SELHI if hi else V_SELLO
        for c in range(4):
            a(f"v_perm_b32 {vr(dst+c)}, {vr(src)}, {vr(src)}, {vr(sel+c)}")
    buildB(V_B0, V_X, 0)
    for t in range(20):
        cur = V_B0 if t % 2 == 0 else V_B1
        nxt = V_B1 if t % 2 == 0 else V_B0
        if t < 19:
            buildB(nxt, V_X + (t + 1) // 2, (t + 1) % 2)
        else:
            a("s_nop 1")
        c = "0" if t == 0 else vr(V_ACC, 4)
        a(f"v_mfma_f32_16x16x32_bf16 {vr(V_ACC,4)}, {vr(R1+4*t,4)}, {vr(cur,4)}, {c}")
    a.stamp(2)
    a(f"""
    v_lshlrev_b32 {vr(V_T0)}, 3, {vr(V_G)}
    v_add_u32 {vr(V_T0)}, {vr(V_T0)}, {vr(V_N)}
    v_lshlrev_b32 {vr(V_T0)}, 4, {vr(V_T0)}
    s_lshl_b32 s76, s11, 9
    v_add_u32 {vr(V_T0)}, s76, {vr(V_T0)}
    s_nop 4
    s_mov_b64 exec, s[80:81]
    ds_write_b128 {vr(V_T0)}, {vr(V_ACC,4)} offset:{QPART}
    s_mov_b64 exec, -1
    s_waitcnt lgkmcnt(0)
    s_barrier
    s_cmp_lg_u32 s11, 2
    s_cbranch_scc1 {L}_noflag
    v_mov_b32 v9, 1
    v_mov_b32 v10, s2
    s_mov_b64 exec, 1
    global_store_byte v10, v9, s[38:39] sc1
    s_mov_b64 exec, -1
    """)
    a.label(f"{L}_noflag")
    a(f"""
    s_cmp_ge_u32 s11, 2
    s_cbranch_scc1 {L}_qskip
    v_lshrrev_b32 {vr(V_T0)}, 5, {vr(V_TID)}
    v_lshlrev_b32 {vr(V_T0)}, 7, {vr(V_T0)}
    v_and_b32 {vr(V_T0+1)}, 7, {vr(V_TID)}
    v_lshl_add_u32 {vr(V_T0)}, {vr(V_T0+1)}, 4, {vr(V_T0)}
    v_bfe_u32 {vr(V_T0+1)}, {vr(V_TID)}, 3, 2
    v_lshl_add_u32 {vr(V_T0)}, {vr(V_T0+1)}, 2, {vr(V_T0)}
    """)
    for w in range(8):
        a(f"ds_read_b32 {vr(V_QF+w)}, {vr(V_T0)} offset:{QPART+w*512}")
    a("s_waitcnt lgkmcnt(0)")
    a(f"""
    v_add_f32 {vr(V_QF)}, {vr(V_QF)}, {vr(V_QF+1)}
    v_add_f32 {vr(V_QF+2)}, {vr(V_QF+2)}, {vr(V_QF+3)}
    v_add_f32 {vr(V_QF+4)}, {vr(V_QF+4)}, {vr(V_QF+5)}
    v_add_f32 {vr(V_QF+6)}, {vr(V_QF+6)}, {vr(V_QF+7)}
    v_add_f32 {vr(V_QF)}, {vr(V_QF)}, {vr(V_QF+2)}
    v_add_f32 {vr(V_QF+4)}, {vr(V_QF+4)}, {vr(V_QF+6)}
    v_add_f32 {vr(V_QF)}, {vr(V_QF)}, {vr(V_QF+4)}
    v_cvt_pk_bf16_f32 {vr(V_QF)}, {vr(V_QF)}, {vr(V_QF)}
    v_lshlrev_b32 {vr(V_T0)}, 1, {vr(V_TID)}
    ds_write_b16 {vr(V_T0)}, {vr(V_QF)} offset:{QBUF}
    s_waitcnt lgkmcnt(0)
    """)
    a.label(f"{L}_qskip")
    a(f"""
    s_barrier
    v_and_b32 {vr(V_T0)}, 3, {vr(V_N)}
    v_lshl_add_u32 {vr(V_T0)}, {vr(V_G)}, 2, {vr(V_T0)}
    v_lshlrev_b32 {vr(V_T0)}, 4, {vr(V_T0)}
    """)
    a(f"ds_read_b128 {vr(V_QF,4)}, {vr(V_T0)} offset:{QBUF}")
    for t in range(4):
        a(f"""
        s_add_u32 s76, s15, {t}
        s_and_b32 s76, s76, 3
        s_mul_i32 s76, s76, 40960
        """)
        for cb in range(5):
            a(f"buffer_load_dwordx4 {vr(R1+4*(t*5+cb),4)}, {vr(V_OFFD)}, s[64:67], s76 offen offset:{cb*256}{NT_W}")
    a("s_waitcnt lgkmcnt(0)")
    a.stamp(3)
    def qk_reduce(u):
        a("s_nop 1")
        for j in range(4):
            a(f"v_mov_b32_dpp {vr(V_SC+4*u+j)}, {vr(V_DL[j])} quad_perm:[0,0,0,0] row_mask:0xf bank_mask:0xf")
        for r in range(1, 4):
            for j in range(4):
                a(f"v_add_f32_dpp {vr(V_SC+4*u+j)}, {vr(V_DL[j]+r)}, {vr(V_SC+4*u+j)} quad_perm:[{r},{r},{r},{r}] row_mask:0xf bank_mask:0xf")
    a("s_lshl_b32 s76, s11, 12")
    for u in range(nt):
        a(f"s_waitcnt vmcnt({4*(nt-1-u)+nC+20+4*u})")
        for j in range(4):
            a(f"v_mfma_f32_16x16x32_bf16 {vr(V_DL[j],4)}, {vr(R2+16*u+4*j,4)}, {vr(V_QF,4)}, 0")
        for r in range(4):
            a(f"buffer_load_dwordx4 {vr(R2+16*u+4*r,4)}, {vr(V_OFFC)}, s[60:63], s76 offen offset:{r*1024}{NT_KV}")
        qk_reduce(u)
        if u < nt - 1:
            a("s_add_u32 s76, s76, 32768")
    a.stamp(4)
    n = 4 * nt
    a(f"v_max3_f32 {vr(V_T0)}, {vr(V_SC)}, {vr(V_SC+1)}, {vr(V_SC+2)}")
    k = 3
    while k < n:
        if k + 1 < n:
            a(f"v_max3_f32 {vr(V_T0)}, {vr(V_T0)}, {vr(V_SC+k)}, {vr(V_SC+k+1)}")
            k += 2
        else:
            a(f"v_max_f32 {vr(V_T0)}, {vr(V_T0)}, {vr(V_SC+k)}")
            k += 1
    a(f"""
    s_nop 0
    v_readlane_b32 s76, {vr(V_T0)}, 0
    v_readlane_b32 s77, {vr(V_T0)}, 16
    v_readlane_b32 s78, {vr(V_T0)}, 32
    v_readlane_b32 s79, {vr(V_T0)}, 48
    s_nop 1
    v_mov_b32 {vr(V_T0)}, s76
    v_max_f32 {vr(V_T0)}, s77, {vr(V_T0)}
    v_max_f32 {vr(V_T0)}, s78, {vr(V_T0)}
    v_max_f32 {vr(V_T0)}, s79, {vr(V_T0)}
    s_lshl_b32 s76, s11, 2
    v_mov_b32 {vr(V_T0+1)}, s76
    ds_write_b32 {vr(V_T0+1)}, {vr(V_T0)} offset:{MBUF}
    s_waitcnt lgkmcnt(0)
    s_barrier
    v_mov_b32 {vr(V_T0+1)}, 0
    ds_read_b128 {vr(V_QF,4)}, {vr(V_T0+1)} offset:{MBUF}
    ds_read_b128 {vr(V_QF+4,4)}, {vr(V_T0+1)} offset:{MBUF+16}
    s_waitcnt lgkmcnt(0)
    v_max3_f32 {vr(V_T0)}, {vr(V_QF)}, {vr(V_QF+1)}, {vr(V_QF+2)}
    v_max3_f32 {vr(V_T0)}, {vr(V_T0)}, {vr(V_QF+3)}, {vr(V_QF+4)}
    v_max3_f32 {vr(V_T0)}, {vr(V_T0)}, {vr(V_QF+5)}, {vr(V_QF+6)}
    v_max_f32 {vr(V_T0)}, {vr(V_T0)}, {vr(V_QF+7)}
    v_mul_f32 {vr(V_MC)}, s82, {vr(V_T0)}
    """)
    for k in range(n):
        a(f"v_fma_f32 {vr(V_SC+k)}, {vr(V_SC+k)}, s82, -{vr(V_MC)}")
    for k in range(n):
        a(f"v_exp_f32 {vr(V_SC+k)}, {vr(V_SC+k)}")
    a("s_nop 0")
    a(f"v_add_f32 {vr(V_L)}, {vr(V_SC)}, {vr(V_SC+1)}")
    for k in range(2, n):
        a(f"v_add_f32 {vr(V_L)}, {vr(V_L)}, {vr(V_SC+k)}")
    a(f"""
    s_lshl_b32 s76, s11, 4
    v_lshlrev_b32 {vr(V_T0)}, 2, {vr(V_G)}
    v_add_u32 {vr(V_T0)}, s76, {vr(V_T0)}
    s_mov_b64 exec, s[84:85]
    ds_write_b32 {vr(V_T0)}, {vr(V_L)} offset:{LBUF}
    s_mov_b64 exec, -1
    """)
    for k in range(0, n, 2):
        a(f"v_cvt_pk_bf16_f32 {vr(V_SC+k)}, {vr(V_SC+k)}, {vr(V_SC+k+1)}")
    a(f"""
    s_waitcnt lgkmcnt(0)
    s_barrier
    v_lshlrev_b32 v4, 2, {vr(V_LANE)}
    v_and_b32 v4, 127, v4
    ds_read_b32 v5, v4 offset:{LBUF}
    s_waitcnt lgkmcnt(0)
    s_nop 1
    v_add_f32_dpp v5, v5, v5 quad_perm:[1,0,3,2] row_mask:0xf bank_mask:0xf
    s_nop 1
    v_add_f32_dpp v5, v5, v5 quad_perm:[2,3,0,1] row_mask:0xf bank_mask:0xf
    s_nop 1
    v_add_f32_dpp v5, v5, v5 row_half_mirror row_mask:0xf bank_mask:0xf
    s_nop 1
    v_add_f32_dpp v5, v5, v5 row_mirror row_mask:0xf bank_mask:0xf
    s_nop 1
    v_readlane_b32 s76, v5, 16
    s_nop 1
    v_add_f32 v5, s76, v5
    v_min_u32 {vr(V_ML)}, 0xfffffffe, {vr(V_MC)}
    v_min_u32 {vr(V_ML+1)}, 0xfffffffe, v5
    """)
    a.stamp(5)
    def psrc(u, r):
        return V_SC + 4 * u + (r // 2) * 2, r % 2
    seq = [(u, r) for u in range(nt) for r in range(4)]
    s0, h0 = psrc(*seq[0])
    buildB(V_B0, s0, h0)
    nV = 4 * nt
    for idx, (u, r) in enumerate(seq):
        cur = V_B0 if idx % 2 == 0 else V_B1
        nxt = V_B1 if idx % 2 == 0 else V_B0
        if idx + 1 < len(seq):
            s1, h1 = psrc(*seq[idx + 1])
            buildB(nxt, s1, h1)
        else:
            a("s_nop 1")
        a(f"s_waitcnt vmcnt({nV-1-idx})")
        c = "0" if idx == 0 else vr(V_ACC, 4)
        a(f"v_mfma_f32_16x16x32_bf16 {vr(V_ACC,4)}, {vr(R2+16*u+4*r,4)}, {vr(cur,4)}, {c}")
    a.stamp(6)
    a("s_branch L_tail")

def gen():
    a = A()
    a(f"""
    s_cmp_ge_u32 s2, 256
    s_cbranch_scc1 L_end2
    s_load_dwordx16 s[16:31], s[0:1], 0
    s_load_dwordx8 s[32:39], s[0:1], 64
    s_load_dwordx2 s[40:41], s[0:1], 96
    PROF_T0
    s_and_b32 s3, s2, 7
    s_lshr_b32 s4, s2, 3
    v_lshrrev_b32 v1, 6, v0
    v_and_b32 v0, 0x3ff, v0
    v_readfirstlane_b32 s11, v1
    v_and_b32 {vr(V_LANE)}, 63, v0
    v_and_b32 {vr(V_N)}, 15, {vr(V_LANE)}
    v_lshrrev_b32 {vr(V_G)}, 4, {vr(V_LANE)}
    s_mul_i32 s5, s4, 43
    s_lshr_b32 s5, s5, 8
    s_mul_i32 s6, s5, 6
    s_sub_u32 s6, s4, s6
    s_cmp_lt_u32 s6, 4
    s_cselect_b32 s7, 43, 42
    s_mul_i32 s8, s6, 43
    s_max_u32 s76, s6, 4
    s_sub_u32 s76, s76, 4
    s_sub_u32 s8, s8, s76
    s_lshl_b32 s8, s8, 4
    s_sub_u32 s77, s4, 24
    s_lshr_b32 s78, s77, 1
    s_and_b32 s79, s77, 1
    s_lshl_b32 s80, s79, 9
    s_add_u32 s80, s80, 3072
    s_cmp_lt_u32 s4, 24
    s_cselect_b32 s5, s5, s78
    s_cselect_b32 s6, s6, s79
    s_cselect_b32 s7, s7, 32
    s_cselect_b32 s8, s8, s80
    s_cselect_b32 s12, 1, 0
    s_lshl_b32 s9, s3, 2
    s_add_u32 s9, s9, s5
    s_mul_i32 s10, s9, 6
    s_add_u32 s10, s10, s6
    s_lshl_b32 s76, s9, 1
    s_add_u32 s76, s76, s6
    s_add_u32 s76, s76, 192
    s_cmp_eq_u32 s12, 1
    s_cselect_b32 s10, s10, s76
    s_mul_i32 s14, s6, 10
    s_add_u32 s14, s14, 3
    s_mul_i32 s14, s14, 43
    s_lshr_b32 s14, s14, 8
    s_lshl_b32 s14, s14, 1
    s_mul_i32 s76, s6, 10
    s_and_b32 s15, s6, 3
    s_lshl_b32 s77, s6, 1
    s_cmp_eq_u32 s12, 1
    s_cselect_b32 s14, s14, s76
    s_cselect_b32 s15, s15, s77
    {"" if ROT else "s_mov_b32 s14, 0"}
    {"" if ROT else "s_mov_b32 s15, 0"}
    s_mov_b32 s80, 0x00ff00ff
    s_mov_b32 s81, 0x00ff00ff
    s_mov_b32 s82, 0x{f32bits(C_SCALE):08x}
    s_mov_b32 s84, 0x00010001
    s_mov_b32 s85, 0x00010001
    s_mov_b32 s55, 0x00020000
    s_mov_b32 s59, 0x00020000
    s_mov_b32 s63, 0x00020000
    s_mov_b32 s67, 0x00020000
    s_mov_b32 s71, 0x00020000
    s_mov_b32 s75, 0x00020000
    s_mov_b32 s70, 1280
    s_mov_b32 s66, 163840
    s_mov_b32 s74, {WS_BYTES}
    s_lshl_b32 s58, s7, 12
    s_mov_b32 s62, s58
    s_mul_i32 s76, s11, 160
    v_mul_u32_u24 v10, 40, {vr(V_G)}
    v_add_u32 v10, s76, v10
    s_mul_i32 s76, s11, {80*8192}
    s_mov_b32 s77, {20*8192}
    v_mul_lo_u32 {vr(V_OFFA)}, s77, {vr(V_G)}
    v_lshl_add_u32 {vr(V_OFFA)}, {vr(V_N)}, 4, {vr(V_OFFA)}
    v_add_u32 {vr(V_OFFA)}, s76, {vr(V_OFFA)}
    s_lshl_b32 s78, s9, 8
    s_sub_u32 s54, {640*8192}, s78
    s_waitcnt lgkmcnt(0)
    s_cmp_eq_u32 s12, 1
    s_cselect_b64 s[48:49], s[32:33], s[22:23]
    s_cselect_b64 s[68:69], s[26:27], s[16:17]
    s_cselect_b64 s[44:45], s[28:29], s[18:19]
    s_cselect_b64 s[46:47], s[30:31], s[20:21]
    s_cselect_b64 s[50:51], s[34:35], s[24:25]
    s_add_u32 s52, s48, s78
    s_addc_u32 s53, s49, 0
    s_lshl_b32 s76, s14, 13
    """)
    for t in range(20):
        a(f"buffer_load_dwordx4 {vr(R1+4*t,4)}, {vr(V_OFFA)}, s[52:55], s76 offen{NT_W}")
        if t < 19:
            a("s_add_u32 s76, s76, 8192\ns_cmp_eq_u32 s76, 163840\ns_cselect_b32 s76, 0, s76")
    XL = []
    a("s_lshl_b32 s76, s14, 1")
    for k in range(10):
        a(f"buffer_load_dword {vr(V_X+k)}, v10, s[68:71], s76 offen")
        if k < 9:
            a("s_add_u32 s76, s76, 4\ns_cmp_eq_u32 s76, 40\ns_cselect_b32 s76, 0, s76")
    a(f"""
    s_lshl_b32 s76, s9, 20
    s_lshl_b32 s77, s8, 8
    s_add_u32 s76, s76, s77
    s_add_u32 s56, s44, s76
    s_addc_u32 s57, s45, 0
    s_add_u32 s60, s46, s76
    s_addc_u32 s61, s47, 0
    s_mul_i32 s76, s9, 163840
    s_add_u32 s64, s50, s76
    s_addc_u32 s65, s51, 0
    s_mov_b32 s72, s40
    s_mov_b32 s73, s41
    v_mov_b32 v4, -1
    v_mov_b32 v5, -1
    v_mov_b32 v6, -1
    v_mov_b32 v7, -1
    s_mul_i32 s77, s11, 20
    v_add_u32 v8, s77, {vr(V_LANE)}
    v_lshrrev_b32 v9, 2, v8
    v_and_b32 v8, 3, v8
    v_lshlrev_b32 v8, 4, v8
    v_lshl_add_u32 v8, v9, 14, v8
    s_lshl_b32 s76, s10, 6
    s_mov_b64 exec, 0xfffff
    buffer_store_dwordx4 v[4:7], v8, s[72:75], s76 offen sc1
    s_mov_b64 exec, -1
    s_cmp_lg_u32 s11, 0
    s_cbranch_scc1 L_noclr
    v_lshlrev_b32 v9, 11, {vr(V_LANE)}
    s_lshl_b32 s76, s10, 3
    s_add_u32 s76, s76, {ML_OFF}
    s_mov_b64 exec, {(1<<NREP)-1}
    buffer_store_dwordx2 v[4:5], v9, s[72:75], s76 offen sc1
    s_mov_b64 exec, -1
L_noclr:
    PROF_CLR
    s_sub_u32 s76, s7, s11
    s_add_u32 s76, s76, 7
    s_lshr_b32 s76, s76, 3
    PRIOBLK
    BAR0
    s_cmp_eq_u32 s76, 6
    s_cbranch_scc1 L6_start
    s_cmp_eq_u32 s76, 5
    s_cbranch_scc1 L5_start
    """)
    for nt in (4, 5, 6):
        a.label(f"L{nt}_start")
        body(a, nt)
    a.label("L_tail")
    def buildB(dst, src, hi):
        sel = V_SELHI if hi else V_SELLO
        for c in range(4):
            a(f"v_perm_b32 {vr(dst+c)}, {vr(src)}, {vr(src)}, {vr(sel+c)}")
    a(f"""
    v_lshlrev_b32 {vr(V_T0)}, 5, {vr(V_G)}
    v_add_u32 {vr(V_T0)}, {vr(V_T0)}, {vr(V_N)}
    v_lshlrev_b32 {vr(V_T0)}, 2, {vr(V_T0)}
    s_lshl_b32 s76, s11, 9
    v_add_u32 {vr(V_T0)}, s76, {vr(V_T0)}
    s_nop 4
    s_mov_b64 exec, s[80:81]
    """)
    for r in range(4):
        a(f"ds_write_b32 {vr(V_T0)}, {vr(V_ACC+r)} offset:{OPART+r*32}")
    a(f"""
    s_mov_b64 exec, -1
    s_cmp_lg_u32 s11, 7
    s_cbranch_scc1 L_nomlst
    v_lshlrev_b32 v9, 11, {vr(V_LANE)}
    s_lshl_b32 s76, s10, 3
    s_add_u32 s76, s76, {ML_OFF}
    s_mov_b64 exec, {(1<<NREP)-1}
    buffer_store_dwordx2 {vr(V_ML,2)}, v9, s[72:75], s76 offen sc1
    s_mov_b64 exec, -1
L_nomlst:
    s_cmp_ge_u32 s2, {NRED}
    s_cbranch_scc1 L_nopre
    v_lshlrev_b32 v9, 2, {vr(V_LANE)}
    global_load_dword {vr(V_CNT)}, v9, s[38:39] sc1
    """)
    if DBG:
        a.label("L_dchk")
        a(f"""
        s_waitcnt vmcnt(0)
        v_cmp_ne_u32 vcc, 0x01010101, {vr(V_CNT)}
        s_cbranch_vccz L_nopre
        global_load_dword {vr(V_CNT)}, v9, s[38:39] sc1
        s_branch L_dchk
        """)
    a.label("L_nopre")
    a("s_waitcnt lgkmcnt(0)")
    a("s_barrier")
    for t in range(4):
        a(f"ds_read_b32 {vr(V_T0+4+t)}, {vr(V_OA+t)} offset:{OPART}")
    a("s_waitcnt lgkmcnt(0)")
    for dpp in ["quad_perm:[1,0,3,2]", "quad_perm:[2,3,0,1]", "row_half_mirror"]:
        for t in range(4):
            a(f"v_add_f32_dpp {vr(V_T0+4+t)}, {vr(V_T0+4+t)}, {vr(V_T0+4+t)} {dpp} row_mask:0xf bank_mask:0xf")
    a(f"""
    v_cvt_pk_bf16_f32 {vr(V_T0+4)}, {vr(V_T0+4)}, {vr(V_T0+5)}
    v_cvt_pk_bf16_f32 {vr(V_T0+6)}, {vr(V_T0+6)}, {vr(V_T0+7)}
    """)
    VB = 20
    VY = 36
    for t in range(4):
        buildB(VB + 4 * t, V_T0 + 4 + (t // 2) * 2, t % 2)
    for t in range(4):
        for cb in range(5):
            c = "0" if t == 0 else vr(VY + 4 * cb, 4)
            a(f"v_mfma_f32_16x16x32_bf16 {vr(VY+4*cb,4)}, {vr(R1+4*(t*5+cb),4)}, {vr(VB+4*t,4)}, {c}")
    a(f"""
    v_lshlrev_b32 {vr(V_T0)}, 3, {vr(V_G)}
    v_add_u32 {vr(V_T0)}, {vr(V_T0)}, {vr(V_N)}
    v_lshlrev_b32 {vr(V_T0)}, 4, {vr(V_T0)}
    s_mul_i32 s76, s11, 2560
    v_add_u32 {vr(V_T0)}, s76, {vr(V_T0)}
    s_nop 4
    s_mov_b64 exec, s[80:81]
    """)
    for cb in range(5):
        a(f"ds_write_b128 {vr(V_T0)}, {vr(VY+4*cb,4)} offset:{YPART+cb*512}")
    a(f"""
    s_mov_b64 exec, -1
    s_waitcnt lgkmcnt(0)
    s_barrier
    """)
    a.stamp(7)
    a(f"""
    s_cmp_gt_u32 s11, 2
    s_cbranch_scc1 L_after_store
    v_cmp_gt_u32 vcc, 160, v0
    s_and_saveexec_b64 s[86:87], vcc
    s_cbranch_execz L_tail_y_done
    v_lshlrev_b32 v4, 4, v0
    v_lshrrev_b32 v5, 2, v0
    v_and_b32 v6, 3, v0
    v_lshlrev_b32 v6, 4, v6
    v_lshl_add_u32 v5, v5, 14, v6
    """)
    for w in range(8):
        a(f"ds_read_b128 {vr(20+4*w,4)}, v4 offset:{YPART+w*2560}")
    a("s_waitcnt lgkmcnt(0)")
    for r in range(4):
        a(f"v_add_f32 v{20+r}, v{20+r}, v{24+r}")
        a(f"v_add_f32 v{28+r}, v{28+r}, v{32+r}")
        a(f"v_add_f32 v{36+r}, v{36+r}, v{40+r}")
        a(f"v_add_f32 v{44+r}, v{44+r}, v{48+r}")
    for r in range(4):
        a(f"v_add_f32 v{20+r}, v{20+r}, v{28+r}")
        a(f"v_add_f32 v{36+r}, v{36+r}, v{44+r}")
    for r in range(4):
        a(f"v_add_f32 v{20+r}, v{20+r}, v{36+r}")
    for r in range(4):
        a(f"v_min_u32 v{20+r}, 0xfffffffe, v{20+r}")
    a(f"""
    s_lshl_b32 s76, s10, 6
    buffer_store_dwordx4 v[20:23], v5, s[72:75], s76 offen sc1
    """)
    a.label("L_tail_y_done")
    a("s_mov_b64 exec, s[86:87]")
    a.label("L_after_store")
    a.stamp(8)
    a(f"""
    s_cmp_ge_u32 s2, {NRED}
    s_cbranch_scc1 L_end
    v_lshlrev_b32 v8, 2, {vr(V_LANE)}
    s_waitcnt vmcnt(1)
    s_cmp_lt_u32 s11, 3
    s_cbranch_scc1 L_chkc
    s_waitcnt vmcnt(0)
    """)
    a.label("L_chkc")
    a(f"""
    v_cmp_ne_u32 vcc, 0x01010101, {vr(V_CNT)}
    s_cbranch_vccz L_clr_ok
    global_load_dword {vr(V_CNT)}, v8, s[38:39] sc1
    s_waitcnt vmcnt(0)
    s_branch L_chkc
    """)
    a.label("L_clr_ok")
    a(f"""
    v_lshlrev_b32 v4, 4, v0
    s_lshl_b32 s78, s2, 14
    s_add_u32 s79, s78, 8192
    """)
    a(f"""
    s_cmp_gt_u32 s11, 3
    s_cbranch_scc1 L_ml_done
    v_lshlrev_b32 v9, 3, v0
    s_mul_i32 s76, s2, 52
    s_lshr_b32 s76, s76, 8
    s_mul_i32 s76, s76, 5
    s_sub_u32 s76, s2, s76
    s_lshl_b32 s76, s76, 11
    s_add_u32 s77, s76, {ML_OFF}
    """)
    a.label("L_mlpoll")
    a(f"""
    buffer_load_dwordx2 {vr(V_ML,2)}, v9, s[72:75], s77 offen sc1
    s_waitcnt vmcnt(0)
    v_max_u32 v7, {vr(V_ML)}, {vr(V_ML+1)}
    v_cmp_eq_u32 vcc, -1, v7
    s_cbranch_vccz L_mlok
    s_sleep {POLL_SLEEP}
    s_branch L_mlpoll
    """)
    a.label("L_mlok")
    a(f"""
    ds_write_b64 v9, {vr(V_ML,2)} offset:{MLBUF}
    s_waitcnt lgkmcnt(0)
    """)
    a.label("L_ml_done")
    def weightB(vslot, dst):
        a(f"""
        v_mul_u32_u24 v6, 171, {vr(vslot)}
        v_lshrrev_b32 v6, 10, v6
        v_mul_u32_u24 v6, 48, v6
        v_lshlrev_b32 v7, 3, {vr(vslot)}
        ds_read_b128 v[28:31], v6 offset:{MLBUF}
        ds_read_b128 v[32:35], v6 offset:{MLBUF+16}
        ds_read_b128 v[36:39], v6 offset:{MLBUF+32}
        ds_read_b32 v24, v7 offset:{MLBUF}
        s_waitcnt lgkmcnt(0)
        v_max3_f32 v7, v28, v30, v32
        v_max3_f32 v7, v7, v34, v36
        v_max_f32 v7, v7, v38
        v_sub_f32 v28, v28, v7
        v_sub_f32 v30, v30, v7
        v_sub_f32 v32, v32, v7
        v_sub_f32 v34, v34, v7
        v_sub_f32 v36, v36, v7
        v_sub_f32 v38, v38, v7
        v_sub_f32 v24, v24, v7
        v_exp_f32 v28, v28
        v_exp_f32 v30, v30
        v_exp_f32 v32, v32
        v_exp_f32 v34, v34
        v_exp_f32 v36, v36
        v_exp_f32 v38, v38
        v_exp_f32 v24, v24
        s_nop 0
        v_mul_f32 v8, v28, v29
        v_fmac_f32 v8, v30, v31
        v_fmac_f32 v8, v32, v33
        v_fmac_f32 v8, v34, v35
        v_fmac_f32 v8, v36, v37
        v_fmac_f32 v8, v38, v39
        v_rcp_f32 v8, v8
        s_nop 0
        v_mul_f32 {vr(dst)}, v24, v8
        """)
    a(f"""
    s_barrier
    buffer_load_dwordx4 v[56:59], v4, s[72:75], s78 offen sc1
    buffer_load_dwordx4 v[60:63], v4, s[72:75], s79 offen sc1
    v_lshrrev_b32 v10, 2, v0
    v_add_u32 v11, 128, v10
    """)
    weightB(10, V_W1)
    a("""
    s_cmp_gt_u32 s11, 3
    s_cbranch_scc1 L_wA
    """)
    weightB(11, V_W2)
    a("s_branch L_wdone")
    a.label("L_wA")
    a(f"""
    v_and_b32 v6, 0x1fe, v11
    v_lshlrev_b32 v6, 3, v6
    v_lshlrev_b32 v7, 3, v11
    ds_read_b128 v[28:31], v6 offset:{MLBUF}
    ds_read_b32 v24, v7 offset:{MLBUF}
    s_waitcnt lgkmcnt(0)
    v_max_f32 v7, v28, v30
    v_sub_f32 v28, v28, v7
    v_sub_f32 v30, v30, v7
    v_sub_f32 v24, v24, v7
    v_exp_f32 v28, v28
    v_exp_f32 v30, v30
    v_exp_f32 v24, v24
    s_nop 0
    v_mul_f32 v8, v28, v29
    v_fmac_f32 v8, v30, v31
    v_rcp_f32 v8, v8
    s_nop 0
    v_mul_f32 {vr(V_W2)}, v24, v8
    """)
    a.label("L_wdone")
    a("s_waitcnt vmcnt(0)")
    a.label("L_chkY")
    a(f"""
    v_max3_u32 v7, v56, v57, v58
    v_max3_u32 v7, v7, v59, v60
    v_max3_u32 v7, v7, v61, v62
    v_max_u32 v7, v7, v63
    v_cmp_eq_u32 vcc, -1, v7
    s_cbranch_vccz L_gotY
    buffer_load_dwordx4 v[56:59], v4, s[72:75], s78 offen sc1
    buffer_load_dwordx4 v[60:63], v4, s[72:75], s79 offen sc1
    s_waitcnt vmcnt(0)
    s_branch L_chkY
    """)
    a.label("L_gotY")
    a.stamp(9)
    for r in range(4):
        a(f"v_mul_f32 v{20+r}, v{56+r}, {vr(V_W1)}")
    for r in range(4):
        a(f"v_mul_f32 v{24+r}, v{60+r}, {vr(V_W2)}")
    a("""
    s_cmp_gt_u32 s11, 3
    s_cbranch_scc1 L_redA
    """)
    for r in range(4):
        a(f"v_add_f32 v{20+r}, v{20+r}, v{24+r}")
    a("s_nop 1")
    for dpp in ("row_shr:4", "row_shr:8"):
        for r in range(4):
            a(f"v_add_f32_dpp v{20+r}, v{20+r}, v{20+r} {dpp} row_mask:0xf bank_mask:0xf bound_ctrl:0")
    a("s_branch L_redW")
    a.label("L_redA")
    for dpp in ("row_shr:4", "row_shr:8"):
        for r in range(8):
            a(f"v_add_f32_dpp v{20+r}, v{20+r}, v{20+r} {dpp} row_mask:0xf bank_mask:0xf bound_ctrl:0")
    a.label("L_redW")
    a(f"""
    v_and_b32 v5, 3, {vr(V_LANE)}
    v_lshlrev_b32 v5, 9, v5
    v_lshl_add_u32 v5, {vr(V_G)}, 2, v5
    s_lshl_b32 s76, s11, 4
    v_add_u32 v5, s76, v5
    s_mov_b32 s78, 0xf000f000
    s_mov_b32 s79, 0xf000f000
    s_mov_b64 exec, s[78:79]
    """)
    for r in range(4):
        a(f"ds_write_b32 v5, v{20+r} offset:{FINB+r*128}")
    a("""
    s_cmp_lt_u32 s11, 4
    s_cbranch_scc1 L_noA
    """)
    a(f"""
    v_and_b32 v6, 3, {vr(V_LANE)}
    v_lshlrev_b32 v6, 8, v6
    v_lshl_add_u32 v6, {vr(V_G)}, 2, v6
    s_lshl_b32 s76, s11, 4
    s_sub_u32 s76, s76, 64
    v_add_u32 v6, s76, v6
    """)
    for r in range(4):
        a(f"ds_write_b32 v6, v{24+r} offset:{FINA+r*64}")
    a.label("L_noA")
    a(f"""
    s_mov_b64 exec, -1
    s_waitcnt lgkmcnt(0)
    s_barrier
    s_cmp_gt_u32 s11, 1
    s_cbranch_scc1 L_end
    s_mov_b32 s88, s36
    s_mov_b32 s89, s37
    s_mov_b32 s90, 2560
    s_mov_b32 s91, 0x00020000
    s_mov_b64 exec, 0xffff
    s_cmp_eq_u32 s11, 1
    s_cbranch_scc1 L_finA
    v_lshlrev_b32 v4, 7, {vr(V_LANE)}
    """)
    for k in range(8):
        a(f"ds_read_b128 {vr(20+4*k,4)}, v4 offset:{FINB+16*k}")
    a("s_waitcnt lgkmcnt(0)")
    regs = list(range(20, 52))
    while len(regs) > 1:
        nxt = []
        for i in range(0, len(regs), 2):
            a(f"v_add_f32 v{regs[i]}, v{regs[i]}, v{regs[i+1]}")
            nxt.append(regs[i])
        regs = nxt
    a("s_movk_i32 s79, 1280")
    a("s_branch L_store")
    a.label("L_finA")
    a(f"v_lshlrev_b32 v4, 6, {vr(V_LANE)}")
    for k in range(4):
        a(f"ds_read_b128 {vr(20+4*k,4)}, v4 offset:{FINA+16*k}")
    a("s_waitcnt lgkmcnt(0)")
    regs = list(range(20, 36))
    while len(regs) > 1:
        nxt = []
        for i in range(0, len(regs), 2):
            a(f"v_add_f32 v{regs[i]}, v{regs[i]}, v{regs[i+1]}")
            nxt.append(regs[i])
        regs = nxt
    a("s_movk_i32 s79, 0")
    a.label("L_store")
    a(f"""
    v_lshrrev_b32 v5, 2, {vr(V_LANE)}
    s_lshl_b32 s76, s2, 2
    v_add_u32 v5, s76, v5
    v_lshrrev_b32 v6, 5, v5
    v_lshlrev_b32 v6, 7, v6
    v_bfe_u32 v7, v5, 3, 2
    v_lshl_add_u32 v6, v7, 5, v6
    v_and_b32 v7, 7, v5
    v_add_u32 v6, v6, v7
    v_and_b32 v7, 3, {vr(V_LANE)}
    v_lshl_add_u32 v6, v7, 3, v6
    v_lshlrev_b32 v6, 1, v6
    v_cvt_pk_bf16_f32 v20, v20, v20
    buffer_store_short v20, v6, s[88:91], s79 offen
    """)
    a.label("L_end")
    if PROF:
        a.stamp(10)
        a(f"""
        s_mov_b64 exec, 1
        s_lshl_b32 s76, s2, 3
        s_add_u32 s76, s76, s11
        s_lshl_b32 s76, s76, 6
        s_add_u32 s76, s76, {4<<20}
        s_add_u32 s92, s40, s76
        s_addc_u32 s93, s41, 0
        v_mov_b32 v4, 0
        """)
        a("v_mov_b32 v20, s13")
        for i in range(1, 12):
            a(f"v_mov_b32 v{20+i}, s{16+i}")
        if DBG:
            a(f"""
            s_cmp_lg_u32 s76, {4<<20}
            s_cbranch_scc1 L_end2
            """)
            for q in range(3):
                a(f"global_store_dwordx4 v4, v[{20+4*q}:{23+4*q}], s[38:39] offset:{16*q}")
        else:
          for q in range(3):
            a(f"global_store_dwordx4 v4, v[{20+4*q}:{23+4*q}], s[92:93] offset:{16*q}")
    a.label("L_end2")
    a("s_endpgm")

    hdr = open("cdna_kernels/" + NAME + ".s.ref").read().split("\n")
    head = []
    for ln in hdr:
        if ln.startswith("; @launch"):
            head.append(f"; @launch grid=(256,1,1) block=(512,1,1) lds={LDS_BYTES}")
            break
        head.append(ln)
    out = "\n".join(head) + "\n"
    out += f""".amdgcn_target "amdgcn-amd-amdhsa--gfx950"
.text
.globl {NAME}_kernel
.p2align 8
.type {NAME}_kernel,@function
{NAME}_kernel:
"""
    t0 = "s_memrealtime s[92:93]\n    s_waitcnt lgkmcnt(0)\n    s_mov_b32 s13, s92" if PROF else ""
    prio = ""
    if PRIO == 1: prio = "s_cmp_lt_u32 s11, 4\n    s_cbranch_scc1 L_noprio\n    s_setprio 1\nL_noprio:"
    if PRIO == 2: prio = "s_and_b32 s77, s11, 1\n    s_cmp_eq_u32 s77, 0\n    s_cbranch_scc1 L_noprio\n    s_setprio 1\nL_noprio:"
    out += a.text().replace("PRIOBLK", prio).replace("BAR0", "" if NOBAR0 else "s_barrier").replace("PROF_T0", t0).replace("PROF_CLR", "\n    ".join(f"s_mov_b32 s{16+i}, 0" for i in range(1,12)) if PROF else "")
    out += f""".section .rodata,"a"
.p2align 6
.amdhsa_kernel {NAME}_kernel
  .amdhsa_next_free_vgpr 256
  .amdhsa_next_free_sgpr 102
  .amdhsa_accum_offset 256
  .amdhsa_group_segment_fixed_size 0
  .amdhsa_kernarg_size 104
  .amdhsa_user_sgpr_count 2
  .amdhsa_user_sgpr_kernarg_segment_ptr 1
  .amdhsa_system_sgpr_workgroup_id_x 1
.end_amdhsa_kernel
"""
    return out

if __name__ == "__main__":
    for o in sys.argv[2:]:
        if o == "prof": PROF = True
        elif o == "dbg": PROF = True; DBG = True
        elif o == "wnt": NT_W = " nt"
        elif o == "kvplain": NT_KV = ""
        elif o == "norot": ROT = False
        elif o.startswith("sleep"): POLL_SLEEP = int(o[5:])
        elif o.startswith("prio"): PRIO = int(o[4:])
        elif o == "nobar0": NOBAR0 = True
    path = sys.argv[1] if len(sys.argv) > 1 else "cdna_kernels/" + NAME + ".s"
    open(path, "w").write(gen())
```

```python
import sys, struct

PROF = False
DBG = False
DBGPROF = False
NT_KV = " nt"
NT_W = ""
ROT = True
POLL_SLEEP = 4
RBASE = 0
PRIO = 0
NOBAR0 = False
NRED = 40
NAME = "concat_heads__sliding_block_cached__gqa_block_cached__decode"

class A:
    def __init__(self):
        self.l = []
    def __call__(self, s):
        for ln in s.strip("\n").split("\n"):
            if ln.strip():
                self.l.append("    " + ln.strip())
    def stamp(self, i):
        if not PROF: return
        self(f"""
        s_memrealtime s[92:93]
        s_waitcnt lgkmcnt(0)
        s_mov_b32 s{16+i}, s92
        """)
    def label(self, s):
        self.l.append(s + ":")
    def text(self):
        return "\n".join(self.l) + "\n"

def vr(b, n=1):
    return f"v{b}" if n == 1 else f"v[{b}:{b+n-1}]"

QPART = 0
QBUF = 4096
MBUF = 4352
LBUF = 4384
OPART = 4608
YPART = 8704
MLBUF = YPART + 8 * 2560
FINB = MLBUF + 2048
FINA = FINB + 2048
LDS_BYTES = 36864
ML_OFF = 256 * 2560
NREP = 5
WS_BYTES = ML_OFF + NREP * 2048

V_TID = 0
V_LANE = 1
V_N = 2
V_G = 3
V_T0 = 4
V_SELLO = 12
V_SELHI = 16
V_X = 20
V_SC = 20
V_B0 = 44
V_B1 = 48
V_ACC = 52
V_QF = 44
V_OFFA = 60
V_OFFB = 61
V_OFFC = 62
V_OFFD = 63
V_L = 64
V_MC = 65
V_DUMMY = 66
V_CNT = 67
V_OA = 68
V_ML = 72
V_W1 = 74
V_W2 = 75
V_DL = [48, 52, 56, 76]
R1 = 80
R2 = 160

C_SCALE = 0.08838834764831845 * 1.4426950408889634
def f32bits(x):
    return struct.unpack("<I", struct.pack("<f", x))[0]

def body(a, nt):
    L = f"L{nt}"
    a(f"""
    v_lshrrev_b32 {vr(V_OFFB)}, 2, {vr(V_N)}
    v_lshlrev_b32 {vr(V_OFFB)}, 8, {vr(V_OFFB)}
    v_lshl_add_u32 {vr(V_OFFB)}, {vr(V_G)}, 6, {vr(V_OFFB)}
    v_and_b32 {vr(V_OFFC)}, 3, {vr(V_N)}
    v_lshl_add_u32 {vr(V_OFFB)}, {vr(V_OFFC)}, 4, {vr(V_OFFB)}
    s_lshl_b32 s76, s11, 12
    """)
    for u in range(nt):
        for j in range(4):
            a(f"buffer_load_dwordx4 {vr(R2+16*u+4*j,4)}, {vr(V_OFFB)}, s[56:59], s76 offen offset:{j*1024}{NT_KV}")
        if u < nt - 1:
            a("s_add_u32 s76, s76, 32768")
    nK = 4 * nt
    nC = 0
    a(f"""
    v_lshlrev_b32 {vr(V_OFFC)}, 4, {vr(V_LANE)}
    s_mul_i32 s76, s11, {4*1280}
    v_mul_u32_u24 {vr(V_OFFD)}, 1280, {vr(V_G)}
    v_lshl_add_u32 {vr(V_OFFD)}, {vr(V_N)}, 4, {vr(V_OFFD)}
    v_add_u32 {vr(V_OFFD)}, s76, {vr(V_OFFD)}
    """)
    a.stamp(1)
    a(f"""
    v_and_b32 {vr(V_T0+8)}, 1, {vr(V_N)}
    v_cmp_eq_u32 vcc, 1, {vr(V_T0+8)}
    v_mov_b32 {vr(V_B0+1)}, 0x0c0c0100
    v_mov_b32 {vr(V_B0+2)}, 0x01000c0c
    v_mov_b32 {vr(V_B0+3)}, 0x0c0c0302
    v_mov_b32 {vr(V_B0+4)}, 0x03020c0c
    v_cndmask_b32 {vr(V_B0+1)}, {vr(V_B0+1)}, {vr(V_B0+2)}, vcc
    v_cndmask_b32 {vr(V_B0+3)}, {vr(V_B0+3)}, {vr(V_B0+4)}, vcc
    v_lshrrev_b32 {vr(V_B0)}, 1, {vr(V_N)}
    v_mov_b32 {vr(V_B0+2)}, 0x0c0c0c0c
    """)
    for c in range(4):
        a(f"""
        v_cmp_eq_u32 vcc, {c}, {vr(V_B0)}
        s_nop 1
        v_cndmask_b32 {vr(V_SELLO+c)}, {vr(V_B0+2)}, {vr(V_B0+1)}, vcc
        v_cndmask_b32 {vr(V_SELHI+c)}, {vr(V_B0+2)}, {vr(V_B0+3)}, vcc
        """)
    a(f"""
    v_and_b32 {vr(V_B0)}, 7, {vr(V_N)}
    v_lshlrev_b32 {vr(V_B0)}, 9, {vr(V_B0)}
    v_lshl_add_u32 {vr(V_B0)}, {vr(V_G)}, 2, {vr(V_B0)}
    s_lshl_b32 s76, s11, 4
    v_add_u32 {vr(V_B0)}, s76, {vr(V_B0)}
    """)
    for t in range(4):
        a(f"""
        s_add_u32 s76, s15, {t}
        s_and_b32 s76, s76, 3
        s_lshl_b32 s76, s76, 7
        v_add_u32 {vr(V_OA+t)}, s76, {vr(V_B0)}
        """)
    a(f"s_waitcnt vmcnt({nK+nC})")
    def buildB(dst, src, hi):
        sel = V_SELHI if hi else V_SELLO
        for c in range(4):
            a(f"v_perm_b32 {vr(dst+c)}, {vr(src)}, {vr(src)}, {vr(sel+c)}")
    buildB(V_B0, V_X, 0)
    for t in range(20):
        cur = V_B0 if t % 2 == 0 else V_B1
        nxt = V_B1 if t % 2 == 0 else V_B0
        if t < 19:
            buildB(nxt, V_X + (t + 1) // 2, (t + 1) % 2)
        else:
            a("s_nop 1")
        c = "0" if t == 0 else vr(V_ACC, 4)
        a(f"v_mfma_f32_16x16x32_bf16 {vr(V_ACC,4)}, {vr(R1+4*t,4)}, {vr(cur,4)}, {c}")
    a.stamp(2)
    a(f"""
    v_lshlrev_b32 {vr(V_T0)}, 3, {vr(V_G)}
    v_add_u32 {vr(V_T0)}, {vr(V_T0)}, {vr(V_N)}
    v_lshlrev_b32 {vr(V_T0)}, 4, {vr(V_T0)}
    s_lshl_b32 s76, s11, 9
    v_add_u32 {vr(V_T0)}, s76, {vr(V_T0)}
    s_nop 4
    s_mov_b64 exec, s[80:81]
    ds_write_b128 {vr(V_T0)}, {vr(V_ACC,4)} offset:{QPART}
    s_mov_b64 exec, -1
    s_waitcnt lgkmcnt(0)
    s_barrier
    s_cmp_lg_u32 s11, 2
    s_cbranch_scc1 {L}_noflag
    v_mov_b32 v9, 1
    v_mov_b32 v10, s2
    s_mov_b64 exec, 1
    global_store_byte v10, v9, s[38:39] sc1
    s_mov_b64 exec, -1
    """)
    a.label(f"{L}_noflag")
    a(f"""
    s_cmp_ge_u32 s11, 2
    s_cbranch_scc1 {L}_qskip
    v_lshrrev_b32 {vr(V_T0)}, 5, {vr(V_TID)}
    v_lshlrev_b32 {vr(V_T0)}, 7, {vr(V_T0)}
    v_and_b32 {vr(V_T0+1)}, 7, {vr(V_TID)}
    v_lshl_add_u32 {vr(V_T0)}, {vr(V_T0+1)}, 4, {vr(V_T0)}
    v_bfe_u32 {vr(V_T0+1)}, {vr(V_TID)}, 3, 2
    v_lshl_add_u32 {vr(V_T0)}, {vr(V_T0+1)}, 2, {vr(V_T0)}
    """)
    for w in range(8):
        a(f"ds_read_b32 {vr(V_QF+w)}, {vr(V_T0)} offset:{QPART+w*512}")
    a("s_waitcnt lgkmcnt(0)")
    a(f"""
    v_add_f32 {vr(V_QF)}, {vr(V_QF)}, {vr(V_QF+1)}
    v_add_f32 {vr(V_QF+2)}, {vr(V_QF+2)}, {vr(V_QF+3)}
    v_add_f32 {vr(V_QF+4)}, {vr(V_QF+4)}, {vr(V_QF+5)}
    v_add_f32 {vr(V_QF+6)}, {vr(V_QF+6)}, {vr(V_QF+7)}
    v_add_f32 {vr(V_QF)}, {vr(V_QF)}, {vr(V_QF+2)}
    v_add_f32 {vr(V_QF+4)}, {vr(V_QF+4)}, {vr(V_QF+6)}
    v_add_f32 {vr(V_QF)}, {vr(V_QF)}, {vr(V_QF+4)}
    v_cvt_pk_bf16_f32 {vr(V_QF)}, {vr(V_QF)}, {vr(V_QF)}
    v_lshlrev_b32 {vr(V_T0)}, 1, {vr(V_TID)}
    ds_write_b16 {vr(V_T0)}, {vr(V_QF)} offset:{QBUF}
    s_waitcnt lgkmcnt(0)
    """)
    a.label(f"{L}_qskip")
    a(f"""
    s_barrier
    v_and_b32 {vr(V_T0)}, 3, {vr(V_N)}
    v_lshl_add_u32 {vr(V_T0)}, {vr(V_G)}, 2, {vr(V_T0)}
    v_lshlrev_b32 {vr(V_T0)}, 4, {vr(V_T0)}
    """)
    a(f"ds_read_b128 {vr(V_QF,4)}, {vr(V_T0)} offset:{QBUF}")
    for t in range(4):
        a(f"""
        s_add_u32 s76, s15, {t}
        s_and_b32 s76, s76, 3
        s_mul_i32 s76, s76, 40960
        """)
        for cb in range(5):
            a(f"buffer_load_dwordx4 {vr(R1+4*(t*5+cb),4)}, {vr(V_OFFD)}, s[64:67], s76 offen offset:{cb*256}{NT_W}")
    a("s_waitcnt lgkmcnt(0)")
    a.stamp(3)
    def qk_reduce(u):
        a("s_nop 1")
        for j in range(4):
            a(f"v_mov_b32_dpp {vr(V_SC+4*u+j)}, {vr(V_DL[j])} quad_perm:[0,0,0,0] row_mask:0xf bank_mask:0xf")
        for r in range(1, 4):
            for j in range(4):
                a(f"v_add_f32_dpp {vr(V_SC+4*u+j)}, {vr(V_DL[j]+r)}, {vr(V_SC+4*u+j)} quad_perm:[{r},{r},{r},{r}] row_mask:0xf bank_mask:0xf")
    a("s_lshl_b32 s76, s11, 12")
    for u in range(nt):
        a(f"s_waitcnt vmcnt({4*(nt-1-u)+nC+20+4*u})")
        for j in range(4):
            a(f"v_mfma_f32_16x16x32_bf16 {vr(V_DL[j],4)}, {vr(R2+16*u+4*j,4)}, {vr(V_QF,4)}, 0")
        for r in range(4):
            a(f"buffer_load_dwordx4 {vr(R2+16*u+4*r,4)}, {vr(V_OFFC)}, s[60:63], s76 offen offset:{r*1024}{NT_KV}")
        qk_reduce(u)
        if u < nt - 1:
            a("s_add_u32 s76, s76, 32768")
    a.stamp(4)
    n = 4 * nt
    a(f"v_max3_f32 {vr(V_T0)}, {vr(V_SC)}, {vr(V_SC+1)}, {vr(V_SC+2)}")
    k = 3
    while k < n:
        if k + 1 < n:
            a(f"v_max3_f32 {vr(V_T0)}, {vr(V_T0)}, {vr(V_SC+k)}, {vr(V_SC+k+1)}")
            k += 2
        else:
            a(f"v_max_f32 {vr(V_T0)}, {vr(V_T0)}, {vr(V_SC+k)}")
            k += 1
    a(f"""
    s_nop 0
    v_readlane_b32 s76, {vr(V_T0)}, 0
    v_readlane_b32 s77, {vr(V_T0)}, 16
    v_readlane_b32 s78, {vr(V_T0)}, 32
    v_readlane_b32 s79, {vr(V_T0)}, 48
    s_nop 1
    v_mov_b32 {vr(V_T0)}, s76
    v_max_f32 {vr(V_T0)}, s77, {vr(V_T0)}
    v_max_f32 {vr(V_T0)}, s78, {vr(V_T0)}
    v_max_f32 {vr(V_T0)}, s79, {vr(V_T0)}
    s_lshl_b32 s76, s11, 2
    v_mov_b32 {vr(V_T0+1)}, s76
    ds_write_b32 {vr(V_T0+1)}, {vr(V_T0)} offset:{MBUF}
    s_waitcnt lgkmcnt(0)
    s_barrier
    v_mov_b32 {vr(V_T0+1)}, 0
    ds_read_b128 {vr(V_QF,4)}, {vr(V_T0+1)} offset:{MBUF}
    ds_read_b128 {vr(V_QF+4,4)}, {vr(V_T0+1)} offset:{MBUF+16}
    s_waitcnt lgkmcnt(0)
    v_max3_f32 {vr(V_T0)}, {vr(V_QF)}, {vr(V_QF+1)}, {vr(V_QF+2)}
    v_max3_f32 {vr(V_T0)}, {vr(V_T0)}, {vr(V_QF+3)}, {vr(V_QF+4)}
    v_max3_f32 {vr(V_T0)}, {vr(V_T0)}, {vr(V_QF+5)}, {vr(V_QF+6)}
    v_max_f32 {vr(V_T0)}, {vr(V_T0)}, {vr(V_QF+7)}
    v_mul_f32 {vr(V_MC)}, s82, {vr(V_T0)}
    """)
    for k in range(n):
        a(f"v_fma_f32 {vr(V_SC+k)}, {vr(V_SC+k)}, s82, -{vr(V_MC)}")
    for k in range(n):
        a(f"v_exp_f32 {vr(V_SC+k)}, {vr(V_SC+k)}")
    a("s_nop 0")
    a(f"v_add_f32 {vr(V_L)}, {vr(V_SC)}, {vr(V_SC+1)}")
    for k in range(2, n):
        a(f"v_add_f32 {vr(V_L)}, {vr(V_L)}, {vr(V_SC+k)}")
    a(f"""
    s_lshl_b32 s76, s11, 4
    v_lshlrev_b32 {vr(V_T0)}, 2, {vr(V_G)}
    v_add_u32 {vr(V_T0)}, s76, {vr(V_T0)}
    s_mov_b64 exec, s[84:85]
    ds_write_b32 {vr(V_T0)}, {vr(V_L)} offset:{LBUF}
    s_mov_b64 exec, -1
    """)
    for k in range(0, n, 2):
        a(f"v_cvt_pk_bf16_f32 {vr(V_SC+k)}, {vr(V_SC+k)}, {vr(V_SC+k+1)}")
    a(f"""
    s_waitcnt lgkmcnt(0)
    s_barrier
    v_lshlrev_b32 v4, 2, {vr(V_LANE)}
    v_and_b32 v4, 127, v4
    ds_read_b32 v5, v4 offset:{LBUF}
    s_waitcnt lgkmcnt(0)
    s_nop 1
    v_add_f32_dpp v5, v5, v5 quad_perm:[1,0,3,2] row_mask:0xf bank_mask:0xf
    s_nop 1
    v_add_f32_dpp v5, v5, v5 quad_perm:[2,3,0,1] row_mask:0xf bank_mask:0xf
    s_nop 1
    v_add_f32_dpp v5, v5, v5 row_half_mirror row_mask:0xf bank_mask:0xf
    s_nop 1
    v_add_f32_dpp v5, v5, v5 row_mirror row_mask:0xf bank_mask:0xf
    s_nop 1
    v_readlane_b32 s76, v5, 16
    s_nop 1
    v_add_f32 v5, s76, v5
    v_min_u32 {vr(V_ML)}, 0xfffffffe, {vr(V_MC)}
    v_min_u32 {vr(V_ML+1)}, 0xfffffffe, v5
    """)
    a.stamp(5)
    def psrc(u, r):
        return V_SC + 4 * u + (r // 2) * 2, r % 2
    seq = [(u, r) for u in range(nt) for r in range(4)]
    s0, h0 = psrc(*seq[0])
    buildB(V_B0, s0, h0)
    nV = 4 * nt
    for idx, (u, r) in enumerate(seq):
        cur = V_B0 if idx % 2 == 0 else V_B1
        nxt = V_B1 if idx % 2 == 0 else V_B0
        if idx + 1 < len(seq):
            s1, h1 = psrc(*seq[idx + 1])
            buildB(nxt, s1, h1)
        else:
            a("s_nop 1")
        a(f"s_waitcnt vmcnt({nV-1-idx})")
        c = "0" if idx == 0 else vr(V_ACC, 4)
        a(f"v_mfma_f32_16x16x32_bf16 {vr(V_ACC,4)}, {vr(R2+16*u+4*r,4)}, {vr(cur,4)}, {c}")
    a.stamp(6)
    a("s_branch L_tail")

def gen():
    a = A()
    a(f"""
    s_cmp_ge_u32 s2, 256
    s_cbranch_scc1 L_end2
    s_load_dwordx16 s[16:31], s[0:1], 0
    s_load_dwordx8 s[32:39], s[0:1], 64
    s_load_dwordx2 s[40:41], s[0:1], 96
    PROF_T0
    s_and_b32 s3, s2, 7
    s_lshr_b32 s4, s2, 3
    v_lshrrev_b32 v1, 6, v0
    v_and_b32 v0, 0x3ff, v0
    v_readfirstlane_b32 s11, v1
    v_and_b32 {vr(V_LANE)}, 63, v0
    v_and_b32 {vr(V_N)}, 15, {vr(V_LANE)}
    v_lshrrev_b32 {vr(V_G)}, 4, {vr(V_LANE)}
    s_mul_i32 s5, s4, 43
    s_lshr_b32 s5, s5, 8
    s_mul_i32 s6, s5, 6
    s_sub_u32 s6, s4, s6
    s_cmp_lt_u32 s6, 4
    s_cselect_b32 s7, 43, 42
    s_mul_i32 s8, s6, 43
    s_max_u32 s76, s6, 4
    s_sub_u32 s76, s76, 4
    s_sub_u32 s8, s8, s76
    s_lshl_b32 s8, s8, 4
    s_sub_u32 s77, s4, 24
    s_lshr_b32 s78, s77, 1
    s_and_b32 s79, s77, 1
    s_lshl_b32 s80, s79, 9
    s_add_u32 s80, s80, 3072
    s_cmp_lt_u32 s4, 24
    s_cselect_b32 s5, s5, s78
    s_cselect_b32 s6, s6, s79
    s_cselect_b32 s7, s7, 32
    s_cselect_b32 s8, s8, s80
    s_cselect_b32 s12, 1, 0
    s_lshl_b32 s9, s3, 2
    s_add_u32 s9, s9, s5
    s_mul_i32 s10, s9, 6
    s_add_u32 s10, s10, s6
    s_lshl_b32 s76, s9, 1
    s_add_u32 s76, s76, s6
    s_add_u32 s76, s76, 192
    s_cmp_eq_u32 s12, 1
    s_cselect_b32 s10, s10, s76
    s_mul_i32 s14, s6, 10
    s_add_u32 s14, s14, 3
    s_mul_i32 s14, s14, 43
    s_lshr_b32 s14, s14, 8
    s_lshl_b32 s14, s14, 1
    s_mul_i32 s76, s6, 10
    s_and_b32 s15, s6, 3
    s_lshl_b32 s77, s6, 1
    s_cmp_eq_u32 s12, 1
    s_cselect_b32 s14, s14, s76
    s_cselect_b32 s15, s15, s77
    {"" if ROT else "s_mov_b32 s14, 0"}
    {"" if ROT else "s_mov_b32 s15, 0"}
    s_sub_u32 s99, s2, {RBASE}
    s_mov_b32 s80, 0x00ff00ff
    s_mov_b32 s81, 0x00ff00ff
    s_mov_b32 s82, 0x{f32bits(C_SCALE):08x}
    s_mov_b32 s84, 0x00010001
    s_mov_b32 s85, 0x00010001
    s_mov_b32 s55, 0x00020000
    s_mov_b32 s59, 0x00020000
    s_mov_b32 s63, 0x00020000
    s_mov_b32 s67, 0x00020000
    s_mov_b32 s71, 0x00020000
    s_mov_b32 s75, 0x00020000
    s_mov_b32 s70, 1280
    s_mov_b32 s66, 163840
    s_mov_b32 s74, {WS_BYTES}
    s_lshl_b32 s58, s7, 12
    s_mov_b32 s62, s58
    s_mul_i32 s76, s11, 160
    v_mul_u32_u24 v10, 40, {vr(V_G)}
    v_add_u32 v10, s76, v10
    s_mul_i32 s76, s11, {80*8192}
    s_mov_b32 s77, {20*8192}
    v_mul_lo_u32 {vr(V_OFFA)}, s77, {vr(V_G)}
    v_lshl_add_u32 {vr(V_OFFA)}, {vr(V_N)}, 4, {vr(V_OFFA)}
    v_add_u32 {vr(V_OFFA)}, s76, {vr(V_OFFA)}
    s_lshl_b32 s78, s9, 8
    s_sub_u32 s54, {640*8192}, s78
    s_waitcnt lgkmcnt(0)
    s_cmp_eq_u32 s12, 1
    s_cselect_b64 s[48:49], s[32:33], s[22:23]
    s_cselect_b64 s[68:69], s[26:27], s[16:17]
    s_cselect_b64 s[44:45], s[28:29], s[18:19]
    s_cselect_b64 s[46:47], s[30:31], s[20:21]
    s_cselect_b64 s[50:51], s[34:35], s[24:25]
    s_add_u32 s52, s48, s78
    s_addc_u32 s53, s49, 0
    s_lshl_b32 s76, s14, 13
    """)
    for t in range(20):
        a(f"buffer_load_dwordx4 {vr(R1+4*t,4)}, {vr(V_OFFA)}, s[52:55], s76 offen{NT_W}")
        if t < 19:
            a("s_add_u32 s76, s76, 8192\ns_cmp_eq_u32 s76, 163840\ns_cselect_b32 s76, 0, s76")
    XL = []
    a("s_lshl_b32 s76, s14, 1")
    for k in range(10):
        a(f"buffer_load_dword {vr(V_X+k)}, v10, s[68:71], s76 offen")
        if k < 9:
            a("s_add_u32 s76, s76, 4\ns_cmp_eq_u32 s76, 40\ns_cselect_b32 s76, 0, s76")
    a(f"""
    s_lshl_b32 s76, s9, 20
    s_lshl_b32 s77, s8, 8
    s_add_u32 s76, s76, s77
    s_add_u32 s56, s44, s76
    s_addc_u32 s57, s45, 0
    s_add_u32 s60, s46, s76
    s_addc_u32 s61, s47, 0
    s_mul_i32 s76, s9, 163840
    s_add_u32 s64, s50, s76
    s_addc_u32 s65, s51, 0
    s_mov_b32 s72, s40
    s_mov_b32 s73, s41
    v_mov_b32 v4, -1
    v_mov_b32 v5, -1
    v_mov_b32 v6, -1
    v_mov_b32 v7, -1
    s_mul_i32 s77, s11, 20
    v_add_u32 v8, s77, {vr(V_LANE)}
    v_lshrrev_b32 v9, 2, v8
    v_and_b32 v8, 3, v8
    v_lshlrev_b32 v8, 4, v8
    v_lshl_add_u32 v8, v9, 14, v8
    s_lshl_b32 s76, s10, 6
    s_mov_b64 exec, 0xfffff
    buffer_store_dwordx4 v[4:7], v8, s[72:75], s76 offen sc1
    s_mov_b64 exec, -1
    s_cmp_lg_u32 s11, 0
    s_cbranch_scc1 L_noclr
    v_lshlrev_b32 v9, 11, {vr(V_LANE)}
    s_lshl_b32 s76, s10, 3
    s_add_u32 s76, s76, {ML_OFF}
    s_mov_b64 exec, {(1<<NREP)-1}
    buffer_store_dwordx2 v[4:5], v9, s[72:75], s76 offen sc1
    s_mov_b64 exec, -1
L_noclr:
    PROF_CLR
    s_sub_u32 s76, s7, s11
    s_add_u32 s76, s76, 7
    s_lshr_b32 s76, s76, 3
    PRIOBLK
    BAR0
    s_cmp_eq_u32 s76, 6
    s_cbranch_scc1 L6_start
    s_cmp_eq_u32 s76, 5
    s_cbranch_scc1 L5_start
    """)
    for nt in (4, 5, 6):
        a.label(f"L{nt}_start")
        body(a, nt)
    a.label("L_tail")
    def buildB(dst, src, hi):
        sel = V_SELHI if hi else V_SELLO
        for c in range(4):
            a(f"v_perm_b32 {vr(dst+c)}, {vr(src)}, {vr(src)}, {vr(sel+c)}")
    a(f"""
    v_lshlrev_b32 {vr(V_T0)}, 5, {vr(V_G)}
    v_add_u32 {vr(V_T0)}, {vr(V_T0)}, {vr(V_N)}
    v_lshlrev_b32 {vr(V_T0)}, 2, {vr(V_T0)}
    s_lshl_b32 s76, s11, 9
    v_add_u32 {vr(V_T0)}, s76, {vr(V_T0)}
    s_nop 4
    s_mov_b64 exec, s[80:81]
    """)
    for r in range(4):
        a(f"ds_write_b32 {vr(V_T0)}, {vr(V_ACC+r)} offset:{OPART+r*32}")
    a(f"""
    s_mov_b64 exec, -1
    s_cmp_lg_u32 s11, 7
    s_cbranch_scc1 L_nomlst
    v_lshlrev_b32 v9, 11, {vr(V_LANE)}
    s_lshl_b32 s76, s10, 3
    s_add_u32 s76, s76, {ML_OFF}
    s_mov_b64 exec, {(1<<NREP)-1}
    buffer_store_dwordx2 {vr(V_ML,2)}, v9, s[72:75], s76 offen sc1
    s_mov_b64 exec, -1
L_nomlst:
    s_cmp_ge_u32 s99, {NRED}
    s_cbranch_scc1 L_nopre
    v_lshlrev_b32 v9, 2, {vr(V_LANE)}
    global_load_dword {vr(V_CNT)}, v9, s[38:39] sc1
    """)
    if DBG:
        a.label("L_dchk")
        a(f"""
        s_waitcnt vmcnt(0)
        v_cmp_ne_u32 vcc, 0x01010101, {vr(V_CNT)}
        s_cbranch_vccz L_nopre
        global_load_dword {vr(V_CNT)}, v9, s[38:39] sc1
        s_branch L_dchk
        """)
    a.label("L_nopre")
    a("s_waitcnt lgkmcnt(0)")
    a("s_barrier")
    for t in range(4):
        a(f"ds_read_b32 {vr(V_T0+4+t)}, {vr(V_OA+t)} offset:{OPART}")
    a("s_waitcnt lgkmcnt(0)")
    for dpp in ["quad_perm:[1,0,3,2]", "quad_perm:[2,3,0,1]", "row_half_mirror"]:
        for t in range(4):
            a(f"v_add_f32_dpp {vr(V_T0+4+t)}, {vr(V_T0+4+t)}, {vr(V_T0+4+t)} {dpp} row_mask:0xf bank_mask:0xf")
    a(f"""
    v_cvt_pk_bf16_f32 {vr(V_T0+4)}, {vr(V_T0+4)}, {vr(V_T0+5)}
    v_cvt_pk_bf16_f32 {vr(V_T0+6)}, {vr(V_T0+6)}, {vr(V_T0+7)}
    """)
    VB = 20
    VY = 36
    for t in range(4):
        buildB(VB + 4 * t, V_T0 + 4 + (t // 2) * 2, t % 2)
    for t in range(4):
        for cb in range(5):
            c = "0" if t == 0 else vr(VY + 4 * cb, 4)
            a(f"v_mfma_f32_16x16x32_bf16 {vr(VY+4*cb,4)}, {vr(R1+4*(t*5+cb),4)}, {vr(VB+4*t,4)}, {c}")
    a(f"""
    v_lshlrev_b32 {vr(V_T0)}, 3, {vr(V_G)}
    v_add_u32 {vr(V_T0)}, {vr(V_T0)}, {vr(V_N)}
    v_lshlrev_b32 {vr(V_T0)}, 4, {vr(V_T0)}
    s_mul_i32 s76, s11, 2560
    v_add_u32 {vr(V_T0)}, s76, {vr(V_T0)}
    s_nop 4
    s_mov_b64 exec, s[80:81]
    """)
    for cb in range(5):
        a(f"ds_write_b128 {vr(V_T0)}, {vr(VY+4*cb,4)} offset:{YPART+cb*512}")
    a(f"""
    s_mov_b64 exec, -1
    s_waitcnt lgkmcnt(0)
    s_barrier
    """)
    a.stamp(7)
    a(f"""
    s_cmp_gt_u32 s11, 2
    s_cbranch_scc1 L_after_store
    v_cmp_gt_u32 vcc, 160, v0
    s_and_saveexec_b64 s[86:87], vcc
    s_cbranch_execz L_tail_y_done
    v_lshlrev_b32 v4, 4, v0
    v_lshrrev_b32 v5, 2, v0
    v_and_b32 v6, 3, v0
    v_lshlrev_b32 v6, 4, v6
    v_lshl_add_u32 v5, v5, 14, v6
    """)
    for w in range(8):
        a(f"ds_read_b128 {vr(20+4*w,4)}, v4 offset:{YPART+w*2560}")
    a("s_waitcnt lgkmcnt(0)")
    for r in range(4):
        a(f"v_add_f32 v{20+r}, v{20+r}, v{24+r}")
        a(f"v_add_f32 v{28+r}, v{28+r}, v{32+r}")
        a(f"v_add_f32 v{36+r}, v{36+r}, v{40+r}")
        a(f"v_add_f32 v{44+r}, v{44+r}, v{48+r}")
    for r in range(4):
        a(f"v_add_f32 v{20+r}, v{20+r}, v{28+r}")
        a(f"v_add_f32 v{36+r}, v{36+r}, v{44+r}")
    for r in range(4):
        a(f"v_add_f32 v{20+r}, v{20+r}, v{36+r}")
    for r in range(4):
        a(f"v_min_u32 v{20+r}, 0xfffffffe, v{20+r}")
    a(f"""
    s_lshl_b32 s76, s10, 6
    buffer_store_dwordx4 v[20:23], v5, s[72:75], s76 offen sc1
    """)
    a.label("L_tail_y_done")
    a("s_mov_b64 exec, s[86:87]")
    a.label("L_after_store")
    a.stamp(8)
    a(f"""
    s_cmp_ge_u32 s99, {NRED}
    s_cbranch_scc1 L_end
    v_lshlrev_b32 v8, 2, {vr(V_LANE)}
    s_waitcnt vmcnt(1)
    s_cmp_lt_u32 s11, 3
    s_cbranch_scc1 L_chkc
    s_waitcnt vmcnt(0)
    """)
    a.label("L_chkc")
    a(f"""
    v_cmp_ne_u32 vcc, 0x01010101, {vr(V_CNT)}
    s_cbranch_vccz L_clr_ok
    global_load_dword {vr(V_CNT)}, v8, s[38:39] sc1
    s_waitcnt vmcnt(0)
    s_branch L_chkc
    """)
    a.label("L_clr_ok")
    a(f"""
    v_lshlrev_b32 v4, 4, v0
    s_lshl_b32 s78, s99, 14
    s_add_u32 s79, s78, 8192
    """)
    a(f"""
    s_cmp_gt_u32 s11, 3
    s_cbranch_scc1 L_ml_done
    v_lshlrev_b32 v9, 3, v0
    s_mul_i32 s76, s99, 52
    s_lshr_b32 s76, s76, 8
    s_mul_i32 s76, s76, 5
    s_sub_u32 s76, s99, s76
    s_lshl_b32 s76, s76, 11
    s_add_u32 s77, s76, {ML_OFF}
    """)
    a.label("L_mlpoll")
    a(f"""
    buffer_load_dwordx2 {vr(V_ML,2)}, v9, s[72:75], s77 offen sc1
    s_waitcnt vmcnt(0)
    v_max_u32 v7, {vr(V_ML)}, {vr(V_ML+1)}
    v_cmp_eq_u32 vcc, -1, v7
    s_cbranch_vccz L_mlok
    s_sleep {POLL_SLEEP}
    s_branch L_mlpoll
    """)
    a.label("L_mlok")
    a(f"""
    ds_write_b64 v9, {vr(V_ML,2)} offset:{MLBUF}
    s_waitcnt lgkmcnt(0)
    """)
    a.label("L_ml_done")
    def weightB(vslot, dst):
        a(f"""
        v_mul_u32_u24 v6, 171, {vr(vslot)}
        v_lshrrev_b32 v6, 10, v6
        v_mul_u32_u24 v6, 48, v6
        v_lshlrev_b32 v7, 3, {vr(vslot)}
        ds_read_b128 v[28:31], v6 offset:{MLBUF}
        ds_read_b128 v[32:35], v6 offset:{MLBUF+16}
        ds_read_b128 v[36:39], v6 offset:{MLBUF+32}
        ds_read_b32 v24, v7 offset:{MLBUF}
        s_waitcnt lgkmcnt(0)
        v_max3_f32 v7, v28, v30, v32
        v_max3_f32 v7, v7, v34, v36
        v_max_f32 v7, v7, v38
        v_sub_f32 v28, v28, v7
        v_sub_f32 v30, v30, v7
        v_sub_f32 v32, v32, v7
        v_sub_f32 v34, v34, v7
        v_sub_f32 v36, v36, v7
        v_sub_f32 v38, v38, v7
        v_sub_f32 v24, v24, v7
        v_exp_f32 v28, v28
        v_exp_f32 v30, v30
        v_exp_f32 v32, v32
        v_exp_f32 v34, v34
        v_exp_f32 v36, v36
        v_exp_f32 v38, v38
        v_exp_f32 v24, v24
        s_nop 0
        v_mul_f32 v8, v28, v29
        v_fmac_f32 v8, v30, v31
        v_fmac_f32 v8, v32, v33
        v_fmac_f32 v8, v34, v35
        v_fmac_f32 v8, v36, v37
        v_fmac_f32 v8, v38, v39
        v_rcp_f32 v8, v8
        s_nop 0
        v_mul_f32 {vr(dst)}, v24, v8
        """)
    a(f"""
    s_barrier
    buffer_load_dwordx4 v[56:59], v4, s[72:75], s78 offen sc1
    buffer_load_dwordx4 v[60:63], v4, s[72:75], s79 offen sc1
    v_lshrrev_b32 v10, 2, v0
    v_add_u32 v11, 128, v10
    """)
    weightB(10, V_W1)
    a("""
    s_cmp_gt_u32 s11, 3
    s_cbranch_scc1 L_wA
    """)
    weightB(11, V_W2)
    a("s_branch L_wdone")
    a.label("L_wA")
    a(f"""
    v_and_b32 v6, 0x1fe, v11
    v_lshlrev_b32 v6, 3, v6
    v_lshlrev_b32 v7, 3, v11
    ds_read_b128 v[28:31], v6 offset:{MLBUF}
    ds_read_b32 v24, v7 offset:{MLBUF}
    s_waitcnt lgkmcnt(0)
    v_max_f32 v7, v28, v30
    v_sub_f32 v28, v28, v7
    v_sub_f32 v30, v30, v7
    v_sub_f32 v24, v24, v7
    v_exp_f32 v28, v28
    v_exp_f32 v30, v30
    v_exp_f32 v24, v24
    s_nop 0
    v_mul_f32 v8, v28, v29
    v_fmac_f32 v8, v30, v31
    v_rcp_f32 v8, v8
    s_nop 0
    v_mul_f32 {vr(V_W2)}, v24, v8
    """)
    a.label("L_wdone")
    a("s_waitcnt vmcnt(0)")
    a.label("L_chkY")
    a(f"""
    v_max3_u32 v7, v56, v57, v58
    v_max3_u32 v7, v7, v59, v60
    v_max3_u32 v7, v7, v61, v62
    v_max_u32 v7, v7, v63
    v_cmp_eq_u32 vcc, -1, v7
    s_cbranch_vccz L_gotY
    buffer_load_dwordx4 v[56:59], v4, s[72:75], s78 offen sc1
    buffer_load_dwordx4 v[60:63], v4, s[72:75], s79 offen sc1
    s_waitcnt vmcnt(0)
    s_branch L_chkY
    """)
    a.label("L_gotY")
    a.stamp(9)
    for r in range(4):
        a(f"v_mul_f32 v{20+r}, v{56+r}, {vr(V_W1)}")
    for r in range(4):
        a(f"v_mul_f32 v{24+r}, v{60+r}, {vr(V_W2)}")
    a("""
    s_cmp_gt_u32 s11, 3
    s_cbranch_scc1 L_redA
    """)
    for r in range(4):
        a(f"v_add_f32 v{20+r}, v{20+r}, v{24+r}")
    a("s_nop 1")
    for dpp in ("row_shr:4", "row_shr:8"):
        for r in range(4):
            a(f"v_add_f32_dpp v{20+r}, v{20+r}, v{20+r} {dpp} row_mask:0xf bank_mask:0xf bound_ctrl:0")
    a("s_branch L_redW")
    a.label("L_redA")
    for dpp in ("row_shr:4", "row_shr:8"):
        for r in range(8):
            a(f"v_add_f32_dpp v{20+r}, v{20+r}, v{20+r} {dpp} row_mask:0xf bank_mask:0xf bound_ctrl:0")
    a.label("L_redW")
    a(f"""
    v_and_b32 v5, 3, {vr(V_LANE)}
    v_lshlrev_b32 v5, 9, v5
    v_lshl_add_u32 v5, {vr(V_G)}, 2, v5
    s_lshl_b32 s76, s11, 4
    v_add_u32 v5, s76, v5
    s_mov_b32 s78, 0xf000f000
    s_mov_b32 s79, 0xf000f000
    s_mov_b64 exec, s[78:79]
    """)
    for r in range(4):
        a(f"ds_write_b32 v5, v{20+r} offset:{FINB+r*128}")
    a("""
    s_cmp_lt_u32 s11, 4
    s_cbranch_scc1 L_noA
    """)
    a(f"""
    v_and_b32 v6, 3, {vr(V_LANE)}
    v_lshlrev_b32 v6, 8, v6
    v_lshl_add_u32 v6, {vr(V_G)}, 2, v6
    s_lshl_b32 s76, s11, 4
    s_sub_u32 s76, s76, 64
    v_add_u32 v6, s76, v6
    """)
    for r in range(4):
        a(f"ds_write_b32 v6, v{24+r} offset:{FINA+r*64}")
    a.label("L_noA")
    a(f"""
    s_mov_b64 exec, -1
    s_waitcnt lgkmcnt(0)
    s_barrier
    s_cmp_gt_u32 s11, 1
    s_cbranch_scc1 L_end
    s_mov_b32 s88, s36
    s_mov_b32 s89, s37
    s_mov_b32 s90, 2560
    s_mov_b32 s91, 0x00020000
    s_mov_b64 exec, 0xffff
    s_cmp_eq_u32 s11, 1
    s_cbranch_scc1 L_finA
    v_lshlrev_b32 v4, 7, {vr(V_LANE)}
    """)
    for k in range(8):
        a(f"ds_read_b128 {vr(20+4*k,4)}, v4 offset:{FINB+16*k}")
    a("s_waitcnt lgkmcnt(0)")
    regs = list(range(20, 52))
    while len(regs) > 1:
        nxt = []
        for i in range(0, len(regs), 2):
            a(f"v_add_f32 v{regs[i]}, v{regs[i]}, v{regs[i+1]}")
            nxt.append(regs[i])
        regs = nxt
    a("s_movk_i32 s79, 1280")
    a("s_branch L_store")
    a.label("L_finA")
    a(f"v_lshlrev_b32 v4, 6, {vr(V_LANE)}")
    for k in range(4):
        a(f"ds_read_b128 {vr(20+4*k,4)}, v4 offset:{FINA+16*k}")
    a("s_waitcnt lgkmcnt(0)")
    regs = list(range(20, 36))
    while len(regs) > 1:
        nxt = []
        for i in range(0, len(regs), 2):
            a(f"v_add_f32 v{regs[i]}, v{regs[i]}, v{regs[i+1]}")
            nxt.append(regs[i])
        regs = nxt
    a("s_movk_i32 s79, 0")
    a.label("L_store")
    a(f"""
    v_lshrrev_b32 v5, 2, {vr(V_LANE)}
    s_lshl_b32 s76, s99, 2
    v_add_u32 v5, s76, v5
    v_lshrrev_b32 v6, 5, v5
    v_lshlrev_b32 v6, 7, v6
    v_bfe_u32 v7, v5, 3, 2
    v_lshl_add_u32 v6, v7, 5, v6
    v_and_b32 v7, 7, v5
    v_add_u32 v6, v6, v7
    v_and_b32 v7, 3, {vr(V_LANE)}
    v_lshl_add_u32 v6, v7, 3, v6
    v_lshlrev_b32 v6, 1, v6
    v_cvt_pk_bf16_f32 v20, v20, v20
    buffer_store_short v20, v6, s[88:91], s79 offen
    """)
    a.label("L_end")
    if PROF:
        a.stamp(10)
        a(f"""
        s_mov_b64 exec, 1
        s_lshl_b32 s76, s2, 3
        s_add_u32 s76, s76, s11
        s_lshl_b32 s76, s76, 6
        s_add_u32 s76, s76, {4<<20}
        s_add_u32 s92, s40, s76
        s_addc_u32 s93, s41, 0
        v_mov_b32 v4, 0
        """)
        a("v_mov_b32 v20, s13")
        for i in range(1, 12):
            a(f"v_mov_b32 v{20+i}, s{16+i}")
        if DBG:
            a(f"""
            s_cmp_lg_u32 s76, {4<<20}
            s_cbranch_scc1 L_end2
            """)
            for q in range(3):
                a(f"global_store_dwordx4 v4, v[{20+4*q}:{23+4*q}], s[38:39] offset:{16*q}")
        else:
          for q in range(3):
            a(f"global_store_dwordx4 v4, v[{20+4*q}:{23+4*q}], s[92:93] offset:{16*q}")
    a.label("L_end2")
    a("s_endpgm")

    hdr = open("cdna_kernels/" + NAME + ".s.ref").read().split("\n")
    head = []
    for ln in hdr:
        if ln.startswith("; @launch"):
            head.append(f"; @launch grid=(256,1,1) block=(512,1,1) lds={LDS_BYTES}")
            break
        head.append(ln)
    out = "\n".join(head) + "\n"
    out += f""".amdgcn_target "amdgcn-amd-amdhsa--gfx950"
.text
.globl {NAME}_kernel
.p2align 8
.type {NAME}_kernel,@function
{NAME}_kernel:
"""
    t0 = "s_memrealtime s[92:93]\n    s_waitcnt lgkmcnt(0)\n    s_mov_b32 s13, s92" if PROF else ""
    prio = ""
    if PRIO == 1: prio = "s_cmp_lt_u32 s11, 4\n    s_cbranch_scc1 L_noprio\n    s_setprio 1\nL_noprio:"
    if PRIO == 2: prio = "s_and_b32 s77, s11, 1\n    s_cmp_eq_u32 s77, 0\n    s_cbranch_scc1 L_noprio\n    s_setprio 1\nL_noprio:"
    out += a.text().replace("PRIOBLK", prio).replace("BAR0", "" if NOBAR0 else "s_barrier").replace("PROF_T0", t0).replace("PROF_CLR", "\n    ".join(f"s_mov_b32 s{16+i}, 0" for i in range(1,12)) if PROF else "")
    out += f""".section .rodata,"a"
.p2align 6
.amdhsa_kernel {NAME}_kernel
  .amdhsa_next_free_vgpr 256
  .amdhsa_next_free_sgpr 102
  .amdhsa_accum_offset 256
  .amdhsa_group_segment_fixed_size 0
  .amdhsa_kernarg_size 104
  .amdhsa_user_sgpr_count 2
  .amdhsa_user_sgpr_kernarg_segment_ptr 1
  .amdhsa_system_sgpr_workgroup_id_x 1
.end_amdhsa_kernel
"""
    return out

if __name__ == "__main__":
    for o in sys.argv[2:]:
        if o == "prof": PROF = True
        elif o == "dbg": PROF = True; DBG = True
        elif o == "wnt": NT_W = " nt"
        elif o == "kvplain": NT_KV = ""
        elif o == "norot": ROT = False
        elif o.startswith("sleep"): POLL_SLEEP = int(o[5:])
        elif o.startswith("prio"): PRIO = int(o[4:])
        elif o == "nobar0": NOBAR0 = True
        elif o.startswith("rbase"): RBASE = int(o[5:])
    path = sys.argv[1] if len(sys.argv) > 1 else "cdna_kernels/" + NAME + ".s"
    open(path, "w").write(gen())
```

```python
import sys, struct

PROF = False
DBG = False
DBGPROF = False
NT_KV = " nt"
NT_W = ""
ROT = True
POLL_SLEEP = 4
RBASE = 0
PRIO = 0
NOBAR0 = False
NRED = 40
NWQ = 20
NWO = 4
ACOLD = False
ASSIGN = "ct"
RHO = "h5s"
EK = 2
XROT = 0
NOCLR = False
EKW = 8
NOSYNC = False
NOFLAG = False
NOX = False
AQ4 = False
NOQ = False
NOBAR1 = False
BARQ = True
CLRW = 1
QSLEEP = 2
NAME = "concat_heads__sliding_block_cached__gqa_block_cached__decode"

class A:
    def __init__(self):
        self.l = []
    def __call__(self, s):
        for ln in s.strip("\n").split("\n"):
            if ln.strip():
                self.l.append("    " + ln.strip())
    def stamp(self, i):
        if not PROF: return
        self(f"""
        s_memrealtime s[92:93]
        s_waitcnt lgkmcnt(0)
        s_mov_b32 s{16+i}, s92
        """)

    def label(self, s):
        self.l.append(s + ":")
    def text(self):
        return "\n".join(self.l) + "\n"

def vr(b, n=1):
    return f"v{b}" if n == 1 else f"v[{b}:{b+n-1}]"

QPART = 0
QBUF = 4096
MBUF = 4352
LBUF = 4384
OPART = 4608
YPART = 8704
MLBUF = YPART + 8 * 2560
FINB = MLBUF + 2048
FINA = FINB + 2048
LDS_BYTES = 36864
ML_OFF = 256 * 2560
NREP = 5
QX_OFF = ML_OFF + NREP * 4096
E_OFF = QX_OFF + 256 * 512
WS_BYTES = E_OFF + 256

V_TID = 0
V_LANE = 1
V_N = 2
V_G = 3
V_T0 = 4
V_SELLO = 12
V_SELHI = 16
V_X = 20
V_SC = 20
V_B0 = 44
V_B1 = 48
V_ACC = 52
V_QF = 44
V_OFFA = 60
V_OFFB = 61
V_OFFC = 62
V_OFFD = 63
V_L = 64
V_MC = 65
V_DUMMY = 66
V_CNT = 67
V_OA = 68
V_ML = 72
V_W1 = 74
V_W2 = 75
V_DL = [48, 52, 56, 76]
R1 = 80
R2 = 160

C_SCALE = 0.08838834764831845 * 1.4426950408889634
def f32bits(x):
    return struct.unpack("<I", struct.pack("<f", x))[0]

def STEP():
    return 4096 if ASSIGN == "ct" else 32768

def rhoblk():
    r = {"0": "s_mov_b32 s77, 0", "h": "s_mov_b32 s77, s9", "hs": "s_add_u32 s77, s9, s6", "s": "s_mov_b32 s77, s6",
         "h5": "s_add_u32 s77, s9, s5\n    s_lshr_b32 s78, s9, 3\n    s_add_u32 s77, s77, s78",
         "h5s": "s_add_u32 s77, s9, s5\n    s_lshr_b32 s78, s9, 3\n    s_add_u32 s77, s77, s78\n    s_add_u32 s77, s77, s6",
         "j": "s_mov_b32 s77, s4"}[RHO]
    r += "\n    s_add_u32 s77, s77, s11\n    s_and_b32 s77, s77, 7\n"
    if ASSIGN == "ct":
        r += """    s_lshr_b32 s78, s7, 3
    s_and_b32 s79, s7, 7
    s_mul_i32 s83, s77, s78
    s_min_u32 s79, s77, s79
    s_add_u32 s83, s83, s79
    s_lshl_b32 s83, s83, 12"""
    else:
        r += "    s_lshl_b32 s83, s77, 12"
    return r

TS = ["s94", "s95", "s96", "s98"]
def chk(a, dst, units, tmp):
    first = True
    for u in units:
        for r in range(4):
            a(f"v_xor_b32 v{tmp+r}, {TS[r]}, v{u+r}")
        if first:
            a(f"v_or3_b32 {dst}, v{tmp}, v{tmp+1}, v{tmp+2}")
            a(f"v_or_b32 {dst}, {dst}, v{tmp+3}")
            first = False
        else:
            a(f"v_or3_b32 {dst}, {dst}, v{tmp}, v{tmp+1}")
            a(f"v_or3_b32 {dst}, {dst}, v{tmp+2}, v{tmp+3}")
    a(f"v_and_b32 {dst}, 0xfff, {dst}")
    a(f"v_cmp_ne_u32 vcc, 0, {dst}")

def tag(a, base):
    for r in range(4):
        a(f"v_bfi_b32 v{base+r}, v11, {TS[r]}, v{base+r}")

def wo_loads(a):
    for t in range(NWO):
        a(f"""
        s_add_u32 s76, s15, {t}
        s_and_b32 s76, s76, 3
        s_mul_i32 s76, s76, 40960
        """)
        for cb in range(5):
            a(f"buffer_load_dwordx4 {vr(R1+4*(t*5+cb),4)}, {vr(V_OFFD)}, s[64:67], s76 offen offset:{cb*256}{NT_W}")

def body(a, nt):
    L = f"L{nt}"
    nC = 0
    def buildB(dst, src, hi):
        sel = V_SELHI if hi else V_SELLO
        for c in range(4):
            a(f"v_perm_b32 {vr(dst+c)}, {vr(src)}, {vr(src)}, {vr(sel+c)}")
    if EKW < 8:
        a(f"""
        s_cmp_lt_u32 s11, {EKW}
        s_cbranch_scc1 {L}_ekdone
        s_mov_b32 s76, s83
        """)
        for u in range(EK):
            for j in range(4):
                a(f"buffer_load_dwordx4 {vr(R2+16*u+4*j,4)}, {vr(V_OFFB)}, s[56:59], s76 offen offset:{j*1024}{NT_KV}")
            if u < EK - 1:
                a(f"s_add_u32 s76, s76, {STEP()}")
        a.label(f"{L}_ekdone")
    a(f"s_add_u32 s76, s83, {EK*STEP()}")
    for u in range(EK, nt):
        for j in range(4):
            a(f"buffer_load_dwordx4 {vr(R2+16*u+4*j,4)}, {vr(V_OFFB)}, s[56:59], s76 offen offset:{j*1024}{NT_KV}")
        if u < nt - 1:
            a(f"s_add_u32 s76, s76, {STEP()}")
    a(f"""
    s_cmp_eq_u32 s11, 0
    s_cbranch_scc1 {L}_poll
    """)
    wo_loads(a)
    a.stamp(3)
    a(f"s_branch {L}_bar2")
    a.label(f"{L}_poll")
    if NOQ:
        a(f"s_branch {L}_bar2")
    a(f"""
    v_lshlrev_b32 v8, 4, {vr(V_LANE)}
    s_mov_b64 exec, 0xffffffff
    """)
    a.label(f"{L}_fok")
    for k in range(2):
        a(f"buffer_load_dwordx4 v[{20+4*k}:{23+4*k}], v8, s[88:91], 0 offen offset:{k*512} sc1")
    a(f"""
    s_cmp_eq_u32 s12, 0
    s_cbranch_scc1 {L}_pA
    """)
    for k in range(2, 6):
        a(f"buffer_load_dwordx4 v[{20+4*k}:{23+4*k}], v8, s[88:91], 0 offen offset:{k*512} sc1")
    a("s_waitcnt vmcnt(0)")
    chk(a, "v7", [20 + 4 * k for k in range(6)], 44)
    a(f"""
    s_cbranch_vccz {L}_qokB
    s_sleep {QSLEEP}
    s_branch {L}_fok
    """)
    a.label(f"{L}_qokB")
    for r in range(4):
        a(f"""
        v_add_f32 v{20+r}, v{20+r}, v{24+r}
        v_add_f32 v{28+r}, v{28+r}, v{32+r}
        v_add_f32 v{36+r}, v{36+r}, v{40+r}
        """)
    for r in range(4):
        a(f"""
        v_add_f32 v{20+r}, v{20+r}, v{28+r}
        """)
    for r in range(4):
        a(f"""
        v_add_f32 v{20+r}, v{20+r}, v{36+r}
        """)
    a(f"s_branch {L}_qsum")
    a.label(f"{L}_pA")
    a("s_waitcnt vmcnt(0)")
    chk(a, "v7", [20, 24], 44)
    a(f"""
    s_cbranch_vccz {L}_qokA
    s_sleep {QSLEEP}
    s_branch {L}_fok
    """)
    a.label(f"{L}_qokA")
    for r in range(4):
        a(f"v_add_f32 v{20+r}, v{20+r}, v{24+r}")
    a.label(f"{L}_qsum")
    a(f"""
    v_cvt_pk_bf16_f32 v20, v20, v21
    v_cvt_pk_bf16_f32 v22, v22, v23
    v_lshrrev_b32 v6, 3, {vr(V_LANE)}
    v_lshlrev_b32 v6, 6, v6
    v_and_b32 v7, 7, {vr(V_LANE)}
    v_lshl_add_u32 v6, v7, 1, v6
    ds_write_b16 v6, v20 offset:{QBUF}
    ds_write_b16_d16_hi v6, v20 offset:{QBUF+16}
    ds_write_b16 v6, v22 offset:{QBUF+32}
    ds_write_b16_d16_hi v6, v22 offset:{QBUF+48}
    s_mov_b64 exec, -1
    s_waitcnt lgkmcnt(0)
    """)
    a.stamp(3)
    a.label(f"{L}_bar2")
    a(f"""
    s_barrier
    v_and_b32 {vr(V_T0)}, 3, {vr(V_N)}
    v_lshl_add_u32 {vr(V_T0)}, {vr(V_G)}, 2, {vr(V_T0)}
    v_lshlrev_b32 {vr(V_T0)}, 4, {vr(V_T0)}
    ds_read_b128 {vr(V_QF,4)}, {vr(V_T0)} offset:{QBUF}
    s_cmp_lg_u32 s11, 0
    s_cbranch_scc1 {L}_wodone
    """)
    wo_loads(a)
    a.label(f"{L}_wodone")
    a("s_waitcnt lgkmcnt(0)")
    a.stamp(4)
    def qk_reduce(u):
        a("s_nop 1")
        for j in range(4):
            a(f"v_mov_b32_dpp {vr(V_SC+4*u+j)}, {vr(V_DL[j])} quad_perm:[0,0,0,0] row_mask:0xf bank_mask:0xf")
        for r in range(1, 4):
            for j in range(4):
                a(f"v_add_f32_dpp {vr(V_SC+4*u+j)}, {vr(V_DL[j]+r)}, {vr(V_SC+4*u+j)} quad_perm:[{r},{r},{r},{r}] row_mask:0xf bank_mask:0xf")
    a("s_mov_b32 s76, s83")
    for u in range(nt):
        a(f"s_waitcnt vmcnt({4*(nt-1-u)+nC+5*NWO+4*u})")
        for j in range(4):
            a(f"v_mfma_f32_16x16x32_bf16 {vr(V_DL[j],4)}, {vr(R2+16*u+4*j,4)}, {vr(V_QF,4)}, 0")
        for r in range(4):
            a(f"buffer_load_dwordx4 {vr(R2+16*u+4*r,4)}, {vr(V_OFFC)}, s[60:63], s76 offen offset:{r*1024}{NT_KV}")
        qk_reduce(u)
        if u < nt - 1:
            a(f"s_add_u32 s76, s76, {STEP()}")
    a.stamp(5)
    n = 4 * nt
    a(f"v_max3_f32 {vr(V_T0)}, {vr(V_SC)}, {vr(V_SC+1)}, {vr(V_SC+2)}")
    k = 3
    while k < n:
        if k + 1 < n:
            a(f"v_max3_f32 {vr(V_T0)}, {vr(V_T0)}, {vr(V_SC+k)}, {vr(V_SC+k+1)}")
            k += 2
        else:
            a(f"v_max_f32 {vr(V_T0)}, {vr(V_T0)}, {vr(V_SC+k)}")
            k += 1
    a(f"""
    s_nop 0
    v_readlane_b32 s76, {vr(V_T0)}, 0
    v_readlane_b32 s77, {vr(V_T0)}, 16
    v_readlane_b32 s78, {vr(V_T0)}, 32
    v_readlane_b32 s79, {vr(V_T0)}, 48
    s_nop 1
    v_mov_b32 {vr(V_T0)}, s76
    v_max_f32 {vr(V_T0)}, s77, {vr(V_T0)}
    v_max_f32 {vr(V_T0)}, s78, {vr(V_T0)}
    v_max_f32 {vr(V_T0)}, s79, {vr(V_T0)}
    s_lshl_b32 s76, s11, 2
    v_mov_b32 {vr(V_T0+1)}, s76
    ds_write_b32 {vr(V_T0+1)}, {vr(V_T0)} offset:{MBUF}
    s_waitcnt lgkmcnt(0)
    s_barrier
    v_mov_b32 {vr(V_T0+1)}, 0
    ds_read_b128 {vr(V_QF,4)}, {vr(V_T0+1)} offset:{MBUF}
    ds_read_b128 {vr(V_QF+4,4)}, {vr(V_T0+1)} offset:{MBUF+16}
    s_waitcnt lgkmcnt(0)
    v_max3_f32 {vr(V_T0)}, {vr(V_QF)}, {vr(V_QF+1)}, {vr(V_QF+2)}
    v_max3_f32 {vr(V_T0)}, {vr(V_T0)}, {vr(V_QF+3)}, {vr(V_QF+4)}
    v_max3_f32 {vr(V_T0)}, {vr(V_T0)}, {vr(V_QF+5)}, {vr(V_QF+6)}
    v_max_f32 {vr(V_T0)}, {vr(V_T0)}, {vr(V_QF+7)}
    v_mul_f32 {vr(V_MC)}, s82, {vr(V_T0)}
    """)
    for k in range(n):
        a(f"v_fma_f32 {vr(V_SC+k)}, {vr(V_SC+k)}, s82, -{vr(V_MC)}")
    for k in range(n):
        a(f"v_exp_f32 {vr(V_SC+k)}, {vr(V_SC+k)}")
    a("s_nop 0")
    a(f"v_add_f32 {vr(V_L)}, {vr(V_SC)}, {vr(V_SC+1)}")
    for k in range(2, n):
        a(f"v_add_f32 {vr(V_L)}, {vr(V_L)}, {vr(V_SC+k)}")
    a(f"""
    s_lshl_b32 s76, s11, 4
    v_lshlrev_b32 {vr(V_T0)}, 2, {vr(V_G)}
    v_add_u32 {vr(V_T0)}, s76, {vr(V_T0)}
    s_mov_b64 exec, s[84:85]
    ds_write_b32 {vr(V_T0)}, {vr(V_L)} offset:{LBUF}
    s_mov_b64 exec, -1
    """)
    for k in range(0, n, 2):
        a(f"v_cvt_pk_bf16_f32 {vr(V_SC+k)}, {vr(V_SC+k)}, {vr(V_SC+k+1)}")
    a(f"""
    s_waitcnt lgkmcnt(0)
    s_barrier
    v_lshlrev_b32 v4, 2, {vr(V_LANE)}
    v_and_b32 v4, 127, v4
    ds_read_b32 v5, v4 offset:{LBUF}
    s_waitcnt lgkmcnt(0)
    s_nop 1
    v_add_f32_dpp v5, v5, v5 quad_perm:[1,0,3,2] row_mask:0xf bank_mask:0xf
    s_nop 1
    v_add_f32_dpp v5, v5, v5 quad_perm:[2,3,0,1] row_mask:0xf bank_mask:0xf
    s_nop 1
    v_add_f32_dpp v5, v5, v5 row_half_mirror row_mask:0xf bank_mask:0xf
    s_nop 1
    v_add_f32_dpp v5, v5, v5 row_mirror row_mask:0xf bank_mask:0xf
    s_nop 1
    v_readlane_b32 s76, v5, 16
    s_nop 1
    v_add_f32 v5, s76, v5
    v_mov_b32 {vr(V_ML)}, {vr(V_MC)}
    v_mov_b32 {vr(V_ML+1)}, v5
    v_mov_b32 {vr(V_ML+2)}, s42
    v_mov_b32 {vr(V_ML+3)}, s43
    """)
    a.stamp(6)
    def psrc(u, r):
        return V_SC + 4 * u + (r // 2) * 2, r % 2
    seq = [(u, r) for u in range(nt) for r in range(4)]
    s0, h0 = psrc(*seq[0])
    buildB(V_B0, s0, h0)
    nV = 4 * nt
    for idx, (u, r) in enumerate(seq):
        cur = V_B0 if idx % 2 == 0 else V_B1
        nxt = V_B1 if idx % 2 == 0 else V_B0
        if idx + 1 < len(seq):
            s1, h1 = psrc(*seq[idx + 1])
            buildB(nxt, s1, h1)
        else:
            a("s_nop 1")
        a(f"s_waitcnt vmcnt({nV-1-idx})")
        c = "0" if idx == 0 else vr(V_ACC, 4)
        a(f"v_mfma_f32_16x16x32_bf16 {vr(V_ACC,4)}, {vr(R2+16*u+4*r,4)}, {vr(cur,4)}, {c}")
    a.stamp(7)
    a("s_branch L_tail")

def gen():
    a = A()
    a(f"""
    s_cmp_ge_u32 s2, 256
    s_cbranch_scc1 L_end2
    s_load_dwordx16 s[16:31], s[0:1], 0
    s_load_dwordx8 s[32:39], s[0:1], 64
    s_load_dwordx2 s[40:41], s[0:1], 96
    PROF_T0
    s_and_b32 s3, s2, 7
    s_lshr_b32 s4, s2, 3
    v_lshrrev_b32 v1, 6, v0
    v_and_b32 v0, 0x3ff, v0
    v_readfirstlane_b32 s11, v1
    v_and_b32 {vr(V_LANE)}, 63, v0
    v_and_b32 {vr(V_N)}, 15, {vr(V_LANE)}
    v_lshrrev_b32 {vr(V_G)}, 4, {vr(V_LANE)}
    s_mul_i32 s5, s4, 43
    s_lshr_b32 s5, s5, 8
    s_mul_i32 s6, s5, 6
    s_sub_u32 s6, s4, s6
    s_cmp_lt_u32 s6, 4
    s_cselect_b32 s7, 43, 42
    s_mul_i32 s8, s6, 43
    s_max_u32 s76, s6, 4
    s_sub_u32 s76, s76, 4
    s_sub_u32 s8, s8, s76
    s_lshl_b32 s8, s8, 4
    s_sub_u32 s77, s4, 24
    s_lshr_b32 s78, s77, 1
    s_and_b32 s79, s77, 1
    s_lshl_b32 s80, s79, 9
    s_add_u32 s80, s80, {0 if ACOLD else 3072}
    s_cmp_lt_u32 s4, 24
    s_cselect_b32 s5, s5, s78
    s_cselect_b32 s6, s6, s79
    s_cselect_b32 s7, s7, 32
    s_cselect_b32 s8, s8, s80
    s_cselect_b32 s12, 1, 0
    s_add_u32 s9, s3, {XROT}
    s_and_b32 s9, s9, 7
    s_lshl_b32 s9, s9, 2
    s_add_u32 s9, s9, s5
    s_mul_i32 s10, s9, 6
    s_add_u32 s10, s10, s6
    s_lshl_b32 s76, s9, 1
    s_add_u32 s76, s76, s6
    s_add_u32 s76, s76, 192
    s_cmp_eq_u32 s12, 1
    s_cselect_b32 s10, s10, s76
    s_and_b32 s15, s6, 3
    s_lshl_b32 s77, s6, 1
    s_cmp_eq_u32 s12, 1
    s_cselect_b32 s15, s15, s77
    s_cselect_b32 s94, 48, 16
    s_cselect_b32 s96, 5, 1
    s_lshl_b32 s14, s94, 15
    s_lshl_b32 s94, s94, 3
    s_sub_u32 s95, s10, s6
    {"" if ROT else "s_mov_b32 s15, 0"}
    s_sub_u32 s99, s2, {RBASE}
    s_mov_b32 s80, 0x00ff00ff
    s_mov_b32 s81, 0x00ff00ff
    s_mov_b32 s82, 0x{f32bits(C_SCALE):08x}
    s_mov_b32 s84, 0x00010001
    s_mov_b32 s85, 0x00010001
    s_mov_b32 s55, 0x00020000
    s_mov_b32 s59, 0x00020000
    s_mov_b32 s63, 0x00020000
    s_mov_b32 s67, 0x00020000
    s_mov_b32 s71, 0x00020000
    s_mov_b32 s75, 0x00020000
    s_mov_b32 s70, 1280
    s_mov_b32 s66, 163840
    s_mov_b32 s74, {WS_BYTES}
    s_lshl_b32 s58, s7, 12
    s_mov_b32 s62, s58
    s_lshl_b32 s76, s6, 3
    s_add_u32 s76, s76, s11
    s_lshl_b32 s77, s76, 3
    v_lshlrev_b32 v10, 1, {vr(V_G)}
    v_add_u32 v10, s77, v10
    s_lshl_b32 s76, s76, 15
    v_lshlrev_b32 {vr(V_OFFA)}, 13, {vr(V_G)}
    v_lshl_add_u32 {vr(V_OFFA)}, {vr(V_N)}, 4, {vr(V_OFFA)}
    v_add_u32 {vr(V_OFFA)}, s76, {vr(V_OFFA)}
    s_lshl_b32 s78, s9, 8
    s_sub_u32 s54, {640*8192}, s78
    RHOBLK
    s_sub_u32 s97, s7, s77
    s_add_u32 s97, s97, 7
    s_lshr_b32 s97, s97, 3
    v_lshrrev_b32 {vr(V_OFFB)}, 2, {vr(V_N)}
    v_lshlrev_b32 {vr(V_OFFB)}, 8, {vr(V_OFFB)}
    v_lshl_add_u32 {vr(V_OFFB)}, {vr(V_G)}, 6, {vr(V_OFFB)}
    v_and_b32 {vr(V_OFFC)}, 3, {vr(V_N)}
    v_lshl_add_u32 {vr(V_OFFB)}, {vr(V_OFFC)}, 4, {vr(V_OFFB)}
    s_lshl_b32 s78, s9, 8
    s_waitcnt lgkmcnt(0)
    s_cmp_eq_u32 s12, 1
    s_cselect_b64 s[48:49], s[32:33], s[22:23]
    s_cselect_b64 s[68:69], s[26:27], s[16:17]
    s_cselect_b64 s[44:45], s[28:29], s[18:19]
    s_cselect_b64 s[46:47], s[30:31], s[20:21]
    s_cselect_b64 s[50:51], s[34:35], s[24:25]
    s_add_u32 s52, s48, s78
    s_addc_u32 s53, s49, 0
    s_mov_b32 s72, s40
    s_mov_b32 s73, s41
    s_load_dword s42, s[40:41], {E_OFF}
    s_mov_b32 s76, 0
    """)
    def wq_load(i):
        a(f"buffer_load_dwordx4 {vr(R1+4*i,4)}, {vr(V_OFFA)}, s[52:55], s76 offen{NT_W}")
        a("s_add_u32 s76, s76, s14")
    for i in range(4): wq_load(i)
    a("s_branch L_wq4" if AQ4 else "s_cmp_eq_u32 s12, 1\ns_cbranch_scc1 L_wq4")
    for i in range(4, 10): wq_load(i)
    a.label("L_wq4")
    a("s_mov_b32 s76, 0")
    def x_load(i):
        a(f"buffer_load_ushort {vr(V_X+i)}, v10, s[68:71], s76 offen")
        a("s_add_u32 s76, s76, s94")
    if NOX: a("s_branch L_x4")
    for i in range(4): x_load(i)
    a("s_cmp_eq_u32 s12, 1\ns_cbranch_scc1 L_x4")
    for i in range(4, 10): x_load(i)
    a.label("L_x4")
    a(f"""
    s_lshl_b32 s76, s9, 20
    s_lshl_b32 s77, s8, 8
    s_add_u32 s76, s76, s77
    s_add_u32 s56, s44, s76
    s_addc_u32 s57, s45, 0
    s_add_u32 s60, s46, s76
    s_addc_u32 s61, s47, 0
    s_mul_i32 s76, s9, 163840
    s_add_u32 s64, s50, s76
    s_addc_u32 s65, s51, 0
    s_lshl_b32 s76, s95, 9
    s_add_u32 s76, s76, {QX_OFF}
    s_add_u32 s88, s40, s76
    s_addc_u32 s89, s41, 0
    s_add_u32 s90, s96, 1
    s_lshl_b32 s90, s90, 9
    s_mov_b32 s91, 0x00020000
    PROF_CLR
    PRIOBLK
    BAR0
    s_mov_b32 s76, s83
    s_cmp_ge_u32 s11, {EKW}
    s_cbranch_scc1 L_noek
    """)
    for u in range(EK):
        for j in range(4):
            a(f"buffer_load_dwordx4 {vr(R2+16*u+4*j,4)}, {vr(V_OFFB)}, s[56:59], s76 offen offset:{j*1024}{NT_KV}")
        if u < EK - 1:
            a(f"s_add_u32 s76, s76, {STEP()}")
    a.label("L_noek")
    a(f"""
    v_lshlrev_b32 {vr(V_OFFC)}, 4, {vr(V_LANE)}
    s_mul_i32 s76, s11, {4*1280}
    v_mul_u32_u24 {vr(V_OFFD)}, 1280, {vr(V_G)}
    v_lshl_add_u32 {vr(V_OFFD)}, {vr(V_N)}, 4, {vr(V_OFFD)}
    v_add_u32 {vr(V_OFFD)}, s76, {vr(V_OFFD)}
    """)
    a.stamp(1)
    a(f"""
    v_and_b32 {vr(V_T0+8)}, 1, {vr(V_N)}
    v_cmp_eq_u32 vcc, 1, {vr(V_T0+8)}
    v_mov_b32 {vr(V_B0+1)}, 0x0c0c0100
    v_mov_b32 {vr(V_B0+2)}, 0x01000c0c
    v_mov_b32 {vr(V_B0+3)}, 0x0c0c0302
    v_mov_b32 {vr(V_B0+4)}, 0x03020c0c
    v_cndmask_b32 {vr(V_B0+1)}, {vr(V_B0+1)}, {vr(V_B0+2)}, vcc
    v_cndmask_b32 {vr(V_B0+3)}, {vr(V_B0+3)}, {vr(V_B0+4)}, vcc
    v_lshrrev_b32 {vr(V_B0)}, 1, {vr(V_N)}
    v_mov_b32 {vr(V_B0+2)}, 0x0c0c0c0c
    """)
    for c in range(4):
        a(f"""
        v_cmp_eq_u32 vcc, {c}, {vr(V_B0)}
        s_nop 1
        v_cndmask_b32 {vr(V_SELLO+c)}, {vr(V_B0+2)}, {vr(V_B0+1)}, vcc
        v_cndmask_b32 {vr(V_SELHI+c)}, {vr(V_B0+2)}, {vr(V_B0+3)}, vcc
        """)
    a(f"""
    v_and_b32 {vr(V_B0)}, 7, {vr(V_N)}
    v_lshlrev_b32 {vr(V_B0)}, 9, {vr(V_B0)}
    v_lshl_add_u32 {vr(V_B0)}, {vr(V_G)}, 2, {vr(V_B0)}
    s_lshl_b32 s76, s11, 4
    v_add_u32 {vr(V_B0)}, s76, {vr(V_B0)}
    """)
    for t in range(4):
        a(f"""
        s_add_u32 s76, s15, {t}
        s_and_b32 s76, s76, 3
        s_lshl_b32 s76, s76, 7
        v_add_u32 {vr(V_OA+t)}, s76, {vr(V_B0)}
        """)
    a(f"""
    s_cmp_ge_u32 s11, {EKW}
    s_cbranch_scc1 L_w0
    s_waitcnt vmcnt({4*EK})
    s_branch L_w1
    """)
    a.label("L_w0")
    a("s_waitcnt vmcnt(0)")
    a.label("L_w1")
    def buildBq(dst, src):
        for c in range(4):
            a(f"v_perm_b32 {vr(dst+c)}, {vr(src)}, {vr(src)}, {vr(V_SELLO+c)}")
    buildBq(V_B0, V_X)
    for t in range(10):
        cur = V_B0 if t % 2 == 0 else V_B1
        nxt = V_B1 if t % 2 == 0 else V_B0
        if t == 3:
            a("s_nop 1")
            a(f"v_mfma_f32_16x16x32_bf16 {vr(V_ACC,4)}, {vr(R1+4*t,4)}, {vr(cur,4)}, {vr(V_ACC,4)}")
            a("s_cmp_eq_u32 s12, 1\ns_cbranch_scc1 L_q4")
            buildBq(nxt, V_X + t + 1)
            a("s_nop 1")
            continue
        if t < 9:
            buildBq(nxt, V_X + t + 1)
        else:
            a("s_nop 1")
        c = "0" if t == 0 else vr(V_ACC, 4)
        a(f"v_mfma_f32_16x16x32_bf16 {vr(V_ACC,4)}, {vr(R1+4*t,4)}, {vr(cur,4)}, {c}")
    a.label("L_q4")
    a.stamp(2)
    a(f"""
    s_waitcnt lgkmcnt(0)
    s_add_u32 s42, s42, 1
    s_not_b32 s43, s42
    s_and_b32 s94, s42, 0xfff
    s_bfe_u32 s95, s42, 0xc000c
    s_lshr_b32 s96, s42, 24
    s_lshl_b32 s98, s42, 8
    s_or_b32 s96, s96, s98
    s_and_b32 s96, s96, 0xfff
    s_xor_b32 s98, s42, 0x5a5
    s_and_b32 s98, s98, 0xfff
    v_lshlrev_b32 {vr(V_T0)}, 3, {vr(V_G)}
    v_add_u32 {vr(V_T0)}, {vr(V_T0)}, {vr(V_N)}
    v_lshlrev_b32 {vr(V_T0)}, 4, {vr(V_T0)}
    s_lshl_b32 s76, s11, 9
    v_add_u32 {vr(V_T0)}, s76, {vr(V_T0)}
    s_nop 4
    s_mov_b64 exec, s[80:81]
    ds_write_b128 {vr(V_T0)}, {vr(V_ACC,4)} offset:{QPART}
    s_mov_b64 exec, -1
    s_waitcnt lgkmcnt(0)
    s_barrier
    s_cmp_lg_u32 s11, 0
    s_cbranch_scc1 L_nopart
    v_lshlrev_b32 v8, 4, {vr(V_LANE)}
    v_mov_b32 v11, 0xfff
    s_mov_b64 exec, 0xffffffff
    """)
    for w in range(8):
        a(f"ds_read_b128 v[{20+4*w}:{23+4*w}], v8 offset:{QPART+w*512}")
    a("s_waitcnt lgkmcnt(0)")
    for r in range(4):
        a(f"""
        v_add_f32 v{20+r}, v{20+r}, v{24+r}
        v_add_f32 v{28+r}, v{28+r}, v{32+r}
        v_add_f32 v{36+r}, v{36+r}, v{40+r}
        v_add_f32 v{44+r}, v{44+r}, v{48+r}
        """)
    for r in range(4):
        a(f"""
        v_add_f32 v{20+r}, v{20+r}, v{28+r}
        v_add_f32 v{36+r}, v{36+r}, v{44+r}
        """)
    for r in range(4):
        a(f"v_add_f32 v{20+r}, v{20+r}, v{36+r}")
    tag(a, 20)
    a(f"""
    s_lshl_b32 s76, s10, 9
    s_add_u32 s76, s76, {QX_OFF}
    buffer_store_dwordx4 v[20:23], v8, s[72:75], s76 offen sc1
    s_mov_b64 exec, -1
    """)
    a.label("L_nopart")
    a("""
    s_cmp_eq_u32 s97, 6
    s_cbranch_scc1 L6_start
    s_cmp_eq_u32 s97, 5
    s_cbranch_scc1 L5_start
    """)
    for nt in (4, 5, 6):
        a.label(f"L{nt}_start")
        body(a, nt)
    a.label("L_tail")
    def buildB(dst, src, hi):
        sel = V_SELHI if hi else V_SELLO
        for c in range(4):
            a(f"v_perm_b32 {vr(dst+c)}, {vr(src)}, {vr(src)}, {vr(sel+c)}")
    a(f"""
    v_lshlrev_b32 {vr(V_T0)}, 5, {vr(V_G)}
    v_add_u32 {vr(V_T0)}, {vr(V_T0)}, {vr(V_N)}
    v_lshlrev_b32 {vr(V_T0)}, 2, {vr(V_T0)}
    s_lshl_b32 s76, s11, 9
    v_add_u32 {vr(V_T0)}, s76, {vr(V_T0)}
    s_nop 4
    s_mov_b64 exec, s[80:81]
    """)
    for r in range(4):
        a(f"ds_write_b32 {vr(V_T0)}, {vr(V_ACC+r)} offset:{OPART+r*32}")
    a(f"""
    s_mov_b64 exec, -1
    s_cmp_lg_u32 s11, 7
    s_cbranch_scc1 L_nomlst
    v_lshlrev_b32 v9, 12, {vr(V_LANE)}
    s_lshl_b32 s76, s10, 4
    s_add_u32 s76, s76, {ML_OFF}
    s_mov_b64 exec, {(1<<NREP)-1}
    buffer_store_dwordx4 {vr(V_ML,4)}, v9, s[72:75], s76 offen sc1
    s_mov_b64 exec, -1
L_nomlst:
    """)
    a.label("L_nopre")
    a("s_waitcnt lgkmcnt(0)")
    a("s_barrier")
    for t in range(4):
        a(f"ds_read_b32 {vr(V_T0+4+t)}, {vr(V_OA+t)} offset:{OPART}")
    a("s_waitcnt lgkmcnt(0)")
    for dpp in ["quad_perm:[1,0,3,2]", "quad_perm:[2,3,0,1]", "row_half_mirror"]:
        for t in range(4):
            a(f"v_add_f32_dpp {vr(V_T0+4+t)}, {vr(V_T0+4+t)}, {vr(V_T0+4+t)} {dpp} row_mask:0xf bank_mask:0xf")
    a(f"""
    v_cvt_pk_bf16_f32 {vr(V_T0+4)}, {vr(V_T0+4)}, {vr(V_T0+5)}
    v_cvt_pk_bf16_f32 {vr(V_T0+6)}, {vr(V_T0+6)}, {vr(V_T0+7)}
    """)
    VB = 20
    VY = 36
    for t in range(4):
        buildB(VB + 4 * t, V_T0 + 4 + (t // 2) * 2, t % 2)
    for t in range(4):
        for cb in range(5):
            c = "0" if t == 0 else vr(VY + 4 * cb, 4)
            a(f"v_mfma_f32_16x16x32_bf16 {vr(VY+4*cb,4)}, {vr(R1+4*(t*5+cb),4)}, {vr(VB+4*t,4)}, {c}")
    a(f"""
    v_lshlrev_b32 {vr(V_T0)}, 3, {vr(V_G)}
    v_add_u32 {vr(V_T0)}, {vr(V_T0)}, {vr(V_N)}
    v_lshlrev_b32 {vr(V_T0)}, 4, {vr(V_T0)}
    s_mul_i32 s76, s11, 2560
    v_add_u32 {vr(V_T0)}, s76, {vr(V_T0)}
    s_nop 4
    s_mov_b64 exec, s[80:81]
    """)
    for cb in range(5):
        a(f"ds_write_b128 {vr(V_T0)}, {vr(VY+4*cb,4)} offset:{YPART+cb*512}")
    a(f"""
    s_mov_b64 exec, -1
    s_waitcnt lgkmcnt(0)
    s_barrier
    """)
    a.stamp(8)
    a(f"""
    s_cmp_gt_u32 s11, 2
    s_cbranch_scc1 L_after_store
    v_cmp_gt_u32 vcc, 160, v0
    s_and_saveexec_b64 s[86:87], vcc
    s_cbranch_execz L_tail_y_done
    v_lshlrev_b32 v4, 4, v0
    v_lshrrev_b32 v5, 2, v0
    v_and_b32 v6, 3, v0
    v_lshlrev_b32 v6, 4, v6
    v_lshl_add_u32 v5, v5, 14, v6
    """)
    for w in range(8):
        a(f"ds_read_b128 {vr(20+4*w,4)}, v4 offset:{YPART+w*2560}")
    a("s_waitcnt lgkmcnt(0)")
    for r in range(4):
        a(f"v_add_f32 v{20+r}, v{20+r}, v{24+r}")
        a(f"v_add_f32 v{28+r}, v{28+r}, v{32+r}")
        a(f"v_add_f32 v{36+r}, v{36+r}, v{40+r}")
        a(f"v_add_f32 v{44+r}, v{44+r}, v{48+r}")
    for r in range(4):
        a(f"v_add_f32 v{20+r}, v{20+r}, v{28+r}")
        a(f"v_add_f32 v{36+r}, v{36+r}, v{44+r}")
    for r in range(4):
        a(f"v_add_f32 v{20+r}, v{20+r}, v{36+r}")
    a("v_mov_b32 v11, 0xfff")
    tag(a, 20)
    a(f"""
    s_lshl_b32 s76, s10, 6
    buffer_store_dwordx4 v[20:23], v5, s[72:75], s76 offen sc1
    """)
    a.label("L_tail_y_done")
    a("s_mov_b64 exec, s[86:87]")
    a.label("L_after_store")
    a.stamp(9)
    a(f"""
    s_cmp_ge_u32 s99, {NRED}
    s_cbranch_scc1 L_end
    """)
    a.label("L_clr_ok")
    a(f"""
    v_lshlrev_b32 v4, 4, v0
    s_lshl_b32 s78, s99, 14
    s_add_u32 s79, s78, 8192
    """)
    a(f"""
    s_cmp_gt_u32 s11, 3
    s_cbranch_scc1 L_ml_done
    v_lshlrev_b32 v9, 3, v0
    s_mul_i32 s76, s99, 52
    s_lshr_b32 s76, s76, 8
    s_mul_i32 s76, s76, 5
    s_sub_u32 s76, s99, s76
    s_lshl_b32 s76, s76, 12
    s_add_u32 s77, s76, {ML_OFF}
    """)
    a.label("L_mlpoll")
    a(f"""
    buffer_load_dwordx4 {vr(V_ML,4)}, v4, s[72:75], s77 offen sc1
    s_waitcnt vmcnt(0)
    v_xor_b32 v7, s42, {vr(V_ML+2)}
    v_xor_b32 v8, s43, {vr(V_ML+3)}
    v_or_b32 v7, v7, v8
    v_cmp_ne_u32 vcc, 0, v7
    s_cbranch_vccz L_mlok
    s_sleep {POLL_SLEEP}
    s_branch L_mlpoll
    """)
    a.label("L_mlok")
    a(f"""
    ds_write_b64 v9, {vr(V_ML,2)} offset:{MLBUF}
    s_waitcnt lgkmcnt(0)
    """)
    a.label("L_ml_done")
    def weightB(vslot, dst):
        a(f"""
        v_mul_u32_u24 v6, 171, {vr(vslot)}
        v_lshrrev_b32 v6, 10, v6
        v_mul_u32_u24 v6, 48, v6
        v_lshlrev_b32 v7, 3, {vr(vslot)}
        ds_read_b128 v[28:31], v6 offset:{MLBUF}
        ds_read_b128 v[32:35], v6 offset:{MLBUF+16}
        ds_read_b128 v[36:39], v6 offset:{MLBUF+32}
        ds_read_b32 v24, v7 offset:{MLBUF}
        s_waitcnt lgkmcnt(0)
        v_max3_f32 v7, v28, v30, v32
        v_max3_f32 v7, v7, v34, v36
        v_max_f32 v7, v7, v38
        v_sub_f32 v28, v28, v7
        v_sub_f32 v30, v30, v7
        v_sub_f32 v32, v32, v7
        v_sub_f32 v34, v34, v7
        v_sub_f32 v36, v36, v7
        v_sub_f32 v38, v38, v7
        v_sub_f32 v24, v24, v7
        v_exp_f32 v28, v28
        v_exp_f32 v30, v30
        v_exp_f32 v32, v32
        v_exp_f32 v34, v34
        v_exp_f32 v36, v36
        v_exp_f32 v38, v38
        v_exp_f32 v24, v24
        s_nop 0
        v_mul_f32 v8, v28, v29
        v_fmac_f32 v8, v30, v31
        v_fmac_f32 v8, v32, v33
        v_fmac_f32 v8, v34, v35
        v_fmac_f32 v8, v36, v37
        v_fmac_f32 v8, v38, v39
        v_rcp_f32 v8, v8
        s_nop 0
        v_mul_f32 {vr(dst)}, v24, v8
        """)
    a(f"""
    s_barrier
    buffer_load_dwordx4 v[56:59], v4, s[72:75], s78 offen sc1
    buffer_load_dwordx4 v[60:63], v4, s[72:75], s79 offen sc1
    v_lshrrev_b32 v10, 2, v0
    v_add_u32 v11, 128, v10
    """)
    weightB(10, V_W1)
    a("""
    s_cmp_gt_u32 s11, 3
    s_cbranch_scc1 L_wA
    """)
    weightB(11, V_W2)
    a("s_branch L_wdone")
    a.label("L_wA")
    a(f"""
    v_and_b32 v6, 0x1fe, v11
    v_lshlrev_b32 v6, 3, v6
    v_lshlrev_b32 v7, 3, v11
    ds_read_b128 v[28:31], v6 offset:{MLBUF}
    ds_read_b32 v24, v7 offset:{MLBUF}
    s_waitcnt lgkmcnt(0)
    v_max_f32 v7, v28, v30
    v_sub_f32 v28, v28, v7
    v_sub_f32 v30, v30, v7
    v_sub_f32 v24, v24, v7
    v_exp_f32 v28, v28
    v_exp_f32 v30, v30
    v_exp_f32 v24, v24
    s_nop 0
    v_mul_f32 v8, v28, v29
    v_fmac_f32 v8, v30, v31
    v_rcp_f32 v8, v8
    s_nop 0
    v_mul_f32 {vr(V_W2)}, v24, v8
    """)
    a.label("L_wdone")
    a("s_waitcnt vmcnt(0)")
    a.label("L_chkY")
    chk(a, "v7", [56, 60], 24)
    a(f"""
    s_cbranch_vccz L_gotY
    buffer_load_dwordx4 v[56:59], v4, s[72:75], s78 offen sc1
    buffer_load_dwordx4 v[60:63], v4, s[72:75], s79 offen sc1
    s_waitcnt vmcnt(0)
    s_branch L_chkY
    """)
    a.label("L_gotY")
    a.stamp(10)
    for r in range(4):
        a(f"v_mul_f32 v{20+r}, v{56+r}, {vr(V_W1)}")
    for r in range(4):
        a(f"v_mul_f32 v{24+r}, v{60+r}, {vr(V_W2)}")
    a("""
    s_cmp_gt_u32 s11, 3
    s_cbranch_scc1 L_redA
    """)
    for r in range(4):
        a(f"v_add_f32 v{20+r}, v{20+r}, v{24+r}")
    a("s_nop 1")
    for dpp in ("row_shr:4", "row_shr:8"):
        for r in range(4):
            a(f"v_add_f32_dpp v{20+r}, v{20+r}, v{20+r} {dpp} row_mask:0xf bank_mask:0xf bound_ctrl:0")
    a("s_branch L_redW")
    a.label("L_redA")
    for dpp in ("row_shr:4", "row_shr:8"):
        for r in range(8):
            a(f"v_add_f32_dpp v{20+r}, v{20+r}, v{20+r} {dpp} row_mask:0xf bank_mask:0xf bound_ctrl:0")
    a.label("L_redW")
    a(f"""
    v_and_b32 v5, 3, {vr(V_LANE)}
    v_lshlrev_b32 v5, 9, v5
    v_lshl_add_u32 v5, {vr(V_G)}, 2, v5
    s_lshl_b32 s76, s11, 4
    v_add_u32 v5, s76, v5
    s_mov_b32 s78, 0xf000f000
    s_mov_b32 s79, 0xf000f000
    s_mov_b64 exec, s[78:79]
    """)
    for r in range(4):
        a(f"ds_write_b32 v5, v{20+r} offset:{FINB+r*128}")
    a("""
    s_cmp_lt_u32 s11, 4
    s_cbranch_scc1 L_noA
    """)
    a(f"""
    v_and_b32 v6, 3, {vr(V_LANE)}
    v_lshlrev_b32 v6, 8, v6
    v_lshl_add_u32 v6, {vr(V_G)}, 2, v6
    s_lshl_b32 s76, s11, 4
    s_sub_u32 s76, s76, 64
    v_add_u32 v6, s76, v6
    """)
    for r in range(4):
        a(f"ds_write_b32 v6, v{24+r} offset:{FINA+r*64}")
    a.label("L_noA")
    a(f"""
    s_mov_b64 exec, -1
    s_waitcnt lgkmcnt(0)
    s_barrier
    s_cmp_lg_u32 s11, 2
    s_cbranch_scc1 L_noeupd
    s_cmp_lg_u32 s99, 0
    s_cbranch_scc1 L_noeupd
    v_mov_b32 v4, s42
    v_mov_b32 v5, 0
    s_mov_b32 s76, {E_OFF}
    s_mov_b64 exec, 1
    buffer_store_dword v4, v5, s[72:75], s76 offen sc1
    s_mov_b64 exec, -1
L_noeupd:
    s_cmp_gt_u32 s11, 1
    s_cbranch_scc1 L_end
    s_mov_b32 s88, s36
    s_mov_b32 s89, s37
    s_mov_b32 s90, 2560
    s_mov_b32 s91, 0x00020000
    s_mov_b64 exec, 0xffff
    s_cmp_eq_u32 s11, 1
    s_cbranch_scc1 L_finA
    v_lshlrev_b32 v4, 7, {vr(V_LANE)}
    """)
    for k in range(8):
        a(f"ds_read_b128 {vr(20+4*k,4)}, v4 offset:{FINB+16*k}")
    a("s_waitcnt lgkmcnt(0)")
    regs = list(range(20, 52))
    while len(regs) > 1:
        nxt = []
        for i in range(0, len(regs), 2):
            a(f"v_add_f32 v{regs[i]}, v{regs[i]}, v{regs[i+1]}")
            nxt.append(regs[i])
        regs = nxt
    a("s_movk_i32 s79, 1280")
    a("s_branch L_store")
    a.label("L_finA")
    a(f"v_lshlrev_b32 v4, 6, {vr(V_LANE)}")
    for k in range(4):
        a(f"ds_read_b128 {vr(20+4*k,4)}, v4 offset:{FINA+16*k}")
    a("s_waitcnt lgkmcnt(0)")
    regs = list(range(20, 36))
    while len(regs) > 1:
        nxt = []
        for i in range(0, len(regs), 2):
            a(f"v_add_f32 v{regs[i]}, v{regs[i]}, v{regs[i+1]}")
            nxt.append(regs[i])
        regs = nxt
    a("s_movk_i32 s79, 0")
    a.label("L_store")
    a(f"""
    v_lshrrev_b32 v5, 2, {vr(V_LANE)}
    s_lshl_b32 s76, s99, 2
    v_add_u32 v5, s76, v5
    v_lshrrev_b32 v6, 5, v5
    v_lshlrev_b32 v6, 7, v6
    v_bfe_u32 v7, v5, 3, 2
    v_lshl_add_u32 v6, v7, 5, v6
    v_and_b32 v7, 7, v5
    v_add_u32 v6, v6, v7
    v_and_b32 v7, 3, {vr(V_LANE)}
    v_lshl_add_u32 v6, v7, 3, v6
    v_lshlrev_b32 v6, 1, v6
    v_cvt_pk_bf16_f32 v20, v20, v20
    buffer_store_short v20, v6, s[88:91], s79 offen
    """)
    a.label("L_end")
    if PROF:
        a.stamp(11)
        a(f"""
        s_mov_b64 exec, 1
        s_lshl_b32 s76, s2, 3
        s_add_u32 s76, s76, s11
        s_lshl_b32 s76, s76, 6
        s_add_u32 s76, s76, {4<<20}
        s_add_u32 s92, s40, s76
        s_addc_u32 s93, s41, 0
        v_mov_b32 v4, 0
        """)
        a("v_mov_b32 v20, s13")
        for i in range(1, 12):
            a(f"v_mov_b32 v{20+i}, s{16+i}")
        if DBG:
            a(f"""
            s_cmp_lg_u32 s76, {4<<20}
            s_cbranch_scc1 L_end2
            """)
            for q in range(3):
                a(f"global_store_dwordx4 v4, v[{20+4*q}:{23+4*q}], s[38:39] offset:{16*q}")
        else:
          for q in range(3):
            a(f"global_store_dwordx4 v4, v[{20+4*q}:{23+4*q}], s[92:93] offset:{16*q}")
    a.label("L_end2")
    a("s_endpgm")

    hdr = open("cdna_kernels/" + NAME + ".s.ref").read().split("\n")
    head = []
    for ln in hdr:
        if ln.startswith("; @launch"):
            head.append(f"; @launch grid=(256,1,1) block=(512,1,1) lds={LDS_BYTES}")
            break
        head.append(ln)
    out = "\n".join(head) + "\n"
    out += f""".amdgcn_target "amdgcn-amd-amdhsa--gfx950"
.text
.globl {NAME}_kernel
.p2align 8
.type {NAME}_kernel,@function
{NAME}_kernel:
"""
    t0 = "s_memrealtime s[92:93]\n    s_waitcnt lgkmcnt(0)\n    s_mov_b32 s13, s92" if PROF else ""
    prio = ""
    if PRIO == 1: prio = "s_cmp_lt_u32 s11, 4\n    s_cbranch_scc1 L_noprio\n    s_setprio 1\nL_noprio:"
    if PRIO == 2: prio = "s_and_b32 s77, s11, 1\n    s_cmp_eq_u32 s77, 0\n    s_cbranch_scc1 L_noprio\n    s_setprio 1\nL_noprio:"
    out += a.text().replace("PRIOBLK", prio).replace("RHOBLK", rhoblk()).replace("BAR0", "" if NOBAR0 else "s_barrier").replace("PROF_T0", t0).replace("PROF_CLR", "\n    ".join(f"s_mov_b32 s{16+i}, 0" for i in range(1,12)) if PROF else "")
    out += f""".section .rodata,"a"
.p2align 6
.amdhsa_kernel {NAME}_kernel
  .amdhsa_next_free_vgpr 256
  .amdhsa_next_free_sgpr 102
  .amdhsa_accum_offset 256
  .amdhsa_group_segment_fixed_size 0
  .amdhsa_kernarg_size 104
  .amdhsa_user_sgpr_count 2
  .amdhsa_user_sgpr_kernarg_segment_ptr 1
  .amdhsa_system_sgpr_workgroup_id_x 1
.end_amdhsa_kernel
"""
    return out

if __name__ == "__main__":
    for o in sys.argv[2:]:
        if o == "prof": PROF = True
        elif o == "dbg": PROF = True; DBG = True
        elif o == "wnt": NT_W = " nt"
        elif o == "kvplain": NT_KV = ""
        elif o == "norot": ROT = False
        elif o.startswith("sleep"): POLL_SLEEP = int(o[5:])
        elif o.startswith("prio"): PRIO = int(o[4:])
        elif o == "nobar0": NOBAR0 = True
        elif o.startswith("nwq"): NWQ = int(o[3:])
        elif o.startswith("nwo"): NWO = int(o[3:])
        elif o == "acold": ACOLD = True
        elif o in ("ct", "il"): ASSIGN = o
        elif o.startswith("rho"): RHO = o[3:]
        elif o.startswith("ek") and not o.startswith("ekw"): EK = int(o[2:])
        elif o.startswith("xrot"): XROT = int(o[4:])
        elif o == "noclr": NOCLR = True
        elif o == "nosync": NOSYNC = True; NOCLR = True; NOQ = True
        elif o == "nox": NOX = True
        elif o == "noflag": NOFLAG = True
        elif o == "aq4": AQ4 = True
        elif o.startswith("ekw"): EKW = int(o[3:])
        elif o == "noq": NOQ = True
        elif o.startswith("clrw"): CLRW = int(o[4:])
        elif o.startswith("qsleep"): QSLEEP = int(o[6:])
        elif o.startswith("rbase"): RBASE = int(o[5:])
    path = sys.argv[1] if len(sys.argv) > 1 else "cdna_kernels/" + NAME + ".s"
    open(path, "w").write(gen())
```

```python
import sys, struct

PROF = False
DBG = False
DBGPROF = False
NT_KV = " nt"
NT_W = ""
ROT = True
POLL_SLEEP = 4
PD = 1
BW0 = 1
YFULL = False
MLFULL = False
STF = "sc1"
LDF = "sc1"
PSTAG = 6
RBASE = 0
PRIO = 0
NOBAR0 = False
NRED = 40
NWQ = 20
NWO = 4
ACOLD = False
ASSIGN = "ct"
RHO = "h5s"
EK = 2
XROT = 0
NOCLR = False
EKW = 8
NOSYNC = False
NOFLAG = False
NOX = False
AQ4 = False
NOQ = False
NOBAR1 = False
BARQ = True
CLRW = 1
QSLEEP = 2
NAME = "concat_heads__sliding_block_cached__gqa_block_cached__decode"

class A:
    def __init__(self):
        self.l = []
    def __call__(self, s):
        for ln in s.strip("\n").split("\n"):
            if ln.strip():
                self.l.append("    " + ln.strip())
    def stamp(self, i):
        if not PROF: return
        self(f"""
        s_memrealtime s[92:93]
        s_waitcnt lgkmcnt(0)
        s_mov_b32 s{16+i}, s92
        """)

    def label(self, s):
        self.l.append(s + ":")
    def text(self):
        return "\n".join(self.l) + "\n"

def vr(b, n=1):
    return f"v{b}" if n == 1 else f"v[{b}:{b+n-1}]"

QPART = 0
QBUF = 4096
MBUF = 4352
LBUF = 4384
OPART = 4608
OSTR = 528
YPART = 8960
MLBUF = YPART + 8 * 2560
FINB = MLBUF + 2048
SB = 144
FINA = FINB + 16 * SB
SA = 80
LDS_BYTES = 36864
ML_OFF = 256 * 2560
NREP = 5
QX_OFF = ML_OFF + NREP * 32768
E_OFF = QX_OFF + 256 * 512
WS_BYTES = E_OFF + 256

V_TID = 0
V_LANE = 1
V_N = 2
V_G = 3
V_T0 = 4
V_SELLO = 12
V_SELHI = 16
V_X = 20
V_SC = 20
V_B0 = 44
V_B1 = 48
V_ACC = 52
V_QF = 44
V_OFFA = 60
V_OFFB = 61
V_OFFC = 62
V_OFFD = 63
V_L = 64
V_MC = 65
V_DUMMY = 66
V_CNT = 67
V_OA = 68
V_ML = 72
V_W1 = 74
V_W2 = 75
V_DL = [48, 52, 56, 76]
R1 = 80
R2 = 160

C_SCALE = 0.08838834764831845 * 1.4426950408889634
def f32bits(x):
    return struct.unpack("<I", struct.pack("<f", x))[0]

def STEP():
    return 4096 if ASSIGN in ("ct", "cb") else 32768

def rhoblk():
    r = {"0": "s_mov_b32 s77, 0", "h": "s_mov_b32 s77, s9", "hs": "s_add_u32 s77, s9, s6", "s": "s_mov_b32 s77, s6",
         "h5": "s_add_u32 s77, s9, s5\n    s_lshr_b32 s78, s9, 3\n    s_add_u32 s77, s77, s78",
         "h5s": "s_add_u32 s77, s9, s5\n    s_lshr_b32 s78, s9, 3\n    s_add_u32 s77, s77, s78\n    s_add_u32 s77, s77, s6",
         "j": "s_mov_b32 s77, s4"}[RHO]
    if ASSIGN == "cb":
        r += """
    s_lshr_b32 s78, s7, 3
    s_and_b32 s79, s7, 7
    s_add_u32 s97, s77, s11
    s_and_b32 s97, s97, 7
    s_mul_i32 s83, s97, s78
"""
        for i in range(3):
            r += f"""    s_add_u32 s76, s77, {BW0+i}
    s_and_b32 s76, s76, 7
    s_cmp_lt_u32 s76, s97
    s_cselect_b32 s76, 1, 0
    s_cmp_gt_u32 s79, {i}
    s_cselect_b32 s76, s76, 0
    s_add_u32 s83, s83, s76
"""
        r += f"""    s_lshl_b32 s83, s83, 12
    s_sub_u32 s76, s11, {BW0}
    s_cmp_lt_u32 s76, s79
    s_addc_u32 s97, s78, 0"""
        return r
    r += "\n    s_add_u32 s77, s77, s11\n    s_and_b32 s77, s77, 7\n"
    if ASSIGN == "ct":
        r += """    s_lshr_b32 s78, s7, 3
    s_and_b32 s79, s7, 7
    s_mul_i32 s83, s77, s78
    s_min_u32 s79, s77, s79
    s_add_u32 s83, s83, s79
    s_lshl_b32 s83, s83, 12"""
    else:
        r += "    s_lshl_b32 s83, s77, 12"
    r += """
    s_sub_u32 s97, s7, s77
    s_add_u32 s97, s97, 7
    s_lshr_b32 s97, s97, 3"""
    return r

TS = ["s94", "s95", "s96", "s98"]
def chk(a, dst, units, tmp):
    first = True
    for u in units:
        for r in range(4):
            a(f"v_xor_b32 v{tmp+r}, {TS[r]}, v{u+r}")
        if first:
            a(f"v_or3_b32 {dst}, v{tmp}, v{tmp+1}, v{tmp+2}")
            a(f"v_or_b32 {dst}, {dst}, v{tmp+3}")
            first = False
        else:
            a(f"v_or3_b32 {dst}, {dst}, v{tmp}, v{tmp+1}")
            a(f"v_or3_b32 {dst}, {dst}, v{tmp+2}, v{tmp+3}")
    a(f"v_and_b32 {dst}, 0xfff, {dst}")
    a(f"v_cmp_ne_u32 vcc, 0, {dst}")

def tag(a, base):
    for r in range(4):
        a(f"v_bfi_b32 v{base+r}, v11, {TS[r]}, v{base+r}")

def ppoll_first(a, k, issue):
    if k == 0:
        a("s_mov_b64 s[44:45], exec")
    if k < PD:
        a(f"s_mov_b64 s[{46+2*k}:{47+2*k}], s[44:45]")
        issue(k)

def ppoll(a, name, nl, issue, check, take, k0=0):
    for k in range(k0, PD):
        ppoll_first(a, k, issue)
        if k < PD - 1:
            a(f"s_sleep {PSTAG}")
    a.label(f"{name}_loop")
    for k in range(PD):
        a(f"""
        s_waitcnt vmcnt({(PD-1)*nl})
        s_and_b64 exec, s[{46+2*k}:{47+2*k}], s[44:45]
        """)
        check(k)
        a("s_andn2_b64 exec, exec, vcc")
        take(k)
        a(f"""
        s_andn2_b64 s[44:45], s[44:45], exec
        s_cbranch_scc0 {name}_done
        s_mov_b64 exec, s[44:45]
        s_mov_b64 s[{46+2*k}:{47+2*k}], s[44:45]
        """)
        issue(k)
    a(f"s_branch {name}_loop")
    a.label(f"{name}_done")
    a("s_mov_b64 exec, -1")

def wo_loads(a):
    for t in range(NWO):
        a(f"""
        s_add_u32 s76, s15, {t}
        s_and_b32 s76, s76, 3
        s_mul_i32 s76, s76, 40960
        """)
        for cb in range(5):
            a(f"buffer_load_dwordx4 {vr(R1+4*(t*5+cb),4)}, {vr(V_OFFD)}, s[64:67], s76 offen offset:{cb*256}{NT_W}")

def body(a, nt):
    L = f"L{nt}"
    nC = 0
    def buildB(dst, src, hi):
        sel = V_SELHI if hi else V_SELLO
        for c in range(4):
            a(f"v_perm_b32 {vr(dst+c)}, {vr(src)}, {vr(src)}, {vr(sel+c)}")
    if EKW < 8:
        a(f"""
        s_cmp_lt_u32 s11, {EKW}
        s_cbranch_scc1 {L}_ekdone
        s_mov_b32 s76, s83
        """)
        for u in range(EK):
            for j in range(4):
                a(f"buffer_load_dwordx4 {vr(R2+16*u+4*j,4)}, {vr(V_OFFB)}, s[56:59], s76 offen offset:{j*1024}{NT_KV}")
            if u < EK - 1:
                a(f"s_add_u32 s76, s76, {STEP()}")
        a.label(f"{L}_ekdone")
    a(f"s_add_u32 s76, s83, {EK*STEP()}")
    for u in range(EK, nt):
        for j in range(4):
            a(f"buffer_load_dwordx4 {vr(R2+16*u+4*j,4)}, {vr(V_OFFB)}, s[56:59], s76 offen offset:{j*1024}{NT_KV}")
        if u < nt - 1:
            a(f"s_add_u32 s76, s76, {STEP()}")
    a(f"""
    s_cmp_eq_u32 s11, 0
    s_cbranch_scc1 {L}_poll
    """)
    wo_loads(a)
    a.stamp(3)
    a(f"s_branch {L}_bar2")
    a.label(f"{L}_poll")
    if NOQ:
        a(f"s_branch {L}_bar2")
    a(f"""
    v_lshlrev_b32 v8, 4, {vr(V_LANE)}
    s_mov_b64 exec, 0xffffffff
    """)
    a.label(f"{L}_fok")
    for k in range(2):
        a(f"buffer_load_dwordx4 v[{20+4*k}:{23+4*k}], v8, s[88:91], 0 offen offset:{k*512} sc1")
    a(f"""
    s_cmp_eq_u32 s12, 0
    s_cbranch_scc1 {L}_pA
    """)
    for k in range(2, 6):
        a(f"buffer_load_dwordx4 v[{20+4*k}:{23+4*k}], v8, s[88:91], 0 offen offset:{k*512} sc1")
    a("s_waitcnt vmcnt(0)")
    chk(a, "v7", [20 + 4 * k for k in range(6)], 44)
    a(f"""
    s_cbranch_vccz {L}_qokB
    s_sleep {QSLEEP}
    s_branch {L}_fok
    """)
    a.label(f"{L}_qokB")
    for r in range(4):
        a(f"""
        v_add_f32 v{20+r}, v{20+r}, v{24+r}
        v_add_f32 v{28+r}, v{28+r}, v{32+r}
        v_add_f32 v{36+r}, v{36+r}, v{40+r}
        """)
    for r in range(4):
        a(f"""
        v_add_f32 v{20+r}, v{20+r}, v{28+r}
        """)
    for r in range(4):
        a(f"""
        v_add_f32 v{20+r}, v{20+r}, v{36+r}
        """)
    a(f"s_branch {L}_qsum")
    a.label(f"{L}_pA")
    a("s_waitcnt vmcnt(0)")
    chk(a, "v7", [20, 24], 44)
    a(f"""
    s_cbranch_vccz {L}_qokA
    s_sleep {QSLEEP}
    s_branch {L}_fok
    """)
    a.label(f"{L}_qokA")
    for r in range(4):
        a(f"v_add_f32 v{20+r}, v{20+r}, v{24+r}")
    a.label(f"{L}_qsum")
    a(f"""
    v_cvt_pk_bf16_f32 v20, v20, v21
    v_cvt_pk_bf16_f32 v22, v22, v23
    v_lshrrev_b32 v6, 3, {vr(V_LANE)}
    v_lshlrev_b32 v6, 6, v6
    v_and_b32 v7, 7, {vr(V_LANE)}
    v_lshl_add_u32 v6, v7, 1, v6
    ds_write_b16 v6, v20 offset:{QBUF}
    ds_write_b16_d16_hi v6, v20 offset:{QBUF+16}
    ds_write_b16 v6, v22 offset:{QBUF+32}
    ds_write_b16_d16_hi v6, v22 offset:{QBUF+48}
    s_mov_b64 exec, -1
    s_waitcnt lgkmcnt(0)
    """)
    a.stamp(3)
    a.label(f"{L}_bar2")
    a(f"""
    s_barrier
    v_and_b32 {vr(V_T0)}, 3, {vr(V_N)}
    v_lshl_add_u32 {vr(V_T0)}, {vr(V_G)}, 2, {vr(V_T0)}
    v_lshlrev_b32 {vr(V_T0)}, 4, {vr(V_T0)}
    ds_read_b128 {vr(V_QF,4)}, {vr(V_T0)} offset:{QBUF}
    s_cmp_lg_u32 s11, 0
    s_cbranch_scc1 {L}_wodone
    """)
    wo_loads(a)
    a.label(f"{L}_wodone")
    a("s_waitcnt lgkmcnt(0)")
    a.stamp(4)
    def qk_reduce(u):
        a("s_nop 1")
        for j in range(4):
            a(f"v_mov_b32_dpp {vr(V_SC+4*u+j)}, {vr(V_DL[j])} quad_perm:[0,0,0,0] row_mask:0xf bank_mask:0xf")
        for r in range(1, 4):
            for j in range(4):
                a(f"v_add_f32_dpp {vr(V_SC+4*u+j)}, {vr(V_DL[j]+r)}, {vr(V_SC+4*u+j)} quad_perm:[{r},{r},{r},{r}] row_mask:0xf bank_mask:0xf")
    a("s_mov_b32 s76, s83")
    for u in range(nt):
        a(f"s_waitcnt vmcnt({4*(nt-1-u)+nC+5*NWO+4*u})")
        for j in range(4):
            a(f"v_mfma_f32_16x16x32_bf16 {vr(V_DL[j],4)}, {vr(R2+16*u+4*j,4)}, {vr(V_QF,4)}, 0")
        for r in range(4):
            a(f"buffer_load_dwordx4 {vr(R2+16*u+4*r,4)}, {vr(V_OFFC)}, s[60:63], s76 offen offset:{r*1024}{NT_KV}")
        qk_reduce(u)
        if u < nt - 1:
            a(f"s_add_u32 s76, s76, {STEP()}")
    a.stamp(5)
    n = 4 * nt
    a(f"v_max3_f32 {vr(V_T0)}, {vr(V_SC)}, {vr(V_SC+1)}, {vr(V_SC+2)}")
    k = 3
    while k < n:
        if k + 1 < n:
            a(f"v_max3_f32 {vr(V_T0)}, {vr(V_T0)}, {vr(V_SC+k)}, {vr(V_SC+k+1)}")
            k += 2
        else:
            a(f"v_max_f32 {vr(V_T0)}, {vr(V_T0)}, {vr(V_SC+k)}")
            k += 1
    a(f"""
    s_nop 0
    v_readlane_b32 s76, {vr(V_T0)}, 0
    v_readlane_b32 s77, {vr(V_T0)}, 16
    v_readlane_b32 s78, {vr(V_T0)}, 32
    v_readlane_b32 s79, {vr(V_T0)}, 48
    s_nop 1
    v_mov_b32 {vr(V_T0)}, s76
    v_max_f32 {vr(V_T0)}, s77, {vr(V_T0)}
    v_max_f32 {vr(V_T0)}, s78, {vr(V_T0)}
    v_max_f32 {vr(V_T0)}, s79, {vr(V_T0)}
    s_lshl_b32 s76, s11, 2
    v_mov_b32 {vr(V_T0+1)}, s76
    ds_write_b32 {vr(V_T0+1)}, {vr(V_T0)} offset:{MBUF}
    s_waitcnt lgkmcnt(0)
    s_barrier
    v_mov_b32 {vr(V_T0+1)}, 0
    ds_read_b128 {vr(V_QF,4)}, {vr(V_T0+1)} offset:{MBUF}
    ds_read_b128 {vr(V_QF+4,4)}, {vr(V_T0+1)} offset:{MBUF+16}
    s_waitcnt lgkmcnt(0)
    v_max3_f32 {vr(V_T0)}, {vr(V_QF)}, {vr(V_QF+1)}, {vr(V_QF+2)}
    v_max3_f32 {vr(V_T0)}, {vr(V_T0)}, {vr(V_QF+3)}, {vr(V_QF+4)}
    v_max3_f32 {vr(V_T0)}, {vr(V_T0)}, {vr(V_QF+5)}, {vr(V_QF+6)}
    v_max_f32 {vr(V_T0)}, {vr(V_T0)}, {vr(V_QF+7)}
    v_mul_f32 {vr(V_MC)}, s82, {vr(V_T0)}
    """)
    for k in range(n):
        a(f"v_fma_f32 {vr(V_SC+k)}, {vr(V_SC+k)}, s82, -{vr(V_MC)}")
    for k in range(n):
        a(f"v_exp_f32 {vr(V_SC+k)}, {vr(V_SC+k)}")
    a("s_nop 0")
    a(f"v_add_f32 {vr(V_L)}, {vr(V_SC)}, {vr(V_SC+1)}")
    for k in range(2, n):
        a(f"v_add_f32 {vr(V_L)}, {vr(V_L)}, {vr(V_SC+k)}")
    a(f"""
    s_lshl_b32 s76, s11, 4
    v_lshlrev_b32 {vr(V_T0)}, 2, {vr(V_G)}
    v_add_u32 {vr(V_T0)}, s76, {vr(V_T0)}
    s_mov_b64 exec, s[84:85]
    ds_write_b32 {vr(V_T0)}, {vr(V_L)} offset:{LBUF}
    s_mov_b64 exec, -1
    """)
    for k in range(0, n, 2):
        a(f"v_cvt_pk_bf16_f32 {vr(V_SC+k)}, {vr(V_SC+k)}, {vr(V_SC+k+1)}")
    a(f"""
    s_waitcnt lgkmcnt(0)
    s_barrier
    v_lshlrev_b32 v4, 2, {vr(V_LANE)}
    v_and_b32 v4, 127, v4
    ds_read_b32 v5, v4 offset:{LBUF}
    s_waitcnt lgkmcnt(0)
    s_nop 1
    v_add_f32_dpp v5, v5, v5 quad_perm:[1,0,3,2] row_mask:0xf bank_mask:0xf
    s_nop 1
    v_add_f32_dpp v5, v5, v5 quad_perm:[2,3,0,1] row_mask:0xf bank_mask:0xf
    s_nop 1
    v_add_f32_dpp v5, v5, v5 row_half_mirror row_mask:0xf bank_mask:0xf
    s_nop 1
    v_add_f32_dpp v5, v5, v5 row_mirror row_mask:0xf bank_mask:0xf
    s_nop 1
    v_readlane_b32 s76, v5, 16
    s_nop 1
    v_add_f32 v5, s76, v5
    v_mov_b32 {vr(V_ML)}, {vr(V_MC)}
    v_mov_b32 {vr(V_ML+1)}, v5
    v_mov_b32 {vr(V_ML+2)}, s42
    v_mov_b32 {vr(V_ML+3)}, s43
    """)
    a.stamp(6)
    def psrc(u, r):
        return V_SC + 4 * u + (r // 2) * 2, r % 2
    seq = [(u, r) for u in range(nt) for r in range(4)]
    s0, h0 = psrc(*seq[0])
    buildB(V_B0, s0, h0)
    nV = 4 * nt
    for idx, (u, r) in enumerate(seq):
        cur = V_B0 if idx % 2 == 0 else V_B1
        nxt = V_B1 if idx % 2 == 0 else V_B0
        if idx + 1 < len(seq):
            s1, h1 = psrc(*seq[idx + 1])
            buildB(nxt, s1, h1)
        else:
            a("s_nop 1")
        a(f"s_waitcnt vmcnt({nV-1-idx})")
        c = "0" if idx == 0 else vr(V_ACC, 4)
        a(f"v_mfma_f32_16x16x32_bf16 {vr(V_ACC,4)}, {vr(R2+16*u+4*r,4)}, {vr(cur,4)}, {c}")
    a.stamp(7)
    a("s_branch L_tail")

def gen():
    a = A()
    a(f"""
    s_cmp_ge_u32 s2, 256
    s_cbranch_scc1 L_end2
    s_load_dwordx16 s[16:31], s[0:1], 0
    s_load_dwordx8 s[32:39], s[0:1], 64
    s_load_dwordx2 s[40:41], s[0:1], 96
    PROF_T0
    s_and_b32 s3, s2, 7
    s_lshr_b32 s4, s2, 3
    v_lshrrev_b32 v1, 6, v0
    v_and_b32 v0, 0x3ff, v0
    v_readfirstlane_b32 s11, v1
    v_and_b32 {vr(V_LANE)}, 63, v0
    v_and_b32 {vr(V_N)}, 15, {vr(V_LANE)}
    v_lshrrev_b32 {vr(V_G)}, 4, {vr(V_LANE)}
    s_mul_i32 s5, s4, 43
    s_lshr_b32 s5, s5, 8
    s_mul_i32 s6, s5, 6
    s_sub_u32 s6, s4, s6
    s_cmp_lt_u32 s6, 4
    s_cselect_b32 s7, 43, 42
    s_mul_i32 s8, s6, 43
    s_max_u32 s76, s6, 4
    s_sub_u32 s76, s76, 4
    s_sub_u32 s8, s8, s76
    s_lshl_b32 s8, s8, 4
    s_sub_u32 s77, s4, 24
    s_lshr_b32 s78, s77, 1
    s_and_b32 s79, s77, 1
    s_lshl_b32 s80, s79, 9
    s_add_u32 s80, s80, {0 if ACOLD else 3072}
    s_cmp_lt_u32 s4, 24
    s_cselect_b32 s5, s5, s78
    s_cselect_b32 s6, s6, s79
    s_cselect_b32 s7, s7, 32
    s_cselect_b32 s8, s8, s80
    s_cselect_b32 s12, 1, 0
    s_add_u32 s9, s3, {XROT}
    s_and_b32 s9, s9, 7
    s_lshl_b32 s9, s9, 2
    s_add_u32 s9, s9, s5
    s_mul_i32 s10, s9, 6
    s_add_u32 s10, s10, s6
    s_lshl_b32 s76, s9, 1
    s_add_u32 s76, s76, s6
    s_add_u32 s76, s76, 192
    s_cmp_eq_u32 s12, 1
    s_cselect_b32 s10, s10, s76
    s_and_b32 s15, s6, 3
    s_lshl_b32 s77, s6, 1
    s_cmp_eq_u32 s12, 1
    s_cselect_b32 s15, s15, s77
    s_cselect_b32 s94, 48, 16
    s_cselect_b32 s96, 5, 1
    s_lshl_b32 s14, s94, 15
    s_lshl_b32 s94, s94, 3
    s_sub_u32 s95, s10, s6
    {"" if ROT else "s_mov_b32 s15, 0"}
    s_sub_u32 s99, s2, {RBASE}
    s_mov_b32 s80, 0x00ff00ff
    s_mov_b32 s81, 0x00ff00ff
    s_mov_b32 s82, 0x{f32bits(C_SCALE):08x}
    s_mov_b32 s84, 0x00010001
    s_mov_b32 s85, 0x00010001
    s_mov_b32 s55, 0x00020000
    s_mov_b32 s59, 0x00020000
    s_mov_b32 s63, 0x00020000
    s_mov_b32 s67, 0x00020000
    s_mov_b32 s71, 0x00020000
    s_mov_b32 s75, 0x00020000
    s_mov_b32 s70, 1280
    s_mov_b32 s66, 163840
    s_mov_b32 s74, {WS_BYTES}
    s_lshl_b32 s58, s7, 12
    s_mov_b32 s62, s58
    s_lshl_b32 s76, s6, 3
    s_add_u32 s76, s76, s11
    s_lshl_b32 s77, s76, 3
    v_lshlrev_b32 v10, 1, {vr(V_G)}
    v_add_u32 v10, s77, v10
    s_lshl_b32 s76, s76, 15
    v_lshlrev_b32 {vr(V_OFFA)}, 13, {vr(V_G)}
    v_lshl_add_u32 {vr(V_OFFA)}, {vr(V_N)}, 4, {vr(V_OFFA)}
    v_add_u32 {vr(V_OFFA)}, s76, {vr(V_OFFA)}
    s_lshl_b32 s78, s9, 8
    s_sub_u32 s54, {640*8192}, s78
    RHOBLK
    v_lshrrev_b32 {vr(V_OFFB)}, 2, {vr(V_N)}
    v_lshlrev_b32 {vr(V_OFFB)}, 8, {vr(V_OFFB)}
    v_lshl_add_u32 {vr(V_OFFB)}, {vr(V_G)}, 6, {vr(V_OFFB)}
    v_and_b32 {vr(V_OFFC)}, 3, {vr(V_N)}
    v_lshl_add_u32 {vr(V_OFFB)}, {vr(V_OFFC)}, 4, {vr(V_OFFB)}
    s_lshl_b32 s78, s9, 8
    s_waitcnt lgkmcnt(0)
    s_cmp_eq_u32 s12, 1
    s_cselect_b64 s[48:49], s[32:33], s[22:23]
    s_cselect_b64 s[68:69], s[26:27], s[16:17]
    s_cselect_b64 s[44:45], s[28:29], s[18:19]
    s_cselect_b64 s[46:47], s[30:31], s[20:21]
    s_cselect_b64 s[50:51], s[34:35], s[24:25]
    s_add_u32 s52, s48, s78
    s_addc_u32 s53, s49, 0
    s_mov_b32 s72, s40
    s_mov_b32 s73, s41
    s_load_dword s42, s[40:41], {E_OFF}
    s_mov_b32 s76, 0
    """)
    def wq_load(i):
        a(f"buffer_load_dwordx4 {vr(R1+4*i,4)}, {vr(V_OFFA)}, s[52:55], s76 offen{NT_W}")
        a("s_add_u32 s76, s76, s14")
    for i in range(4): wq_load(i)
    a("s_branch L_wq4" if AQ4 else "s_cmp_eq_u32 s12, 1\ns_cbranch_scc1 L_wq4")
    for i in range(4, 10): wq_load(i)
    a.label("L_wq4")
    a("s_mov_b32 s76, 0")
    def x_load(i):
        a(f"buffer_load_ushort {vr(V_X+i)}, v10, s[68:71], s76 offen")
        a("s_add_u32 s76, s76, s94")
    if NOX: a("s_branch L_x4")
    for i in range(4): x_load(i)
    a("s_cmp_eq_u32 s12, 1\ns_cbranch_scc1 L_x4")
    for i in range(4, 10): x_load(i)
    a.label("L_x4")
    a(f"""
    s_lshl_b32 s76, s9, 20
    s_lshl_b32 s77, s8, 8
    s_add_u32 s76, s76, s77
    s_add_u32 s56, s44, s76
    s_addc_u32 s57, s45, 0
    s_add_u32 s60, s46, s76
    s_addc_u32 s61, s47, 0
    s_mul_i32 s76, s9, 163840
    s_add_u32 s64, s50, s76
    s_addc_u32 s65, s51, 0
    s_lshl_b32 s76, s95, 9
    s_add_u32 s76, s76, {QX_OFF}
    s_add_u32 s88, s40, s76
    s_addc_u32 s89, s41, 0
    s_add_u32 s90, s96, 1
    s_lshl_b32 s90, s90, 9
    s_mov_b32 s91, 0x00020000
    PROF_CLR
    PRIOBLK
    BAR0
    s_mov_b32 s76, s83
    s_cmp_ge_u32 s11, {EKW}
    s_cbranch_scc1 L_noek
    """)
    for u in range(EK):
        for j in range(4):
            a(f"buffer_load_dwordx4 {vr(R2+16*u+4*j,4)}, {vr(V_OFFB)}, s[56:59], s76 offen offset:{j*1024}{NT_KV}")
        if u < EK - 1:
            a(f"s_add_u32 s76, s76, {STEP()}")
    a.label("L_noek")
    a(f"""
    v_lshlrev_b32 {vr(V_OFFC)}, 4, {vr(V_LANE)}
    s_mul_i32 s76, s11, {4*1280}
    v_mul_u32_u24 {vr(V_OFFD)}, 1280, {vr(V_G)}
    v_lshl_add_u32 {vr(V_OFFD)}, {vr(V_N)}, 4, {vr(V_OFFD)}
    v_add_u32 {vr(V_OFFD)}, s76, {vr(V_OFFD)}
    """)
    a.stamp(1)
    a(f"""
    v_and_b32 {vr(V_T0+8)}, 1, {vr(V_N)}
    v_cmp_eq_u32 vcc, 1, {vr(V_T0+8)}
    v_mov_b32 {vr(V_B0+1)}, 0x0c0c0100
    v_mov_b32 {vr(V_B0+2)}, 0x01000c0c
    v_mov_b32 {vr(V_B0+3)}, 0x0c0c0302
    v_mov_b32 {vr(V_B0+4)}, 0x03020c0c
    v_cndmask_b32 {vr(V_B0+1)}, {vr(V_B0+1)}, {vr(V_B0+2)}, vcc
    v_cndmask_b32 {vr(V_B0+3)}, {vr(V_B0+3)}, {vr(V_B0+4)}, vcc
    v_lshrrev_b32 {vr(V_B0)}, 1, {vr(V_N)}
    v_mov_b32 {vr(V_B0+2)}, 0x0c0c0c0c
    """)
    for c in range(4):
        a(f"""
        v_cmp_eq_u32 vcc, {c}, {vr(V_B0)}
        s_nop 1
        v_cndmask_b32 {vr(V_SELLO+c)}, {vr(V_B0+2)}, {vr(V_B0+1)}, vcc
        v_cndmask_b32 {vr(V_SELHI+c)}, {vr(V_B0+2)}, {vr(V_B0+3)}, vcc
        """)
    a(f"""
    v_and_b32 {vr(V_B0)}, 7, {vr(V_N)}
    v_mul_u32_u24 {vr(V_B0)}, {OSTR}, {vr(V_B0)}
    v_lshl_add_u32 {vr(V_B0)}, {vr(V_G)}, 2, {vr(V_B0)}
    s_lshl_b32 s76, s11, 4
    v_add_u32 {vr(V_B0)}, s76, {vr(V_B0)}
    """)
    for t in range(4):
        a(f"""
        s_add_u32 s76, s15, {t}
        s_and_b32 s76, s76, 3
        s_lshl_b32 s76, s76, 7
        v_add_u32 {vr(V_OA+t)}, s76, {vr(V_B0)}
        """)
    a(f"""
    s_cmp_ge_u32 s11, {EKW}
    s_cbranch_scc1 L_w0
    s_waitcnt vmcnt({4*EK})
    s_branch L_w1
    """)
    a.label("L_w0")
    a("s_waitcnt vmcnt(0)")
    a.label("L_w1")
    def buildBq(dst, src):
        for c in range(4):
            a(f"v_perm_b32 {vr(dst+c)}, {vr(src)}, {vr(src)}, {vr(V_SELLO+c)}")
    buildBq(V_B0, V_X)
    for t in range(10):
        cur = V_B0 if t % 2 == 0 else V_B1
        nxt = V_B1 if t % 2 == 0 else V_B0
        if t == 3:
            a("s_nop 1")
            a(f"v_mfma_f32_16x16x32_bf16 {vr(V_ACC,4)}, {vr(R1+4*t,4)}, {vr(cur,4)}, {vr(V_ACC,4)}")
            a("s_cmp_eq_u32 s12, 1\ns_cbranch_scc1 L_q4")
            buildBq(nxt, V_X + t + 1)
            a("s_nop 1")
            continue
        if t < 9:
            buildBq(nxt, V_X + t + 1)
        else:
            a("s_nop 1")
        c = "0" if t == 0 else vr(V_ACC, 4)
        a(f"v_mfma_f32_16x16x32_bf16 {vr(V_ACC,4)}, {vr(R1+4*t,4)}, {vr(cur,4)}, {c}")
    a.label("L_q4")
    a.stamp(2)
    a(f"""
    s_waitcnt lgkmcnt(0)
    s_add_u32 s42, s42, 1
    s_not_b32 s43, s42
    s_and_b32 s94, s42, 0xfff
    s_bfe_u32 s95, s42, 0xc000c
    s_lshr_b32 s96, s42, 24
    s_lshl_b32 s98, s42, 8
    s_or_b32 s96, s96, s98
    s_and_b32 s96, s96, 0xfff
    s_xor_b32 s98, s42, 0x5a5
    s_and_b32 s98, s98, 0xfff
    v_lshlrev_b32 {vr(V_T0)}, 3, {vr(V_G)}
    v_add_u32 {vr(V_T0)}, {vr(V_T0)}, {vr(V_N)}
    v_lshlrev_b32 {vr(V_T0)}, 4, {vr(V_T0)}
    s_lshl_b32 s76, s11, 9
    v_add_u32 {vr(V_T0)}, s76, {vr(V_T0)}
    s_nop 4
    s_mov_b64 exec, s[80:81]
    ds_write_b128 {vr(V_T0)}, {vr(V_ACC,4)} offset:{QPART}
    s_mov_b64 exec, -1
    s_waitcnt lgkmcnt(0)
    s_barrier
    s_cmp_lg_u32 s11, 0
    s_cbranch_scc1 L_nopart
    v_lshlrev_b32 v8, 4, {vr(V_LANE)}
    v_mov_b32 v11, 0xfff
    s_mov_b64 exec, 0xffffffff
    """)
    for w in range(8):
        a(f"ds_read_b128 v[{20+4*w}:{23+4*w}], v8 offset:{QPART+w*512}")
    a("s_waitcnt lgkmcnt(0)")
    for r in range(4):
        a(f"""
        v_add_f32 v{20+r}, v{20+r}, v{24+r}
        v_add_f32 v{28+r}, v{28+r}, v{32+r}
        v_add_f32 v{36+r}, v{36+r}, v{40+r}
        v_add_f32 v{44+r}, v{44+r}, v{48+r}
        """)
    for r in range(4):
        a(f"""
        v_add_f32 v{20+r}, v{20+r}, v{28+r}
        v_add_f32 v{36+r}, v{36+r}, v{44+r}
        """)
    for r in range(4):
        a(f"v_add_f32 v{20+r}, v{20+r}, v{36+r}")
    tag(a, 20)
    a(f"""
    s_lshl_b32 s76, s10, 9
    s_add_u32 s76, s76, {QX_OFF}
    buffer_store_dwordx4 v[20:23], v8, s[72:75], s76 offen sc1
    s_mov_b64 exec, -1
    """)
    a.label("L_nopart")
    a("""
    s_cmp_eq_u32 s97, 6
    s_cbranch_scc1 L6_start
    s_cmp_eq_u32 s97, 5
    s_cbranch_scc1 L5_start
    """)
    for nt in (4, 5, 6):
        a.label(f"L{nt}_start")
        body(a, nt)
    a.label("L_tail")
    def buildB(dst, src, hi):
        sel = V_SELHI if hi else V_SELLO
        for c in range(4):
            a(f"v_perm_b32 {vr(dst+c)}, {vr(src)}, {vr(src)}, {vr(sel+c)}")
    a(f"""
    v_lshlrev_b32 {vr(V_T0)}, 5, {vr(V_G)}
    v_add_u32 {vr(V_T0)}, {vr(V_T0)}, {vr(V_N)}
    v_lshlrev_b32 {vr(V_T0)}, 2, {vr(V_T0)}
    s_mul_i32 s76, s11, {OSTR}
    v_add_u32 {vr(V_T0)}, s76, {vr(V_T0)}
    s_nop 4
    s_mov_b64 exec, s[80:81]
    """)
    for r in range(4):
        a(f"ds_write_b32 {vr(V_T0)}, {vr(V_ACC+r)} offset:{OPART+r*32}")
    a(f"""
    s_mov_b64 exec, -1
    s_cmp_lg_u32 s11, 7
    s_cbranch_scc1 L_nomlst
    MLST
    s_add_u32 s76, s76, {ML_OFF}
    {"s_mov_b32 exec_hi, 0xff" if MLFULL else f"s_mov_b64 exec, {(1<<NREP)-1}"}
    buffer_store_dwordx4 {vr(V_ML,4)}, v9, s[72:75], s76 offen sc1
    s_mov_b64 exec, -1
L_nomlst:
    """)
    a.label("L_nopre")
    a("s_waitcnt lgkmcnt(0)")
    a("s_barrier")
    for t in range(4):
        a(f"ds_read_b32 {vr(V_T0+4+t)}, {vr(V_OA+t)} offset:{OPART}")
    a("s_waitcnt lgkmcnt(0)")
    for dpp in ["quad_perm:[1,0,3,2]", "quad_perm:[2,3,0,1]", "row_half_mirror"]:
        for t in range(4):
            a(f"v_add_f32_dpp {vr(V_T0+4+t)}, {vr(V_T0+4+t)}, {vr(V_T0+4+t)} {dpp} row_mask:0xf bank_mask:0xf")
    a(f"""
    v_cvt_pk_bf16_f32 {vr(V_T0+4)}, {vr(V_T0+4)}, {vr(V_T0+5)}
    v_cvt_pk_bf16_f32 {vr(V_T0+6)}, {vr(V_T0+6)}, {vr(V_T0+7)}
    """)
    VB = 20
    VY = 36
    for t in range(4):
        buildB(VB + 4 * t, V_T0 + 4 + (t // 2) * 2, t % 2)
    for t in range(4):
        for cb in range(5):
            c = "0" if t == 0 else vr(VY + 4 * cb, 4)
            a(f"v_mfma_f32_16x16x32_bf16 {vr(VY+4*cb,4)}, {vr(R1+4*(t*5+cb),4)}, {vr(VB+4*t,4)}, {c}")
    a(f"""
    v_lshlrev_b32 {vr(V_T0)}, 3, {vr(V_G)}
    v_add_u32 {vr(V_T0)}, {vr(V_T0)}, {vr(V_N)}
    v_lshlrev_b32 {vr(V_T0)}, 4, {vr(V_T0)}
    s_mul_i32 s76, s11, 2560
    v_add_u32 {vr(V_T0)}, s76, {vr(V_T0)}
    s_nop 4
    s_mov_b64 exec, s[80:81]
    """)
    for cb in range(5):
        a(f"ds_write_b128 {vr(V_T0)}, {vr(VY+4*cb,4)} offset:{YPART+cb*512}")
    a(f"""
    s_mov_b64 exec, -1
    s_waitcnt lgkmcnt(0)
    s_barrier
    """)
    a.stamp(8)
    a(f"""
    s_cmp_gt_u32 s11, 2
    s_cbranch_scc1 L_after_store
    v_cmp_gt_u32 vcc, 160, v0
    s_and_saveexec_b64 s[86:87], vcc
    s_cbranch_execz L_tail_y_done
    v_lshlrev_b32 v4, 4, v0
    v_lshrrev_b32 v5, {3 if YFULL else 2}, v0
    v_and_b32 v6, {7 if YFULL else 3}, v0
    v_lshlrev_b32 v6, 4, v6
    v_lshl_add_u32 v5, v5, {15 if YFULL else 14}, v6
    """)
    for w in range(8):
        a(f"ds_read_b128 {vr(20+4*w,4)}, v4 offset:{YPART+w*2560}")
    a("s_waitcnt lgkmcnt(0)")
    for r in range(4):
        a(f"v_add_f32 v{20+r}, v{20+r}, v{24+r}")
        a(f"v_add_f32 v{28+r}, v{28+r}, v{32+r}")
        a(f"v_add_f32 v{36+r}, v{36+r}, v{40+r}")
        a(f"v_add_f32 v{44+r}, v{44+r}, v{48+r}")
    for r in range(4):
        a(f"v_add_f32 v{20+r}, v{20+r}, v{28+r}")
        a(f"v_add_f32 v{36+r}, v{36+r}, v{44+r}")
    for r in range(4):
        a(f"v_add_f32 v{20+r}, v{20+r}, v{36+r}")
    a("v_mov_b32 v11, 0xfff")
    tag(a, 20)
    a(f"""
    s_lshl_b32 s76, s10, {7 if YFULL else 6}
    buffer_store_dwordx4 v[20:23], v5, s[72:75], s76 offen sc1
    """)
    a.label("L_tail_y_done")
    a("s_mov_b64 exec, s[86:87]")
    a.label("L_after_store")
    a.stamp(9)
    a(f"""
    s_cmp_ge_u32 s99, {NRED}
    s_cbranch_scc1 L_end
    """)
    a.label("L_clr_ok")
    a(f"""
    v_lshlrev_b32 v4, 4, v0
    v_lshlrev_b32 v12, {7 if MLFULL else 4}, v0
    YRD
    """)
    a(f"""
    s_cmp_gt_u32 s11, 3
    s_cbranch_scc1 L_ml_done
    v_lshlrev_b32 v9, 3, v0
    s_mul_i32 s76, s99, 52
    s_lshr_b32 s76, s76, 8
    s_mul_i32 s76, s76, 5
    s_sub_u32 s76, s99, s76
    s_lshl_b32 s76, s76, {15 if MLFULL else 12}
    s_add_u32 s77, s76, {ML_OFF}
    """)
    MLS = 160
    def ml_issue(k):
        a(f"buffer_load_dwordx4 v[{MLS+4*k}:{MLS+3+4*k}], v12, s[72:75], s77 offen sc1")
    def ml_check(k):
        a(f"""
        v_xor_b32 v7, s42, v{MLS+4*k+2}
        v_xor_b32 v8, s43, v{MLS+4*k+3}
        v_or_b32 v7, v7, v8
        v_cmp_ne_u32 vcc, 0, v7
        """)
    def ml_take(k):
        a(f"ds_write_b64 v9, v[{MLS+4*k}:{MLS+1+4*k}] offset:{MLBUF}")
    ppoll(a, "L_mlp", 1, ml_issue, ml_check, ml_take)
    a("s_waitcnt lgkmcnt(0)")
    a.label("L_ml_done")
    def weightB(vslot, dst):
        a(f"""
        v_mul_u32_u24 v6, 171, {vr(vslot)}
        v_lshrrev_b32 v6, 10, v6
        v_mul_u32_u24 v6, 48, v6
        v_lshlrev_b32 v7, 3, {vr(vslot)}
        ds_read_b128 v[28:31], v6 offset:{MLBUF}
        ds_read_b128 v[32:35], v6 offset:{MLBUF+16}
        ds_read_b128 v[36:39], v6 offset:{MLBUF+32}
        ds_read_b32 v24, v7 offset:{MLBUF}
        s_waitcnt lgkmcnt(0)
        v_max3_f32 v7, v28, v30, v32
        v_max3_f32 v7, v7, v34, v36
        v_max_f32 v7, v7, v38
        v_sub_f32 v28, v28, v7
        v_sub_f32 v30, v30, v7
        v_sub_f32 v32, v32, v7
        v_sub_f32 v34, v34, v7
        v_sub_f32 v36, v36, v7
        v_sub_f32 v38, v38, v7
        v_sub_f32 v24, v24, v7
        v_exp_f32 v28, v28
        v_exp_f32 v30, v30
        v_exp_f32 v32, v32
        v_exp_f32 v34, v34
        v_exp_f32 v36, v36
        v_exp_f32 v38, v38
        v_exp_f32 v24, v24
        s_nop 0
        v_mul_f32 v8, v28, v29
        v_fmac_f32 v8, v30, v31
        v_fmac_f32 v8, v32, v33
        v_fmac_f32 v8, v34, v35
        v_fmac_f32 v8, v36, v37
        v_fmac_f32 v8, v38, v39
        v_rcp_f32 v8, v8
        s_nop 0
        v_mul_f32 {vr(dst)}, v24, v8
        """)
    YS = 176
    def y_issue(k):
        a(f"buffer_load_dwordx4 v[{YS+8*k}:{YS+3+8*k}], v4, s[72:75], s78 offen sc1")
        a(f"buffer_load_dwordx4 v[{YS+4+8*k}:{YS+7+8*k}], v4, s[72:75], s79 offen sc1")
    a(f"""
    s_barrier
    """)
    ppoll_first(a, 0, y_issue)
    a(f"""
    v_lshrrev_b32 v10, 2, v0
    v_add_u32 v11, 128, v10
    """)
    weightB(10, V_W1)
    ppoll_first(a, 1, y_issue)
    a("""
    s_cmp_gt_u32 s11, 3
    s_cbranch_scc1 L_wA
    """)
    weightB(11, V_W2)
    a("s_branch L_wdone")
    a.label("L_wA")
    a(f"""
    v_and_b32 v6, 0x1fe, v11
    v_lshlrev_b32 v6, 3, v6
    v_lshlrev_b32 v7, 3, v11
    ds_read_b128 v[28:31], v6 offset:{MLBUF}
    ds_read_b32 v24, v7 offset:{MLBUF}
    s_waitcnt lgkmcnt(0)
    v_max_f32 v7, v28, v30
    v_sub_f32 v28, v28, v7
    v_sub_f32 v30, v30, v7
    v_sub_f32 v24, v24, v7
    v_exp_f32 v28, v28
    v_exp_f32 v30, v30
    v_exp_f32 v24, v24
    s_nop 0
    v_mul_f32 v8, v28, v29
    v_fmac_f32 v8, v30, v31
    v_rcp_f32 v8, v8
    s_nop 0
    v_mul_f32 {vr(V_W2)}, v24, v8
    """)
    a.label("L_wdone")
    def y_check(k):
        chk(a, "v7", [YS + 8 * k, YS + 4 + 8 * k], 24)
    def y_take(k):
        for r in range(4):
            a(f"v_mul_f32 v{56+r}, v{YS+8*k+r}, {vr(V_W1)}")
        for r in range(4):
            a(f"v_mul_f32 v{60+r}, v{YS+8*k+4+r}, {vr(V_W2)}")
    ppoll(a, "L_yp", 2, y_issue, y_check, y_take, k0=min(2, PD))
    a.label("L_gotY")
    a.stamp(10)
    for r in range(4):
        a(f"v_mov_b32 v{20+r}, v{56+r}")
    for r in range(4):
        a(f"v_mov_b32 v{24+r}, v{60+r}")
    a("""
    s_cmp_gt_u32 s11, 3
    s_cbranch_scc1 L_redA
    """)
    for r in range(4):
        a(f"v_add_f32 v{20+r}, v{20+r}, v{24+r}")
    a("s_nop 1")
    for dpp in ("row_shr:4", "row_shr:8"):
        for r in range(4):
            a(f"v_add_f32_dpp v{20+r}, v{20+r}, v{20+r} {dpp} row_mask:0xf bank_mask:0xf bound_ctrl:0")
    a("s_branch L_redW")
    a.label("L_redA")
    for dpp in ("row_shr:4", "row_shr:8"):
        for r in range(8):
            a(f"v_add_f32_dpp v{20+r}, v{20+r}, v{20+r} {dpp} row_mask:0xf bank_mask:0xf bound_ctrl:0")
    a.label("L_redW")
    a(f"""
    v_and_b32 v5, 3, {vr(V_LANE)}
    v_mul_u32_u24 v5, {4*SB}, v5
    v_lshl_add_u32 v5, {vr(V_G)}, 2, v5
    s_lshl_b32 s76, s11, 4
    v_add_u32 v5, s76, v5
    s_mov_b32 s78, 0xf000f000
    s_mov_b32 s79, 0xf000f000
    s_mov_b64 exec, s[78:79]
    """)
    for r in range(4):
        a(f"ds_write_b32 v5, v{20+r} offset:{FINB+r*SB}")
    a("""
    s_cmp_lt_u32 s11, 4
    s_cbranch_scc1 L_noA
    """)
    a(f"""
    v_and_b32 v6, 3, {vr(V_LANE)}
    v_mul_u32_u24 v6, {4*SA}, v6
    v_lshl_add_u32 v6, {vr(V_G)}, 2, v6
    s_lshl_b32 s76, s11, 4
    s_sub_u32 s76, s76, 64
    v_add_u32 v6, s76, v6
    """)
    for r in range(4):
        a(f"ds_write_b32 v6, v{24+r} offset:{FINA+r*SA}")
    a.label("L_noA")
    a(f"""
    s_mov_b64 exec, -1
    s_waitcnt lgkmcnt(0)
    s_barrier
    s_cmp_lg_u32 s11, 2
    s_cbranch_scc1 L_noeupd
    s_cmp_lg_u32 s99, 0
    s_cbranch_scc1 L_noeupd
    v_mov_b32 v4, s42
    v_mov_b32 v5, 0
    s_mov_b32 s76, {E_OFF}
    s_mov_b64 exec, 1
    buffer_store_dword v4, v5, s[72:75], s76 offen sc1
    s_mov_b64 exec, -1
L_noeupd:
    s_cmp_gt_u32 s11, 1
    s_cbranch_scc1 L_end
    s_mov_b32 s88, s36
    s_mov_b32 s89, s37
    s_mov_b32 s90, 2560
    s_mov_b32 s91, 0x00020000
    v_lshrrev_b32 v5, 2, {vr(V_LANE)}
    v_and_b32 v6, 3, {vr(V_LANE)}
    s_cmp_eq_u32 s11, 1
    s_cbranch_scc1 L_finA
    v_mul_u32_u24 v4, {SB}, v5
    v_lshl_add_u32 v4, v6, 5, v4
    ds_read_b128 v[20:23], v4 offset:{FINB}
    ds_read_b128 v[24:27], v4 offset:{FINB+16}
    s_movk_i32 s79, 1280
    OUTADDR
    s_waitcnt lgkmcnt(0)
    v_add_f32 v20, v20, v21
    v_add_f32 v22, v22, v23
    v_add_f32 v24, v24, v25
    v_add_f32 v26, v26, v27
    v_add_f32 v20, v20, v22
    v_add_f32 v24, v24, v26
    v_add_f32 v20, v20, v24
    s_branch L_fsum
    """)
    a.label("L_finA")
    a(f"""
    v_mul_u32_u24 v4, {SA}, v5
    v_lshl_add_u32 v4, v6, 4, v4
    ds_read_b128 v[20:23], v4 offset:{FINA}
    s_movk_i32 s79, 0
    OUTADDR
    s_waitcnt lgkmcnt(0)
    v_add_f32 v20, v20, v21
    v_add_f32 v22, v22, v23
    v_add_f32 v20, v20, v22
    """)
    a.label("L_fsum")
    a("""
    s_nop 1
    v_add_f32_dpp v20, v20, v20 quad_perm:[1,0,3,2] row_mask:0xf bank_mask:0xf
    s_nop 1
    v_add_f32_dpp v20, v20, v20 quad_perm:[2,3,0,1] row_mask:0xf bank_mask:0xf
    s_mov_b32 s76, 0x11111111
    s_mov_b32 s77, 0x11111111
    s_mov_b64 exec, s[76:77]
    """)
    a("""
    v_cvt_pk_bf16_f32 v20, v20, v20
    buffer_store_short v20, v9, s[88:91], s79 offen
    """)
    a.label("L_end")
    if PROF:
        a.stamp(11)
        a(f"""
        s_mov_b64 exec, 1
        s_lshl_b32 s76, s2, 3
        s_add_u32 s76, s76, s11
        s_lshl_b32 s76, s76, 6
        s_add_u32 s76, s76, {4<<20}
        s_add_u32 s92, s40, s76
        s_addc_u32 s93, s41, 0
        v_mov_b32 v4, 0
        """)
        a("v_mov_b32 v20, s13")
        for i in range(1, 12):
            a(f"v_mov_b32 v{20+i}, s{16+i}")
        if DBG:
            a(f"""
            s_cmp_lg_u32 s76, {4<<20}
            s_cbranch_scc1 L_end2
            """)
            for q in range(3):
                a(f"global_store_dwordx4 v4, v[{20+4*q}:{23+4*q}], s[38:39] offset:{16*q}")
        else:
          for q in range(3):
            a(f"global_store_dwordx4 v4, v[{20+4*q}:{23+4*q}], s[92:93] offset:{16*q}")
    a.label("L_end2")
    a("s_endpgm")

    hdr = open("cdna_kernels/" + NAME + ".s.ref").read().split("\n")
    head = []
    for ln in hdr:
        if ln.startswith("; @launch"):
            head.append(f"; @launch grid=(256,1,1) block=(512,1,1) lds={LDS_BYTES}")
            break
        head.append(ln)
    out = "\n".join(head) + "\n"
    out += f""".amdgcn_target "amdgcn-amd-amdhsa--gfx950"
.text
.globl {NAME}_kernel
.p2align 8
.type {NAME}_kernel,@function
{NAME}_kernel:
"""
    t0 = "s_memrealtime s[92:93]\n    s_waitcnt lgkmcnt(0)\n    s_mov_b32 s13, s92" if PROF else ""
    prio = ""
    if PRIO == 1: prio = "s_cmp_lt_u32 s11, 4\n    s_cbranch_scc1 L_noprio\n    s_setprio 1\nL_noprio:"
    if PRIO == 2: prio = "s_and_b32 s77, s11, 1\n    s_cmp_eq_u32 s77, 0\n    s_cbranch_scc1 L_noprio\n    s_setprio 1\nL_noprio:"
    OUTADDR = """v_lshrrev_b32 v8, 2, v5
    s_lshl_b32 s76, s99, 2
    v_add_u32 v8, s76, v8
    v_lshrrev_b32 v9, 5, v8
    v_lshlrev_b32 v9, 7, v9
    v_bfe_u32 v7, v8, 3, 2
    v_lshl_add_u32 v9, v7, 5, v9
    v_and_b32 v7, 7, v8
    v_add_u32 v9, v9, v7
    v_and_b32 v7, 3, v5
    v_lshl_add_u32 v9, v7, 3, v9
    v_lshlrev_b32 v9, 1, v9"""
    YRD = """s_lshr_b32 s78, s99, 1
    s_lshl_b32 s78, s78, 15
    s_and_b32 s79, s99, 1
    s_lshl_b32 s79, s79, 6
    s_add_u32 s78, s78, s79
    s_add_u32 s79, s78, 16384
    v_lshrrev_b32 v5, 2, v0
    v_and_b32 v4, 3, v0
    v_lshlrev_b32 v4, 4, v4
    v_lshl_add_u32 v4, v5, 7, v4""" if YFULL else """s_lshl_b32 s78, s99, 14
    s_add_u32 s79, s78, 8192"""
    MLST = """v_lshrrev_b32 v9, 3, v1
    v_lshlrev_b32 v9, 15, v9
    v_and_b32 v10, 7, v1
    v_lshl_add_u32 v9, v10, 4, v9
    s_lshl_b32 s76, s10, 7""" if MLFULL else """v_lshlrev_b32 v9, 12, v1
    s_lshl_b32 s76, s10, 4"""
    out += a.text().replace("MLST", MLST).replace("YRD", YRD).replace("OUTADDR", OUTADDR).replace("offen sc1", "offen @@").replace("PRIOBLK", prio).replace("RHOBLK", rhoblk()).replace("BAR0", "" if NOBAR0 else "s_barrier").replace("PROF_T0", t0).replace("PROF_CLR", "\n    ".join(f"s_mov_b32 s{16+i}, 0" for i in range(1,12)) if PROF else "")
    out += f""".section .rodata,"a"
.p2align 6
.amdhsa_kernel {NAME}_kernel
  .amdhsa_next_free_vgpr 256
  .amdhsa_next_free_sgpr 102
  .amdhsa_accum_offset 256
  .amdhsa_group_segment_fixed_size 0
  .amdhsa_kernarg_size 104
  .amdhsa_user_sgpr_count 2
  .amdhsa_user_sgpr_kernarg_segment_ptr 1
  .amdhsa_system_sgpr_workgroup_id_x 1
.end_amdhsa_kernel
"""
    import re
    lines = out.split("\n")
    for i, ln in enumerate(lines):
        if "@@" in ln:
            lines[i] = ln.replace("@@", STF if "buffer_store" in ln else LDF)
    out = "\n".join(lines)
    return out

if __name__ == "__main__":
    for o in sys.argv[2:]:
        if o == "prof": PROF = True
        elif o == "dbg": PROF = True; DBG = True
        elif o == "wnt": NT_W = " nt"
        elif o == "kvplain": NT_KV = ""
        elif o == "norot": ROT = False
        elif o.startswith("sleep"): POLL_SLEEP = int(o[5:])
        elif o.startswith("prio"): PRIO = int(o[4:])
        elif o == "nobar0": NOBAR0 = True
        elif o.startswith("nwq"): NWQ = int(o[3:])
        elif o.startswith("nwo"): NWO = int(o[3:])
        elif o == "acold": ACOLD = True
        elif o in ("ct", "il", "cb"): ASSIGN = o
        elif o.startswith("bw"): BW0 = int(o[2:])
        elif o.startswith("rho"): RHO = o[3:]
        elif o.startswith("ek") and not o.startswith("ekw"): EK = int(o[2:])
        elif o.startswith("xrot"): XROT = int(o[4:])
        elif o == "noclr": NOCLR = True
        elif o == "nosync": NOSYNC = True; NOCLR = True; NOQ = True
        elif o == "nox": NOX = True
        elif o == "yfull": YFULL = True
        elif o == "mlfull": MLFULL = True
        elif o == "st01": STF = "sc0 sc1"
        elif o == "stnt": STF = "sc1 nt"
        elif o == "ld01": LDF = "sc0 sc1"
        elif o == "ldnt": LDF = "sc1 nt"
        elif o.startswith("pd"): PD = int(o[2:])
        elif o.startswith("stag"): PSTAG = int(o[4:])
        elif o == "noflag": NOFLAG = True
        elif o == "aq4": AQ4 = True
        elif o.startswith("ekw"): EKW = int(o[3:])
        elif o == "noq": NOQ = True
        elif o.startswith("clrw"): CLRW = int(o[4:])
        elif o.startswith("qsleep"): QSLEEP = int(o[6:])
        elif o.startswith("rbase"): RBASE = int(o[5:])
    path = sys.argv[1] if len(sys.argv) > 1 else "cdna_kernels/" + NAME + ".s"
    open(path, "w").write(gen())
```

```python
import sys
from gen1 import A, vr, NAME
def gen(mode):
    a = A()
    a(f"""
    s_cmp_ge_u32 s2, 256
    s_cbranch_scc1 L_end2
    s_load_dwordx2 s[16:17], s[0:1], 24
    s_load_dwordx2 s[18:19], s[0:1], 64
    s_load_dwordx2 s[40:41], s[0:1], 96
    s_memrealtime s[92:93]
    s_waitcnt lgkmcnt(0)
    s_mov_b32 s13, s92
    v_lshrrev_b32 v1, 6, v0
    v_and_b32 v0, 0x3ff, v0
    v_readfirstlane_b32 s11, v1
    v_and_b32 v1, 63, v0
    v_and_b32 v2, 15, v1
    v_lshrrev_b32 v3, 4, v1
    s_and_b32 s3, s2, 7
    s_lshr_b32 s4, s2, 3
    s_bitcmp1_b32 s4, 4
    s_cselect_b64 s[56:57], s[18:19], s[16:17]
    s_mov_b32 s58, 5242880
    s_mov_b32 s59, 0x00020000
    s_and_b32 s4, s4, 15
    """)
    if mode == "p1":
        a(f"""
        s_lshr_b32 s5, s4, 2
        s_lshl_b32 s6, s3, 2
        s_add_u32 s5, s5, s6
        s_and_b32 s6, s4, 3
        s_mul_i32 s6, s6, 160
        s_mul_i32 s7, s11, 20
        s_add_u32 s6, s6, s7
        s_lshl_b32 s76, s6, 13
        s_lshl_b32 s5, s5, 8
        s_add_u32 s76, s76, s5
        v_lshlrev_b32 v5, 13, v3
        v_lshl_add_u32 v5, v2, 4, v5
        s_mov_b32 s77, {4*8192}
        """)
    elif mode == "p2":
        a(f"""
        s_mul_i32 s6, s4, 40
        s_mul_i32 s7, s11, 5
        s_add_u32 s6, s6, s7
        s_lshl_b32 s76, s6, 13
        s_lshl_b32 s5, s3, 10
        s_add_u32 s76, s76, s5
        v_lshlrev_b32 v5, 4, v1
        s_mov_b32 s77, 8192
        """)
    elif mode == "p3":
        a(f"""
        s_lshl_b32 s6, s4, 3
        s_add_u32 s6, s6, s3
        s_mul_i32 s76, s6, 40960
        s_mul_i32 s7, s11, 5120
        s_add_u32 s76, s76, s7
        v_lshlrev_b32 v5, 4, v1
        s_mov_b32 s77, 1024
        """)
    elif mode == "p4":
        a(f"""
        s_lshr_b32 s6, s4, 1
        s_mul_i32 s6, s6, 80
        s_mul_i32 s7, s11, 10
        s_add_u32 s6, s6, s7
        s_lshl_b32 s76, s6, 13
        s_lshl_b32 s5, s3, 10
        s_add_u32 s76, s76, s5
        s_and_b32 s5, s4, 1
        s_lshl_b32 s5, s5, 9
        s_add_u32 s76, s76, s5
        v_lshrrev_b32 v5, 5, v1
        v_lshlrev_b32 v5, 13, v5
        v_and_b32 v6, 31, v1
        v_lshl_add_u32 v5, v6, 4, v5
        s_mov_b32 s77, {2*8192}
        """)
    r = 8
    for u in range(5):
        a(f"buffer_load_dwordx4 {vr(r,4)}, v5, s[56:59], s76 offen")
        a("s_add_u32 s76, s76, s77")
        r += 4
    a("""
    s_waitcnt vmcnt(0)
    s_memrealtime s[92:93]
    s_waitcnt lgkmcnt(0)
    s_mov_b32 s26, s92
    """)
    a(f"""
    s_mov_b64 exec, 1
    s_lshl_b32 s76, s2, 3
    s_add_u32 s76, s76, s11
    s_lshl_b32 s76, s76, 6
    s_add_u32 s76, s76, {4<<20}
    s_add_u32 s92, s40, s76
    s_addc_u32 s93, s41, 0
    v_mov_b32 v4, 0
    v_mov_b32 v20, s13
    """)
    for i in range(21, 32): a(f"v_mov_b32 v{i}, 0")
    a("v_mov_b32 v30, s26")
    for q in range(3):
        a(f"global_store_dwordx4 v4, v[{20+4*q}:{23+4*q}], s[92:93] offset:{16*q}")
    a.label("L_end2")
    a("s_endpgm")
    out = f"; @launch grid=(256,1,1) block=(512,1,1) lds=0\n"
    out += f""".amdgcn_target "amdgcn-amd-amdhsa--gfx950"
.text
.globl {NAME}_kernel
.p2align 8
.type {NAME}_kernel,@function
{NAME}_kernel:
"""
    out += a.text()
    out += f""".section .rodata,"a"
.p2align 6
.amdhsa_kernel {NAME}_kernel
  .amdhsa_next_free_vgpr 256
  .amdhsa_next_free_sgpr 102
  .amdhsa_accum_offset 256
  .amdhsa_group_segment_fixed_size 0
  .amdhsa_kernarg_size 104
  .amdhsa_user_sgpr_count 2
  .amdhsa_user_sgpr_kernarg_segment_ptr 1
  .amdhsa_system_sgpr_workgroup_id_x 1
.end_amdhsa_kernel
"""
    return out
open(sys.argv[1], "w").write(gen(sys.argv[2]))
```

```python
import sys, struct

PROF = False
DBG = False
DBGPROF = False
NT_KV = " nt"
NT_W = ""
ROT = True
POLL_SLEEP = 4
PD = 1
HMAP = 0
NOTAIL = 0
REVEN = False
BW0 = 1
YFULL = False
MLFULL = False
STF = "sc1"
LDF = "sc1"
PSTAG = 6
RBASE = 0
PRIO = 0
NOBAR0 = False
NRED = 40
NWQ = 20
NWO = 4
ACOLD = False
ASSIGN = "ct"
RHO = "h5s"
EK = 2
XROT = 0
NOCLR = False
EKW = 8
NOSYNC = False
NOFLAG = False
NOX = False
AQ4 = False
NOQ = False
NOBAR1 = False
BARQ = True
CLRW = 1
QSLEEP = 2
NAME = "concat_heads__sliding_block_cached__gqa_block_cached__decode"

class A:
    def __init__(self):
        self.l = []
    def __call__(self, s):
        for ln in s.strip("\n").split("\n"):
            if ln.strip():
                self.l.append("    " + ln.strip())
    def stamp(self, i):
        if not PROF: return
        self(f"""
        s_memrealtime s[92:93]
        s_waitcnt lgkmcnt(0)
        s_mov_b32 s{16+i}, s92
        """)

    def label(self, s):
        self.l.append(s + ":")
    def text(self):
        return "\n".join(self.l) + "\n"

def vr(b, n=1):
    return f"v{b}" if n == 1 else f"v[{b}:{b+n-1}]"

QPART = 0
QBUF = 4096
MBUF = 4352
LBUF = 4384
OPART = 4608
OSTR = 528
YPART = 8960
MLBUF = YPART + 8 * 2560
FINB = MLBUF + 2048
SB = 144
FINA = FINB + 16 * SB
SA = 80
LDS_BYTES = 36864
ML_OFF = 256 * 2560
NREP = 5
QX_OFF = ML_OFF + NREP * 32768
E_OFF = QX_OFF + 256 * 512
WS_BYTES = E_OFF + 256

V_TID = 0
V_LANE = 1
V_N = 2
V_G = 3
V_T0 = 4
V_SELLO = 12
V_SELHI = 16
V_X = 20
V_SC = 20
V_B0 = 44
V_B1 = 48
V_ACC = 52
V_QF = 44
V_OFFA = 60
V_OFFB = 61
V_OFFC = 62
V_OFFD = 63
V_L = 64
V_MC = 65
V_DUMMY = 66
V_CNT = 67
V_OA = 68
V_ML = 72
V_W1 = 74
V_W2 = 75
V_DL = [48, 52, 56, 76]
R1 = 80
R2 = 160

C_SCALE = 0.08838834764831845 * 1.4426950408889634
def f32bits(x):
    return struct.unpack("<I", struct.pack("<f", x))[0]

def STEP():
    return 4096 if ASSIGN in ("ct", "cb") else 32768

def rhoblk():
    r = {"0": "s_mov_b32 s77, 0", "h": "s_mov_b32 s77, s9", "hs": "s_add_u32 s77, s9, s6", "s": "s_mov_b32 s77, s6",
         "h5": "s_add_u32 s77, s9, s5\n    s_lshr_b32 s78, s9, 3\n    s_add_u32 s77, s77, s78",
         "h5s": "s_add_u32 s77, s9, s5\n    s_lshr_b32 s78, s9, 3\n    s_add_u32 s77, s77, s78\n    s_add_u32 s77, s77, s6",
         "j": "s_mov_b32 s77, s4"}[RHO]
    if ASSIGN == "cb":
        r += """
    s_lshr_b32 s78, s7, 3
    s_and_b32 s79, s7, 7
    s_add_u32 s97, s77, s11
    s_and_b32 s97, s97, 7
    s_mul_i32 s83, s97, s78
"""
        for i in range(3):
            r += f"""    s_add_u32 s76, s77, {BW0+i}
    s_and_b32 s76, s76, 7
    s_cmp_lt_u32 s76, s97
    s_cselect_b32 s76, 1, 0
    s_cmp_gt_u32 s79, {i}
    s_cselect_b32 s76, s76, 0
    s_add_u32 s83, s83, s76
"""
        r += f"""    s_lshl_b32 s83, s83, 12
    s_sub_u32 s76, s11, {BW0}
    s_cmp_lt_u32 s76, s79
    s_addc_u32 s97, s78, 0"""
        return r
    r += "\n    s_add_u32 s77, s77, s11\n    s_and_b32 s77, s77, 7\n"
    if ASSIGN == "ct":
        r += """    s_lshr_b32 s78, s7, 3
    s_and_b32 s79, s7, 7
    s_mul_i32 s83, s77, s78
    s_min_u32 s79, s77, s79
    s_add_u32 s83, s83, s79
    s_lshl_b32 s83, s83, 12"""
    else:
        r += "    s_lshl_b32 s83, s77, 12"
    r += """
    s_sub_u32 s97, s7, s77
    s_add_u32 s97, s97, 7
    s_lshr_b32 s97, s97, 3"""
    return r

TS = ["s94", "s95", "s96", "s98"]
def chk(a, dst, units, tmp):
    first = True
    for u in units:
        for r in range(4):
            a(f"v_xor_b32 v{tmp+r}, {TS[r]}, v{u+r}")
        if first:
            a(f"v_or3_b32 {dst}, v{tmp}, v{tmp+1}, v{tmp+2}")
            a(f"v_or_b32 {dst}, {dst}, v{tmp+3}")
            first = False
        else:
            a(f"v_or3_b32 {dst}, {dst}, v{tmp}, v{tmp+1}")
            a(f"v_or3_b32 {dst}, {dst}, v{tmp+2}, v{tmp+3}")
    a(f"v_and_b32 {dst}, 0xfff, {dst}")
    a(f"v_cmp_ne_u32 vcc, 0, {dst}")

def tag(a, base):
    for r in range(4):
        a(f"v_bfi_b32 v{base+r}, v11, {TS[r]}, v{base+r}")

def ppoll_first(a, k, issue):
    if k == 0:
        a("s_mov_b64 s[44:45], exec")
    if k < PD:
        a(f"s_mov_b64 s[{46+2*k}:{47+2*k}], s[44:45]")
        issue(k)

def ppoll(a, name, nl, issue, check, take, k0=0):
    for k in range(k0, PD):
        ppoll_first(a, k, issue)
        if k < PD - 1:
            a(f"s_sleep {PSTAG}")
    a.label(f"{name}_loop")
    for k in range(PD):
        a(f"""
        s_waitcnt vmcnt({(PD-1)*nl})
        s_and_b64 exec, s[{46+2*k}:{47+2*k}], s[44:45]
        """)
        check(k)
        a("s_andn2_b64 exec, exec, vcc")
        take(k)
        a(f"""
        s_andn2_b64 s[44:45], s[44:45], exec
        s_cbranch_scc0 {name}_done
        s_mov_b64 exec, s[44:45]
        s_mov_b64 s[{46+2*k}:{47+2*k}], s[44:45]
        """)
        issue(k)
    a(f"s_branch {name}_loop")
    a.label(f"{name}_done")
    a("s_mov_b64 exec, -1")

def wo_loads(a):
    for t in range(NWO):
        a(f"""
        s_add_u32 s76, s15, {t}
        s_and_b32 s76, s76, 3
        s_mul_i32 s76, s76, 40960
        """)
        for cb in range(5):
            a(f"buffer_load_dwordx4 {vr(R1+4*(t*5+cb),4)}, {vr(V_OFFD)}, s[64:67], s76 offen offset:{cb*256}{NT_W}")

def body(a, nt):
    L = f"L{nt}"
    nC = 0
    def buildB(dst, src, hi):
        sel = V_SELHI if hi else V_SELLO
        for c in range(4):
            a(f"v_perm_b32 {vr(dst+c)}, {vr(src)}, {vr(src)}, {vr(sel+c)}")
    if EKW < 8:
        a(f"""
        s_cmp_lt_u32 s11, {EKW}
        s_cbranch_scc1 {L}_ekdone
        s_mov_b32 s76, s83
        """)
        for u in range(EK):
            for j in range(4):
                a(f"buffer_load_dwordx4 {vr(R2+16*u+4*j,4)}, {vr(V_OFFB)}, s[56:59], s76 offen offset:{j*1024}{NT_KV}")
            if u < EK - 1:
                a(f"s_add_u32 s76, s76, {STEP()}")
        a.label(f"{L}_ekdone")
    a(f"s_add_u32 s76, s83, {EK*STEP()}")
    for u in range(EK, nt):
        for j in range(4):
            a(f"buffer_load_dwordx4 {vr(R2+16*u+4*j,4)}, {vr(V_OFFB)}, s[56:59], s76 offen offset:{j*1024}{NT_KV}")
        if u < nt - 1:
            a(f"s_add_u32 s76, s76, {STEP()}")
    a(f"""
    s_cmp_eq_u32 s11, 0
    s_cbranch_scc1 {L}_poll
    """)
    wo_loads(a)
    a.stamp(3)
    a(f"s_branch {L}_bar2")
    a.label(f"{L}_poll")
    if NOQ:
        a(f"s_branch {L}_bar2")
    a(f"""
    v_lshlrev_b32 v8, 4, {vr(V_LANE)}
    s_mov_b64 exec, 0xffffffff
    """)
    a.label(f"{L}_fok")
    for k in range(2):
        a(f"buffer_load_dwordx4 v[{20+4*k}:{23+4*k}], v8, s[88:91], 0 offen offset:{k*512} sc1")
    a(f"""
    s_cmp_eq_u32 s12, 0
    s_cbranch_scc1 {L}_pA
    """)
    for k in range(2, 6):
        a(f"buffer_load_dwordx4 v[{20+4*k}:{23+4*k}], v8, s[88:91], 0 offen offset:{k*512} sc1")
    a("s_waitcnt vmcnt(0)")
    chk(a, "v7", [20 + 4 * k for k in range(6)], 44)
    a(f"""
    s_cbranch_vccz {L}_qokB
    s_sleep {QSLEEP}
    s_branch {L}_fok
    """)
    a.label(f"{L}_qokB")
    for r in range(4):
        a(f"""
        v_add_f32 v{20+r}, v{20+r}, v{24+r}
        v_add_f32 v{28+r}, v{28+r}, v{32+r}
        v_add_f32 v{36+r}, v{36+r}, v{40+r}
        """)
    for r in range(4):
        a(f"""
        v_add_f32 v{20+r}, v{20+r}, v{28+r}
        """)
    for r in range(4):
        a(f"""
        v_add_f32 v{20+r}, v{20+r}, v{36+r}
        """)
    a(f"s_branch {L}_qsum")
    a.label(f"{L}_pA")
    a("s_waitcnt vmcnt(0)")
    chk(a, "v7", [20, 24], 44)
    a(f"""
    s_cbranch_vccz {L}_qokA
    s_sleep {QSLEEP}
    s_branch {L}_fok
    """)
    a.label(f"{L}_qokA")
    for r in range(4):
        a(f"v_add_f32 v{20+r}, v{20+r}, v{24+r}")
    a.label(f"{L}_qsum")
    a(f"""
    v_cvt_pk_bf16_f32 v20, v20, v21
    v_cvt_pk_bf16_f32 v22, v22, v23
    v_lshrrev_b32 v6, 3, {vr(V_LANE)}
    v_lshlrev_b32 v6, 6, v6
    v_and_b32 v7, 7, {vr(V_LANE)}
    v_lshl_add_u32 v6, v7, 1, v6
    ds_write_b16 v6, v20 offset:{QBUF}
    ds_write_b16_d16_hi v6, v20 offset:{QBUF+16}
    ds_write_b16 v6, v22 offset:{QBUF+32}
    ds_write_b16_d16_hi v6, v22 offset:{QBUF+48}
    s_mov_b64 exec, -1
    s_waitcnt lgkmcnt(0)
    """)
    a.stamp(3)
    a.label(f"{L}_bar2")
    a(f"""
    s_barrier
    v_and_b32 {vr(V_T0)}, 3, {vr(V_N)}
    v_lshl_add_u32 {vr(V_T0)}, {vr(V_G)}, 2, {vr(V_T0)}
    v_lshlrev_b32 {vr(V_T0)}, 4, {vr(V_T0)}
    ds_read_b128 {vr(V_QF,4)}, {vr(V_T0)} offset:{QBUF}
    s_cmp_lg_u32 s11, 0
    s_cbranch_scc1 {L}_wodone
    """)
    wo_loads(a)
    a.label(f"{L}_wodone")
    a("s_waitcnt lgkmcnt(0)")
    a.stamp(4)
    def qk_reduce(u):
        a("s_nop 1")
        for j in range(4):
            a(f"v_mov_b32_dpp {vr(V_SC+4*u+j)}, {vr(V_DL[j])} quad_perm:[0,0,0,0] row_mask:0xf bank_mask:0xf")
        for r in range(1, 4):
            for j in range(4):
                a(f"v_add_f32_dpp {vr(V_SC+4*u+j)}, {vr(V_DL[j]+r)}, {vr(V_SC+4*u+j)} quad_perm:[{r},{r},{r},{r}] row_mask:0xf bank_mask:0xf")
    a("s_mov_b32 s76, s83")
    for u in range(nt):
        a(f"s_waitcnt vmcnt({4*(nt-1-u)+nC+5*NWO+4*u})")
        for j in range(4):
            a(f"v_mfma_f32_16x16x32_bf16 {vr(V_DL[j],4)}, {vr(R2+16*u+4*j,4)}, {vr(V_QF,4)}, 0")
        for r in range(4):
            a(f"buffer_load_dwordx4 {vr(R2+16*u+4*r,4)}, {vr(V_OFFC)}, s[60:63], s76 offen offset:{r*1024}{NT_KV}")
        qk_reduce(u)
        if u < nt - 1:
            a(f"s_add_u32 s76, s76, {STEP()}")
    a.stamp(5)
    n = 4 * nt
    a(f"v_max3_f32 {vr(V_T0)}, {vr(V_SC)}, {vr(V_SC+1)}, {vr(V_SC+2)}")
    k = 3
    while k < n:
        if k + 1 < n:
            a(f"v_max3_f32 {vr(V_T0)}, {vr(V_T0)}, {vr(V_SC+k)}, {vr(V_SC+k+1)}")
            k += 2
        else:
            a(f"v_max_f32 {vr(V_T0)}, {vr(V_T0)}, {vr(V_SC+k)}")
            k += 1
    a(f"""
    s_nop 0
    v_readlane_b32 s76, {vr(V_T0)}, 0
    v_readlane_b32 s77, {vr(V_T0)}, 16
    v_readlane_b32 s78, {vr(V_T0)}, 32
    v_readlane_b32 s79, {vr(V_T0)}, 48
    s_nop 1
    v_mov_b32 {vr(V_T0)}, s76
    v_max_f32 {vr(V_T0)}, s77, {vr(V_T0)}
    v_max_f32 {vr(V_T0)}, s78, {vr(V_T0)}
    v_max_f32 {vr(V_T0)}, s79, {vr(V_T0)}
    s_lshl_b32 s76, s11, 2
    v_mov_b32 {vr(V_T0+1)}, s76
    ds_write_b32 {vr(V_T0+1)}, {vr(V_T0)} offset:{MBUF}
    s_waitcnt lgkmcnt(0)
    s_barrier
    v_mov_b32 {vr(V_T0+1)}, 0
    ds_read_b128 {vr(V_QF,4)}, {vr(V_T0+1)} offset:{MBUF}
    ds_read_b128 {vr(V_QF+4,4)}, {vr(V_T0+1)} offset:{MBUF+16}
    s_waitcnt lgkmcnt(0)
    v_max3_f32 {vr(V_T0)}, {vr(V_QF)}, {vr(V_QF+1)}, {vr(V_QF+2)}
    v_max3_f32 {vr(V_T0)}, {vr(V_T0)}, {vr(V_QF+3)}, {vr(V_QF+4)}
    v_max3_f32 {vr(V_T0)}, {vr(V_T0)}, {vr(V_QF+5)}, {vr(V_QF+6)}
    v_max_f32 {vr(V_T0)}, {vr(V_T0)}, {vr(V_QF+7)}
    v_mul_f32 {vr(V_MC)}, s82, {vr(V_T0)}
    """)
    for k in range(n):
        a(f"v_fma_f32 {vr(V_SC+k)}, {vr(V_SC+k)}, s82, -{vr(V_MC)}")
    for k in range(n):
        a(f"v_exp_f32 {vr(V_SC+k)}, {vr(V_SC+k)}")
    a("s_nop 0")
    a(f"v_add_f32 {vr(V_L)}, {vr(V_SC)}, {vr(V_SC+1)}")
    for k in range(2, n):
        a(f"v_add_f32 {vr(V_L)}, {vr(V_L)}, {vr(V_SC+k)}")
    a(f"""
    s_lshl_b32 s76, s11, 4
    v_lshlrev_b32 {vr(V_T0)}, 2, {vr(V_G)}
    v_add_u32 {vr(V_T0)}, s76, {vr(V_T0)}
    s_mov_b64 exec, s[84:85]
    ds_write_b32 {vr(V_T0)}, {vr(V_L)} offset:{LBUF}
    s_mov_b64 exec, -1
    """)
    for k in range(0, n, 2):
        a(f"v_cvt_pk_bf16_f32 {vr(V_SC+k)}, {vr(V_SC+k)}, {vr(V_SC+k+1)}")
    a(f"""
    s_waitcnt lgkmcnt(0)
    s_barrier
    v_lshlrev_b32 v4, 2, {vr(V_LANE)}
    v_and_b32 v4, 127, v4
    ds_read_b32 v5, v4 offset:{LBUF}
    s_waitcnt lgkmcnt(0)
    s_nop 1
    v_add_f32_dpp v5, v5, v5 quad_perm:[1,0,3,2] row_mask:0xf bank_mask:0xf
    s_nop 1
    v_add_f32_dpp v5, v5, v5 quad_perm:[2,3,0,1] row_mask:0xf bank_mask:0xf
    s_nop 1
    v_add_f32_dpp v5, v5, v5 row_half_mirror row_mask:0xf bank_mask:0xf
    s_nop 1
    v_add_f32_dpp v5, v5, v5 row_mirror row_mask:0xf bank_mask:0xf
    s_nop 1
    v_readlane_b32 s76, v5, 16
    s_nop 1
    v_add_f32 v5, s76, v5
    v_mov_b32 {vr(V_ML)}, {vr(V_MC)}
    v_mov_b32 {vr(V_ML+1)}, v5
    v_mov_b32 {vr(V_ML+2)}, s42
    v_mov_b32 {vr(V_ML+3)}, s43
    """)
    a.stamp(6)
    def psrc(u, r):
        return V_SC + 4 * u + (r // 2) * 2, r % 2
    seq = [(u, r) for u in range(nt) for r in range(4)]
    s0, h0 = psrc(*seq[0])
    buildB(V_B0, s0, h0)
    nV = 4 * nt
    for idx, (u, r) in enumerate(seq):
        cur = V_B0 if idx % 2 == 0 else V_B1
        nxt = V_B1 if idx % 2 == 0 else V_B0
        if idx + 1 < len(seq):
            s1, h1 = psrc(*seq[idx + 1])
            buildB(nxt, s1, h1)
        else:
            a("s_nop 1")
        a(f"s_waitcnt vmcnt({nV-1-idx})")
        c = "0" if idx == 0 else vr(V_ACC, 4)
        a(f"v_mfma_f32_16x16x32_bf16 {vr(V_ACC,4)}, {vr(R2+16*u+4*r,4)}, {vr(cur,4)}, {c}")
    a.stamp(7)
    a("s_branch L_tail")

def gen():
    a = A()
    a(f"""
    s_cmp_ge_u32 s2, 256
    s_cbranch_scc1 L_end2
    s_load_dwordx16 s[16:31], s[0:1], 0
    s_load_dwordx8 s[32:39], s[0:1], 64
    s_load_dwordx2 s[40:41], s[0:1], 96
    PROF_T0
    s_and_b32 s3, s2, 7
    s_lshr_b32 s4, s2, 3
    v_lshrrev_b32 v1, 6, v0
    v_and_b32 v0, 0x3ff, v0
    v_readfirstlane_b32 s11, v1
    v_and_b32 {vr(V_LANE)}, 63, v0
    v_and_b32 {vr(V_N)}, 15, {vr(V_LANE)}
    v_lshrrev_b32 {vr(V_G)}, 4, {vr(V_LANE)}
    s_mul_i32 s5, s4, 43
    s_lshr_b32 s5, s5, 8
    s_mul_i32 s6, s5, 6
    s_sub_u32 s6, s4, s6
    s_cmp_lt_u32 s6, 4
    s_cselect_b32 s7, 43, 42
    s_mul_i32 s8, s6, 43
    s_max_u32 s76, s6, 4
    s_sub_u32 s76, s76, 4
    s_sub_u32 s8, s8, s76
    s_lshl_b32 s8, s8, 4
    s_sub_u32 s77, s4, 24
    s_lshr_b32 s78, s77, 1
    s_and_b32 s79, s77, 1
    s_lshl_b32 s80, s79, 9
    s_add_u32 s80, s80, {0 if ACOLD else 3072}
    s_cmp_lt_u32 s4, 24
    s_cselect_b32 s5, s5, s78
    s_cselect_b32 s6, s6, s79
    s_cselect_b32 s7, s7, 32
    s_cselect_b32 s8, s8, s80
    s_cselect_b32 s12, 1, 0
    s_add_u32 s9, s3, {XROT}
    s_and_b32 s9, s9, 7
    HMAPBLK
    s_mul_i32 s10, s9, 6
    s_add_u32 s10, s10, s6
    s_lshl_b32 s76, s9, 1
    s_add_u32 s76, s76, s6
    s_add_u32 s76, s76, 192
    s_cmp_eq_u32 s12, 1
    s_cselect_b32 s10, s10, s76
    s_and_b32 s15, s6, 3
    s_lshl_b32 s77, s6, 1
    s_cmp_eq_u32 s12, 1
    s_cselect_b32 s15, s15, s77
    s_cselect_b32 s94, 48, 16
    s_cselect_b32 s96, 5, 1
    s_lshl_b32 s14, s94, 15
    s_lshl_b32 s94, s94, 3
    s_sub_u32 s95, s10, s6
    {"" if ROT else "s_mov_b32 s15, 0"}
    s_sub_u32 s99, s2, {RBASE}
    REVENBLK
    s_mov_b32 s80, 0x00ff00ff
    s_mov_b32 s81, 0x00ff00ff
    s_mov_b32 s82, 0x{f32bits(C_SCALE):08x}
    s_mov_b32 s84, 0x00010001
    s_mov_b32 s85, 0x00010001
    s_mov_b32 s55, 0x00020000
    s_mov_b32 s59, 0x00020000
    s_mov_b32 s63, 0x00020000
    s_mov_b32 s67, 0x00020000
    s_mov_b32 s71, 0x00020000
    s_mov_b32 s75, 0x00020000
    s_mov_b32 s70, 1280
    s_mov_b32 s66, 163840
    s_mov_b32 s74, {WS_BYTES}
    s_lshl_b32 s58, s7, 12
    s_mov_b32 s62, s58
    s_lshl_b32 s76, s6, 3
    s_add_u32 s76, s76, s11
    s_lshl_b32 s77, s76, 3
    v_lshlrev_b32 v10, 1, {vr(V_G)}
    v_add_u32 v10, s77, v10
    s_lshl_b32 s76, s76, 15
    v_lshlrev_b32 {vr(V_OFFA)}, 13, {vr(V_G)}
    v_lshl_add_u32 {vr(V_OFFA)}, {vr(V_N)}, 4, {vr(V_OFFA)}
    v_add_u32 {vr(V_OFFA)}, s76, {vr(V_OFFA)}
    s_lshl_b32 s78, s9, 8
    s_sub_u32 s54, {640*8192}, s78
    RHOBLK
    v_lshrrev_b32 {vr(V_OFFB)}, 2, {vr(V_N)}
    v_lshlrev_b32 {vr(V_OFFB)}, 8, {vr(V_OFFB)}
    v_lshl_add_u32 {vr(V_OFFB)}, {vr(V_G)}, 6, {vr(V_OFFB)}
    v_and_b32 {vr(V_OFFC)}, 3, {vr(V_N)}
    v_lshl_add_u32 {vr(V_OFFB)}, {vr(V_OFFC)}, 4, {vr(V_OFFB)}
    s_lshl_b32 s78, s9, 8
    s_waitcnt lgkmcnt(0)
    s_cmp_eq_u32 s12, 1
    s_cselect_b64 s[48:49], s[32:33], s[22:23]
    s_cselect_b64 s[68:69], s[26:27], s[16:17]
    s_cselect_b64 s[44:45], s[28:29], s[18:19]
    s_cselect_b64 s[46:47], s[30:31], s[20:21]
    s_cselect_b64 s[50:51], s[34:35], s[24:25]
    s_add_u32 s52, s48, s78
    s_addc_u32 s53, s49, 0
    s_mov_b32 s72, s40
    s_mov_b32 s73, s41
    s_load_dword s42, s[40:41], {E_OFF}
    s_mov_b32 s76, 0
    """)
    def wq_load(i):
        a(f"buffer_load_dwordx4 {vr(R1+4*i,4)}, {vr(V_OFFA)}, s[52:55], s76 offen{NT_W}")
        a("s_add_u32 s76, s76, s14")
    for i in range(4): wq_load(i)
    a("s_branch L_wq4" if AQ4 else "s_cmp_eq_u32 s12, 1\ns_cbranch_scc1 L_wq4")
    for i in range(4, 10): wq_load(i)
    a.label("L_wq4")
    a("s_mov_b32 s76, 0")
    def x_load(i):
        a(f"buffer_load_ushort {vr(V_X+i)}, v10, s[68:71], s76 offen")
        a("s_add_u32 s76, s76, s94")
    if NOX: a("s_branch L_x4")
    for i in range(4): x_load(i)
    a("s_cmp_eq_u32 s12, 1\ns_cbranch_scc1 L_x4")
    for i in range(4, 10): x_load(i)
    a.label("L_x4")
    a(f"""
    s_lshl_b32 s76, s9, 20
    s_lshl_b32 s77, s8, 8
    s_add_u32 s76, s76, s77
    s_add_u32 s56, s44, s76
    s_addc_u32 s57, s45, 0
    s_add_u32 s60, s46, s76
    s_addc_u32 s61, s47, 0
    s_mul_i32 s76, s9, 163840
    s_add_u32 s64, s50, s76
    s_addc_u32 s65, s51, 0
    s_lshl_b32 s76, s95, 9
    s_add_u32 s76, s76, {QX_OFF}
    s_add_u32 s88, s40, s76
    s_addc_u32 s89, s41, 0
    s_add_u32 s90, s96, 1
    s_lshl_b32 s90, s90, 9
    s_mov_b32 s91, 0x00020000
    PROF_CLR
    PRIOBLK
    BAR0
    s_mov_b32 s76, s83
    s_cmp_ge_u32 s11, {EKW}
    s_cbranch_scc1 L_noek
    """)
    for u in range(EK):
        for j in range(4):
            a(f"buffer_load_dwordx4 {vr(R2+16*u+4*j,4)}, {vr(V_OFFB)}, s[56:59], s76 offen offset:{j*1024}{NT_KV}")
        if u < EK - 1:
            a(f"s_add_u32 s76, s76, {STEP()}")
    a.label("L_noek")
    a(f"""
    v_lshlrev_b32 {vr(V_OFFC)}, 4, {vr(V_LANE)}
    s_mul_i32 s76, s11, {4*1280}
    v_mul_u32_u24 {vr(V_OFFD)}, 1280, {vr(V_G)}
    v_lshl_add_u32 {vr(V_OFFD)}, {vr(V_N)}, 4, {vr(V_OFFD)}
    v_add_u32 {vr(V_OFFD)}, s76, {vr(V_OFFD)}
    """)
    a.stamp(1)
    a(f"""
    v_and_b32 {vr(V_T0+8)}, 1, {vr(V_N)}
    v_cmp_eq_u32 vcc, 1, {vr(V_T0+8)}
    v_mov_b32 {vr(V_B0+1)}, 0x0c0c0100
    v_mov_b32 {vr(V_B0+2)}, 0x01000c0c
    v_mov_b32 {vr(V_B0+3)}, 0x0c0c0302
    v_mov_b32 {vr(V_B0+4)}, 0x03020c0c
    v_cndmask_b32 {vr(V_B0+1)}, {vr(V_B0+1)}, {vr(V_B0+2)}, vcc
    v_cndmask_b32 {vr(V_B0+3)}, {vr(V_B0+3)}, {vr(V_B0+4)}, vcc
    v_lshrrev_b32 {vr(V_B0)}, 1, {vr(V_N)}
    v_mov_b32 {vr(V_B0+2)}, 0x0c0c0c0c
    """)
    for c in range(4):
        a(f"""
        v_cmp_eq_u32 vcc, {c}, {vr(V_B0)}
        s_nop 1
        v_cndmask_b32 {vr(V_SELLO+c)}, {vr(V_B0+2)}, {vr(V_B0+1)}, vcc
        v_cndmask_b32 {vr(V_SELHI+c)}, {vr(V_B0+2)}, {vr(V_B0+3)}, vcc
        """)
    a(f"""
    v_and_b32 {vr(V_B0)}, 7, {vr(V_N)}
    v_mul_u32_u24 {vr(V_B0)}, {OSTR}, {vr(V_B0)}
    v_lshl_add_u32 {vr(V_B0)}, {vr(V_G)}, 2, {vr(V_B0)}
    s_lshl_b32 s76, s11, 4
    v_add_u32 {vr(V_B0)}, s76, {vr(V_B0)}
    """)
    for t in range(4):
        a(f"""
        s_add_u32 s76, s15, {t}
        s_and_b32 s76, s76, 3
        s_lshl_b32 s76, s76, 7
        v_add_u32 {vr(V_OA+t)}, s76, {vr(V_B0)}
        """)
    a(f"""
    s_cmp_ge_u32 s11, {EKW}
    s_cbranch_scc1 L_w0
    s_waitcnt vmcnt({4*EK})
    s_branch L_w1
    """)
    a.label("L_w0")
    a("s_waitcnt vmcnt(0)")
    a.label("L_w1")
    def buildBq(dst, src):
        for c in range(4):
            a(f"v_perm_b32 {vr(dst+c)}, {vr(src)}, {vr(src)}, {vr(V_SELLO+c)}")
    buildBq(V_B0, V_X)
    for t in range(10):
        cur = V_B0 if t % 2 == 0 else V_B1
        nxt = V_B1 if t % 2 == 0 else V_B0
        if t == 3:
            a("s_nop 1")
            a(f"v_mfma_f32_16x16x32_bf16 {vr(V_ACC,4)}, {vr(R1+4*t,4)}, {vr(cur,4)}, {vr(V_ACC,4)}")
            a("s_cmp_eq_u32 s12, 1\ns_cbranch_scc1 L_q4")
            buildBq(nxt, V_X + t + 1)
            a("s_nop 1")
            continue
        if t < 9:
            buildBq(nxt, V_X + t + 1)
        else:
            a("s_nop 1")
        c = "0" if t == 0 else vr(V_ACC, 4)
        a(f"v_mfma_f32_16x16x32_bf16 {vr(V_ACC,4)}, {vr(R1+4*t,4)}, {vr(cur,4)}, {c}")
    a.label("L_q4")
    a.stamp(2)
    a(f"""
    s_waitcnt lgkmcnt(0)
    s_add_u32 s42, s42, 1
    s_not_b32 s43, s42
    s_and_b32 s94, s42, 0xfff
    s_bfe_u32 s95, s42, 0xc000c
    s_lshr_b32 s96, s42, 24
    s_lshl_b32 s98, s42, 8
    s_or_b32 s96, s96, s98
    s_and_b32 s96, s96, 0xfff
    s_xor_b32 s98, s42, 0x5a5
    s_and_b32 s98, s98, 0xfff
    v_lshlrev_b32 {vr(V_T0)}, 3, {vr(V_G)}
    v_add_u32 {vr(V_T0)}, {vr(V_T0)}, {vr(V_N)}
    v_lshlrev_b32 {vr(V_T0)}, 4, {vr(V_T0)}
    s_lshl_b32 s76, s11, 9
    v_add_u32 {vr(V_T0)}, s76, {vr(V_T0)}
    s_nop 4
    s_mov_b64 exec, s[80:81]
    ds_write_b128 {vr(V_T0)}, {vr(V_ACC,4)} offset:{QPART}
    s_mov_b64 exec, -1
    s_waitcnt lgkmcnt(0)
    s_barrier
    s_cmp_lg_u32 s11, 0
    s_cbranch_scc1 L_nopart
    v_lshlrev_b32 v8, 4, {vr(V_LANE)}
    v_mov_b32 v11, 0xfff
    s_mov_b64 exec, 0xffffffff
    """)
    for w in range(8):
        a(f"ds_read_b128 v[{20+4*w}:{23+4*w}], v8 offset:{QPART+w*512}")
    a("s_waitcnt lgkmcnt(0)")
    for r in range(4):
        a(f"""
        v_add_f32 v{20+r}, v{20+r}, v{24+r}
        v_add_f32 v{28+r}, v{28+r}, v{32+r}
        v_add_f32 v{36+r}, v{36+r}, v{40+r}
        v_add_f32 v{44+r}, v{44+r}, v{48+r}
        """)
    for r in range(4):
        a(f"""
        v_add_f32 v{20+r}, v{20+r}, v{28+r}
        v_add_f32 v{36+r}, v{36+r}, v{44+r}
        """)
    for r in range(4):
        a(f"v_add_f32 v{20+r}, v{20+r}, v{36+r}")
    tag(a, 20)
    a(f"""
    s_lshl_b32 s76, s10, 9
    s_add_u32 s76, s76, {QX_OFF}
    buffer_store_dwordx4 v[20:23], v8, s[72:75], s76 offen sc1
    s_mov_b64 exec, -1
    """)
    a.label("L_nopart")
    a("""
    s_cmp_eq_u32 s97, 6
    s_cbranch_scc1 L6_start
    s_cmp_eq_u32 s97, 5
    s_cbranch_scc1 L5_start
    """)
    for nt in (4, 5, 6):
        a.label(f"L{nt}_start")
        body(a, nt)
    a.label("L_tail")
    if NOTAIL == 1: a("s_branch L_end")
    def buildB(dst, src, hi):
        sel = V_SELHI if hi else V_SELLO
        for c in range(4):
            a(f"v_perm_b32 {vr(dst+c)}, {vr(src)}, {vr(src)}, {vr(sel+c)}")
    a(f"""
    v_lshlrev_b32 {vr(V_T0)}, 5, {vr(V_G)}
    v_add_u32 {vr(V_T0)}, {vr(V_T0)}, {vr(V_N)}
    v_lshlrev_b32 {vr(V_T0)}, 2, {vr(V_T0)}
    s_mul_i32 s76, s11, {OSTR}
    v_add_u32 {vr(V_T0)}, s76, {vr(V_T0)}
    s_nop 4
    s_mov_b64 exec, s[80:81]
    """)
    for r in range(4):
        a(f"ds_write_b32 {vr(V_T0)}, {vr(V_ACC+r)} offset:{OPART+r*32}")
    a(f"""
    s_mov_b64 exec, -1
    s_cmp_lg_u32 s11, 7
    s_cbranch_scc1 L_nomlst
    MLST
    s_add_u32 s76, s76, {ML_OFF}
    {"s_mov_b32 exec_hi, 0xff" if MLFULL else f"s_mov_b64 exec, {(1<<NREP)-1}"}
    {"" if NOTAIL == 2 else f"buffer_store_dwordx4 {vr(V_ML,4)}, v9, s[72:75], s76 offen sc1"}
    s_mov_b64 exec, -1
L_nomlst:
    """)
    a.label("L_nopre")
    a("s_waitcnt lgkmcnt(0)")
    a("s_barrier")
    for t in range(4):
        a(f"ds_read_b32 {vr(V_T0+4+t)}, {vr(V_OA+t)} offset:{OPART}")
    a("s_waitcnt lgkmcnt(0)")
    for dpp in ["quad_perm:[1,0,3,2]", "quad_perm:[2,3,0,1]", "row_half_mirror"]:
        for t in range(4):
            a(f"v_add_f32_dpp {vr(V_T0+4+t)}, {vr(V_T0+4+t)}, {vr(V_T0+4+t)} {dpp} row_mask:0xf bank_mask:0xf")
    a(f"""
    v_cvt_pk_bf16_f32 {vr(V_T0+4)}, {vr(V_T0+4)}, {vr(V_T0+5)}
    v_cvt_pk_bf16_f32 {vr(V_T0+6)}, {vr(V_T0+6)}, {vr(V_T0+7)}
    """)
    VB = 20
    VY = 36
    for t in range(4):
        buildB(VB + 4 * t, V_T0 + 4 + (t // 2) * 2, t % 2)
    for t in range(4):
        for cb in range(5):
            c = "0" if t == 0 else vr(VY + 4 * cb, 4)
            a(f"v_mfma_f32_16x16x32_bf16 {vr(VY+4*cb,4)}, {vr(R1+4*(t*5+cb),4)}, {vr(VB+4*t,4)}, {c}")
    a(f"""
    v_lshlrev_b32 {vr(V_T0)}, 3, {vr(V_G)}
    v_add_u32 {vr(V_T0)}, {vr(V_T0)}, {vr(V_N)}
    v_lshlrev_b32 {vr(V_T0)}, 4, {vr(V_T0)}
    s_mul_i32 s76, s11, 2560
    v_add_u32 {vr(V_T0)}, s76, {vr(V_T0)}
    s_nop 4
    s_mov_b64 exec, s[80:81]
    """)
    for cb in range(5):
        a(f"ds_write_b128 {vr(V_T0)}, {vr(VY+4*cb,4)} offset:{YPART+cb*512}")
    a(f"""
    s_mov_b64 exec, -1
    s_waitcnt lgkmcnt(0)
    s_barrier
    """)
    a.stamp(8)
    a(f"""
    s_cmp_gt_u32 s11, 2
    s_cbranch_scc1 L_after_store
    v_cmp_gt_u32 vcc, 160, v0
    s_and_saveexec_b64 s[86:87], vcc
    s_cbranch_execz L_tail_y_done
    v_lshlrev_b32 v4, 4, v0
    v_lshrrev_b32 v5, {3 if YFULL else 2}, v0
    v_and_b32 v6, {7 if YFULL else 3}, v0
    v_lshlrev_b32 v6, 4, v6
    v_lshl_add_u32 v5, v5, {15 if YFULL else 14}, v6
    """)
    for w in range(8):
        a(f"ds_read_b128 {vr(20+4*w,4)}, v4 offset:{YPART+w*2560}")
    a("s_waitcnt lgkmcnt(0)")
    for r in range(4):
        a(f"v_add_f32 v{20+r}, v{20+r}, v{24+r}")
        a(f"v_add_f32 v{28+r}, v{28+r}, v{32+r}")
        a(f"v_add_f32 v{36+r}, v{36+r}, v{40+r}")
        a(f"v_add_f32 v{44+r}, v{44+r}, v{48+r}")
    for r in range(4):
        a(f"v_add_f32 v{20+r}, v{20+r}, v{28+r}")
        a(f"v_add_f32 v{36+r}, v{36+r}, v{44+r}")
    for r in range(4):
        a(f"v_add_f32 v{20+r}, v{20+r}, v{36+r}")
    a("v_mov_b32 v11, 0xfff")
    tag(a, 20)
    a(f"""
    s_lshl_b32 s76, s10, {7 if YFULL else 6}
    {"" if NOTAIL == 2 else "buffer_store_dwordx4 v[20:23], v5, s[72:75], s76 offen sc1"}
    """)
    a.label("L_tail_y_done")
    a("s_mov_b64 exec, s[86:87]")
    a.label("L_after_store")
    a.stamp(9)
    a(f"""
    s_cmp_ge_u32 s99, {0 if NOTAIL == 2 else NRED}
    s_cbranch_scc1 L_end
    """)
    a.label("L_clr_ok")
    a(f"""
    v_lshlrev_b32 v4, 4, v0
    v_lshlrev_b32 v12, {7 if MLFULL else 4}, v0
    YRD
    """)
    a(f"""
    s_cmp_gt_u32 s11, 3
    s_cbranch_scc1 L_ml_done
    v_lshlrev_b32 v9, 3, v0
    s_mul_i32 s76, s99, 52
    s_lshr_b32 s76, s76, 8
    s_mul_i32 s76, s76, 5
    s_sub_u32 s76, s99, s76
    s_lshl_b32 s76, s76, {15 if MLFULL else 12}
    s_add_u32 s77, s76, {ML_OFF}
    """)
    MLS = 160
    def ml_issue(k):
        a(f"buffer_load_dwordx4 v[{MLS+4*k}:{MLS+3+4*k}], v12, s[72:75], s77 offen sc1")
    def ml_check(k):
        a(f"""
        v_xor_b32 v7, s42, v{MLS+4*k+2}
        v_xor_b32 v8, s43, v{MLS+4*k+3}
        v_or_b32 v7, v7, v8
        v_cmp_ne_u32 vcc, 0, v7
        """)
    def ml_take(k):
        a(f"ds_write_b64 v9, v[{MLS+4*k}:{MLS+1+4*k}] offset:{MLBUF}")
    ppoll(a, "L_mlp", 1, ml_issue, ml_check, ml_take)
    a("s_waitcnt lgkmcnt(0)")
    a.label("L_ml_done")
    def weightB(vslot, dst):
        a(f"""
        v_mul_u32_u24 v6, 171, {vr(vslot)}
        v_lshrrev_b32 v6, 10, v6
        v_mul_u32_u24 v6, 48, v6
        v_lshlrev_b32 v7, 3, {vr(vslot)}
        ds_read_b128 v[28:31], v6 offset:{MLBUF}
        ds_read_b128 v[32:35], v6 offset:{MLBUF+16}
        ds_read_b128 v[36:39], v6 offset:{MLBUF+32}
        ds_read_b32 v24, v7 offset:{MLBUF}
        s_waitcnt lgkmcnt(0)
        v_max3_f32 v7, v28, v30, v32
        v_max3_f32 v7, v7, v34, v36
        v_max_f32 v7, v7, v38
        v_sub_f32 v28, v28, v7
        v_sub_f32 v30, v30, v7
        v_sub_f32 v32, v32, v7
        v_sub_f32 v34, v34, v7
        v_sub_f32 v36, v36, v7
        v_sub_f32 v38, v38, v7
        v_sub_f32 v24, v24, v7
        v_exp_f32 v28, v28
        v_exp_f32 v30, v30
        v_exp_f32 v32, v32
        v_exp_f32 v34, v34
        v_exp_f32 v36, v36
        v_exp_f32 v38, v38
        v_exp_f32 v24, v24
        s_nop 0
        v_mul_f32 v8, v28, v29
        v_fmac_f32 v8, v30, v31
        v_fmac_f32 v8, v32, v33
        v_fmac_f32 v8, v34, v35
        v_fmac_f32 v8, v36, v37
        v_fmac_f32 v8, v38, v39
        v_rcp_f32 v8, v8
        s_nop 0
        v_mul_f32 {vr(dst)}, v24, v8
        """)
    YS = 176
    def y_issue(k):
        a(f"buffer_load_dwordx4 v[{YS+8*k}:{YS+3+8*k}], v4, s[72:75], s78 offen sc1")
        a(f"buffer_load_dwordx4 v[{YS+4+8*k}:{YS+7+8*k}], v4, s[72:75], s79 offen sc1")
    a(f"""
    s_barrier
    """)
    ppoll_first(a, 0, y_issue)
    a(f"""
    v_lshrrev_b32 v10, 2, v0
    v_add_u32 v11, 128, v10
    """)
    weightB(10, V_W1)
    ppoll_first(a, 1, y_issue)
    a("""
    s_cmp_gt_u32 s11, 3
    s_cbranch_scc1 L_wA
    """)
    weightB(11, V_W2)
    a("s_branch L_wdone")
    a.label("L_wA")
    a(f"""
    v_and_b32 v6, 0x1fe, v11
    v_lshlrev_b32 v6, 3, v6
    v_lshlrev_b32 v7, 3, v11
    ds_read_b128 v[28:31], v6 offset:{MLBUF}
    ds_read_b32 v24, v7 offset:{MLBUF}
    s_waitcnt lgkmcnt(0)
    v_max_f32 v7, v28, v30
    v_sub_f32 v28, v28, v7
    v_sub_f32 v30, v30, v7
    v_sub_f32 v24, v24, v7
    v_exp_f32 v28, v28
    v_exp_f32 v30, v30
    v_exp_f32 v24, v24
    s_nop 0
    v_mul_f32 v8, v28, v29
    v_fmac_f32 v8, v30, v31
    v_rcp_f32 v8, v8
    s_nop 0
    v_mul_f32 {vr(V_W2)}, v24, v8
    """)
    a.label("L_wdone")
    def y_check(k):
        chk(a, "v7", [YS + 8 * k, YS + 4 + 8 * k], 24)
    def y_take(k):
        for r in range(4):
            a(f"v_mul_f32 v{56+r}, v{YS+8*k+r}, {vr(V_W1)}")
        for r in range(4):
            a(f"v_mul_f32 v{60+r}, v{YS+8*k+4+r}, {vr(V_W2)}")
    ppoll(a, "L_yp", 2, y_issue, y_check, y_take, k0=min(2, PD))
    a.label("L_gotY")
    a.stamp(10)
    for r in range(4):
        a(f"v_mov_b32 v{20+r}, v{56+r}")
    for r in range(4):
        a(f"v_mov_b32 v{24+r}, v{60+r}")
    a("""
    s_cmp_gt_u32 s11, 3
    s_cbranch_scc1 L_redA
    """)
    for r in range(4):
        a(f"v_add_f32 v{20+r}, v{20+r}, v{24+r}")
    a("s_nop 1")
    for dpp in ("row_shr:4", "row_shr:8"):
        for r in range(4):
            a(f"v_add_f32_dpp v{20+r}, v{20+r}, v{20+r} {dpp} row_mask:0xf bank_mask:0xf bound_ctrl:0")
    a("s_branch L_redW")
    a.label("L_redA")
    for dpp in ("row_shr:4", "row_shr:8"):
        for r in range(8):
            a(f"v_add_f32_dpp v{20+r}, v{20+r}, v{20+r} {dpp} row_mask:0xf bank_mask:0xf bound_ctrl:0")
    a.label("L_redW")
    a(f"""
    v_and_b32 v5, 3, {vr(V_LANE)}
    v_mul_u32_u24 v5, {4*SB}, v5
    v_lshl_add_u32 v5, {vr(V_G)}, 2, v5
    s_lshl_b32 s76, s11, 4
    v_add_u32 v5, s76, v5
    s_mov_b32 s78, 0xf000f000
    s_mov_b32 s79, 0xf000f000
    s_mov_b64 exec, s[78:79]
    """)
    for r in range(4):
        a(f"ds_write_b32 v5, v{20+r} offset:{FINB+r*SB}")
    a("""
    s_cmp_lt_u32 s11, 4
    s_cbranch_scc1 L_noA
    """)
    a(f"""
    v_and_b32 v6, 3, {vr(V_LANE)}
    v_mul_u32_u24 v6, {4*SA}, v6
    v_lshl_add_u32 v6, {vr(V_G)}, 2, v6
    s_lshl_b32 s76, s11, 4
    s_sub_u32 s76, s76, 64
    v_add_u32 v6, s76, v6
    """)
    for r in range(4):
        a(f"ds_write_b32 v6, v{24+r} offset:{FINA+r*SA}")
    a.label("L_noA")
    a(f"""
    s_mov_b64 exec, -1
    s_waitcnt lgkmcnt(0)
    s_barrier
    s_cmp_lg_u32 s11, 2
    s_cbranch_scc1 L_noeupd
    s_cmp_lg_u32 s99, 0
    s_cbranch_scc1 L_noeupd
    v_mov_b32 v4, s42
    v_mov_b32 v5, 0
    s_mov_b32 s76, {E_OFF}
    s_mov_b64 exec, 1
    buffer_store_dword v4, v5, s[72:75], s76 offen sc1
    s_mov_b64 exec, -1
L_noeupd:
    s_cmp_gt_u32 s11, 1
    s_cbranch_scc1 L_end
    s_mov_b32 s88, s36
    s_mov_b32 s89, s37
    s_mov_b32 s90, 2560
    s_mov_b32 s91, 0x00020000
    v_lshrrev_b32 v5, 2, {vr(V_LANE)}
    v_and_b32 v6, 3, {vr(V_LANE)}
    s_cmp_eq_u32 s11, 1
    s_cbranch_scc1 L_finA
    v_mul_u32_u24 v4, {SB}, v5
    v_lshl_add_u32 v4, v6, 5, v4
    ds_read_b128 v[20:23], v4 offset:{FINB}
    ds_read_b128 v[24:27], v4 offset:{FINB+16}
    s_movk_i32 s79, 1280
    OUTADDR
    s_waitcnt lgkmcnt(0)
    v_add_f32 v20, v20, v21
    v_add_f32 v22, v22, v23
    v_add_f32 v24, v24, v25
    v_add_f32 v26, v26, v27
    v_add_f32 v20, v20, v22
    v_add_f32 v24, v24, v26
    v_add_f32 v20, v20, v24
    s_branch L_fsum
    """)
    a.label("L_finA")
    a(f"""
    v_mul_u32_u24 v4, {SA}, v5
    v_lshl_add_u32 v4, v6, 4, v4
    ds_read_b128 v[20:23], v4 offset:{FINA}
    s_movk_i32 s79, 0
    OUTADDR
    s_waitcnt lgkmcnt(0)
    v_add_f32 v20, v20, v21
    v_add_f32 v22, v22, v23
    v_add_f32 v20, v20, v22
    """)
    a.label("L_fsum")
    a("""
    s_nop 1
    v_add_f32_dpp v20, v20, v20 quad_perm:[1,0,3,2] row_mask:0xf bank_mask:0xf
    s_nop 1
    v_add_f32_dpp v20, v20, v20 quad_perm:[2,3,0,1] row_mask:0xf bank_mask:0xf
    s_mov_b32 s76, 0x11111111
    s_mov_b32 s77, 0x11111111
    s_mov_b64 exec, s[76:77]
    """)
    a("""
    v_cvt_pk_bf16_f32 v20, v20, v20
    buffer_store_short v20, v9, s[88:91], s79 offen
    """)
    a.label("L_end")
    if PROF:
        a.stamp(11)
        a(f"""
        s_mov_b64 exec, 1
        s_lshl_b32 s76, s2, 3
        s_add_u32 s76, s76, s11
        s_lshl_b32 s76, s76, 6
        s_add_u32 s76, s76, {4<<20}
        s_add_u32 s92, s40, s76
        s_addc_u32 s93, s41, 0
        v_mov_b32 v4, 0
        """)
        a("v_mov_b32 v20, s13")
        for i in range(1, 12):
            a(f"v_mov_b32 v{20+i}, s{16+i}")
        if DBG:
            a(f"""
            s_cmp_lg_u32 s76, {4<<20}
            s_cbranch_scc1 L_end2
            """)
            for q in range(3):
                a(f"global_store_dwordx4 v4, v[{20+4*q}:{23+4*q}], s[38:39] offset:{16*q}")
        else:
          for q in range(3):
            a(f"global_store_dwordx4 v4, v[{20+4*q}:{23+4*q}], s[92:93] offset:{16*q}")
    a.label("L_end2")
    a("s_endpgm")

    hdr = open("cdna_kernels/" + NAME + ".s.ref").read().split("\n")
    head = []
    for ln in hdr:
        if ln.startswith("; @launch"):
            head.append(f"; @launch grid=(256,1,1) block=(512,1,1) lds={LDS_BYTES}")
            break
        head.append(ln)
    out = "\n".join(head) + "\n"
    out += f""".amdgcn_target "amdgcn-amd-amdhsa--gfx950"
.text
.globl {NAME}_kernel
.p2align 8
.type {NAME}_kernel,@function
{NAME}_kernel:
"""
    t0 = "s_memrealtime s[92:93]\n    s_waitcnt lgkmcnt(0)\n    s_mov_b32 s13, s92" if PROF else ""
    prio = ""
    if PRIO == 1: prio = "s_cmp_lt_u32 s11, 4\n    s_cbranch_scc1 L_noprio\n    s_setprio 1\nL_noprio:"
    if PRIO == 2: prio = "s_and_b32 s77, s11, 1\n    s_cmp_eq_u32 s77, 0\n    s_cbranch_scc1 L_noprio\n    s_setprio 1\nL_noprio:"
    OUTADDR = """v_lshrrev_b32 v8, 2, v5
    s_lshl_b32 s76, s99, 2
    v_add_u32 v8, s76, v8
    v_lshrrev_b32 v9, 5, v8
    v_lshlrev_b32 v9, 7, v9
    v_bfe_u32 v7, v8, 3, 2
    v_lshl_add_u32 v9, v7, 5, v9
    v_and_b32 v7, 7, v8
    v_add_u32 v9, v9, v7
    v_and_b32 v7, 3, v5
    v_lshl_add_u32 v9, v7, 3, v9
    v_lshlrev_b32 v9, 1, v9"""
    YRD = """s_lshr_b32 s78, s99, 1
    s_lshl_b32 s78, s78, 15
    s_and_b32 s79, s99, 1
    s_lshl_b32 s79, s79, 6
    s_add_u32 s78, s78, s79
    s_add_u32 s79, s78, 16384
    v_lshrrev_b32 v5, 2, v0
    v_and_b32 v4, 3, v0
    v_lshlrev_b32 v4, 4, v4
    v_lshl_add_u32 v4, v5, 7, v4""" if YFULL else """s_lshl_b32 s78, s99, 14
    s_add_u32 s79, s78, 8192"""
    MLST = """v_lshrrev_b32 v9, 3, v1
    v_lshlrev_b32 v9, 15, v9
    v_and_b32 v10, 7, v1
    v_lshl_add_u32 v9, v10, 4, v9
    s_lshl_b32 s76, s10, 7""" if MLFULL else """v_lshlrev_b32 v9, 12, v1
    s_lshl_b32 s76, s10, 4"""
    REVENBLK = """s_lshr_b32 s99, s2, 1
    s_bitcmp1_b32 s2, 0
    s_cselect_b32 s99, 255, s99""" if REVEN else ""
    HMAPBLK = {0: "s_lshl_b32 s9, s9, 2\n    s_add_u32 s9, s9, s5",
               1: "s_lshl_b32 s76, s5, 3\n    s_add_u32 s9, s9, s76",
               2: "s_lshl_b32 s9, s9, 1\n    s_and_b32 s76, s5, 1\n    s_add_u32 s9, s9, s76\n    s_lshr_b32 s76, s5, 1\n    s_lshl_b32 s76, s76, 4\n    s_add_u32 s9, s9, s76"}[HMAP]
    out += a.text().replace("HMAPBLK", HMAPBLK).replace("REVENBLK", REVENBLK).replace("MLST", MLST).replace("YRD", YRD).replace("OUTADDR", OUTADDR).replace("offen sc1", "offen @@").replace("PRIOBLK", prio).replace("RHOBLK", rhoblk()).replace("BAR0", "" if NOBAR0 else "s_barrier").replace("PROF_T0", t0).replace("PROF_CLR", "\n    ".join(f"s_mov_b32 s{16+i}, 0" for i in range(1,12)) if PROF else "")
    out += f""".section .rodata,"a"
.p2align 6
.amdhsa_kernel {NAME}_kernel
  .amdhsa_next_free_vgpr 256
  .amdhsa_next_free_sgpr 102
  .amdhsa_accum_offset 256
  .amdhsa_group_segment_fixed_size 0
  .amdhsa_kernarg_size 104
  .amdhsa_user_sgpr_count 2
  .amdhsa_user_sgpr_kernarg_segment_ptr 1
  .amdhsa_system_sgpr_workgroup_id_x 1
.end_amdhsa_kernel
"""
    import re
    lines = out.split("\n")
    for i, ln in enumerate(lines):
        if "@@" in ln:
            lines[i] = ln.replace("@@", STF if "buffer_store" in ln else LDF)
    out = "\n".join(lines)
    return out

if __name__ == "__main__":
    for o in sys.argv[2:]:
        if o == "prof": PROF = True
        elif o == "dbg": PROF = True; DBG = True
        elif o == "wnt": NT_W = " nt"
        elif o == "kvplain": NT_KV = ""
        elif o == "norot": ROT = False
        elif o.startswith("sleep"): POLL_SLEEP = int(o[5:])
        elif o.startswith("prio"): PRIO = int(o[4:])
        elif o == "nobar0": NOBAR0 = True
        elif o.startswith("nwq"): NWQ = int(o[3:])
        elif o.startswith("nwo"): NWO = int(o[3:])
        elif o == "acold": ACOLD = True
        elif o in ("ct", "il", "cb"): ASSIGN = o
        elif o.startswith("bw"): BW0 = int(o[2:])
        elif o.startswith("rho"): RHO = o[3:]
        elif o.startswith("ek") and not o.startswith("ekw"): EK = int(o[2:])
        elif o.startswith("xrot"): XROT = int(o[4:])
        elif o == "noclr": NOCLR = True
        elif o == "nosync": NOSYNC = True; NOCLR = True; NOQ = True
        elif o == "nox": NOX = True
        elif o.startswith("hmap"): HMAP = int(o[4:])
        elif o.startswith("notail"): NOTAIL = int(o[6:])
        elif o == "reven": REVEN = True
        elif o == "yfull": YFULL = True
        elif o == "mlfull": MLFULL = True
        elif o == "st01": STF = "sc0 sc1"
        elif o == "stnt": STF = "sc1 nt"
        elif o == "ld01": LDF = "sc0 sc1"
        elif o == "ldnt": LDF = "sc1 nt"
        elif o.startswith("pd"): PD = int(o[2:])
        elif o.startswith("stag"): PSTAG = int(o[4:])
        elif o == "noflag": NOFLAG = True
        elif o == "aq4": AQ4 = True
        elif o.startswith("ekw"): EKW = int(o[3:])
        elif o == "noq": NOQ = True
        elif o.startswith("clrw"): CLRW = int(o[4:])
        elif o.startswith("qsleep"): QSLEEP = int(o[6:])
        elif o.startswith("rbase"): RBASE = int(o[5:])
    path = sys.argv[1] if len(sys.argv) > 1 else "cdna_kernels/" + NAME + ".s"
    open(path, "w").write(gen())
```

```python
import sys, struct

PROF = False
DBG = False
DBGPROF = False
NT_KV = " nt"
NT_W = ""
ROT = True
POLL_SLEEP = 4
PD = 1
HMAP = 0
NOTAIL = 0
REVEN = False
BW0 = 1
YFULL = False
MLFULL = False
STF = "sc1"
LDF = "sc1"
PSTAG = 6
RBASE = 0
PRIO = 0
NOBAR0 = False
NRED = 40
NWQ = 20
NWO = 4
ACOLD = False
ASSIGN = "ct"
RHO = "h5s"
EK = 2
XROT = 0
NOCLR = False
EKW = 8
NOSYNC = False
NOFLAG = False
NOX = False
AQ4 = False
NOQ = False
NOBAR1 = False
BARQ = True
CLRW = 1
QSLEEP = 2
NAME = "concat_heads__sliding_block_cached__gqa_block_cached__decode"

class A:
    def __init__(self):
        self.l = []
    def __call__(self, s):
        for ln in s.strip("\n").split("\n"):
            if ln.strip():
                self.l.append("    " + ln.strip())
    def stamp(self, i):
        if not PROF: return
        self(f"""
        s_memrealtime s[92:93]
        s_waitcnt lgkmcnt(0)
        s_mov_b32 s{16+i}, s92
        """)

    def label(self, s):
        self.l.append(s + ":")
    def text(self):
        return "\n".join(self.l) + "\n"

def vr(b, n=1):
    return f"v{b}" if n == 1 else f"v[{b}:{b+n-1}]"

QPART = 0
QBUF = 4096
MBUF = 4352
LBUF = 4384
OPART = 4608
OSTR = 528
YPART = 8960
MLBUF = YPART + 8 * 2560
FINB = MLBUF + 2048
SB = 144
FINA = FINB + 16 * SB
SA = 80
LDS_BYTES = 36864
ML_OFF = 256 * 2560
NREP = 5
QX_OFF = ML_OFF + NREP * 32768
E_OFF = QX_OFF + 256 * 512
WS_BYTES = E_OFF + 256

V_TID = 0
V_LANE = 1
V_N = 2
V_G = 3
V_T0 = 4
V_SELLO = 12
V_SELHI = 16
V_X = 20
V_SC = 20
V_B0 = 44
V_B1 = 48
V_ACC = 52
V_QF = 44
V_OFFA = 60
V_OFFB = 61
V_OFFC = 62
V_OFFD = 63
V_L = 64
V_MC = 65
V_DUMMY = 66
V_CNT = 67
V_OA = 68
V_ML = 72
V_W1 = 74
V_W2 = 75
V_DL = [48, 52, 56, 76]
R1 = 80
R2 = 160

C_SCALE = 0.08838834764831845 * 1.4426950408889634
def f32bits(x):
    return struct.unpack("<I", struct.pack("<f", x))[0]

def STEP():
    return 4096 if ASSIGN in ("ct", "cb") else 32768

def rhoblk():
    r = {"0": "s_mov_b32 s77, 0", "h": "s_mov_b32 s77, s9", "hs": "s_add_u32 s77, s9, s6", "s": "s_mov_b32 s77, s6",
         "h5": "s_add_u32 s77, s9, s5\n    s_lshr_b32 s78, s9, 3\n    s_add_u32 s77, s77, s78",
         "h5s": "s_add_u32 s77, s9, s5\n    s_lshr_b32 s78, s9, 3\n    s_add_u32 s77, s77, s78\n    s_add_u32 s77, s77, s6",
         "j": "s_mov_b32 s77, s4"}[RHO]
    if ASSIGN == "cb":
        r += """
    s_lshr_b32 s78, s7, 3
    s_and_b32 s79, s7, 7
    s_add_u32 s97, s77, s11
    s_and_b32 s97, s97, 7
    s_mul_i32 s83, s97, s78
"""
        for i in range(3):
            r += f"""    s_add_u32 s76, s77, {BW0+i}
    s_and_b32 s76, s76, 7
    s_cmp_lt_u32 s76, s97
    s_cselect_b32 s76, 1, 0
    s_cmp_gt_u32 s79, {i}
    s_cselect_b32 s76, s76, 0
    s_add_u32 s83, s83, s76
"""
        r += f"""    s_lshl_b32 s83, s83, 12
    s_sub_u32 s76, s11, {BW0}
    s_cmp_lt_u32 s76, s79
    s_addc_u32 s97, s78, 0"""
        return r
    r += "\n    s_add_u32 s77, s77, s11\n    s_and_b32 s77, s77, 7\n"
    if ASSIGN == "ct":
        r += """    s_lshr_b32 s78, s7, 3
    s_and_b32 s79, s7, 7
    s_mul_i32 s83, s77, s78
    s_min_u32 s79, s77, s79
    s_add_u32 s83, s83, s79
    s_lshl_b32 s83, s83, 12"""
    else:
        r += "    s_lshl_b32 s83, s77, 12"
    r += """
    s_sub_u32 s97, s7, s77
    s_add_u32 s97, s97, 7
    s_lshr_b32 s97, s97, 3"""
    return r

TS = ["s94", "s95", "s96", "s98"]
def chk(a, dst, units, tmp):
    first = True
    for u in units:
        for r in range(4):
            a(f"v_xor_b32 v{tmp+r}, {TS[r]}, v{u+r}")
        if first:
            a(f"v_or3_b32 {dst}, v{tmp}, v{tmp+1}, v{tmp+2}")
            a(f"v_or_b32 {dst}, {dst}, v{tmp+3}")
            first = False
        else:
            a(f"v_or3_b32 {dst}, {dst}, v{tmp}, v{tmp+1}")
            a(f"v_or3_b32 {dst}, {dst}, v{tmp+2}, v{tmp+3}")
    a(f"v_and_b32 {dst}, 0xfff, {dst}")
    a(f"v_cmp_ne_u32 vcc, 0, {dst}")

def tag(a, base):
    for r in range(4):
        a(f"v_bfi_b32 v{base+r}, v11, {TS[r]}, v{base+r}")

def ppoll_first(a, k, issue):
    if k == 0:
        a("s_mov_b64 s[44:45], exec")
    if k < PD:
        a(f"s_mov_b64 s[{46+2*k}:{47+2*k}], s[44:45]")
        issue(k)

def ppoll(a, name, nl, issue, check, take, k0=0):
    for k in range(k0, PD):
        ppoll_first(a, k, issue)
        if k < PD - 1:
            a(f"s_sleep {PSTAG}")
    a.label(f"{name}_loop")
    for k in range(PD):
        a(f"""
        s_waitcnt vmcnt({(PD-1)*nl})
        s_and_b64 exec, s[{46+2*k}:{47+2*k}], s[44:45]
        """)
        check(k)
        a("s_andn2_b64 exec, exec, vcc")
        take(k)
        a(f"""
        s_andn2_b64 s[44:45], s[44:45], exec
        s_cbranch_scc0 {name}_done
        s_mov_b64 exec, s[44:45]
        s_mov_b64 s[{46+2*k}:{47+2*k}], s[44:45]
        """)
        issue(k)
    a(f"s_branch {name}_loop")
    a.label(f"{name}_done")
    a("s_mov_b64 exec, -1")

def wo_loads(a):
    for t in range(NWO):
        a(f"""
        s_add_u32 s76, s15, {t}
        s_and_b32 s76, s76, 3
        s_mul_i32 s76, s76, 40960
        """)
        for cb in range(5):
            a(f"buffer_load_dwordx4 {vr(R1+4*(t*5+cb),4)}, {vr(V_OFFD)}, s[64:67], s76 offen offset:{cb*256}{NT_W}")

def body(a, nt):
    L = f"L{nt}"
    nC = 0
    def buildB(dst, src, hi):
        sel = V_SELHI if hi else V_SELLO
        for c in range(4):
            a(f"v_perm_b32 {vr(dst+c)}, {vr(src)}, {vr(src)}, {vr(sel+c)}")
    if EKW < 8:
        a(f"""
        s_cmp_lt_u32 s11, {EKW}
        s_cbranch_scc1 {L}_ekdone
        s_mov_b32 s76, s83
        """)
        for u in range(EK):
            for j in range(4):
                a(f"buffer_load_dwordx4 {vr(R2+16*u+4*j,4)}, {vr(V_OFFB)}, s[56:59], s76 offen offset:{j*1024}{NT_KV}")
            if u < EK - 1:
                a(f"s_add_u32 s76, s76, {STEP()}")
        a.label(f"{L}_ekdone")
    a(f"s_add_u32 s76, s83, {EK*STEP()}")
    for u in range(EK, nt):
        for j in range(4):
            a(f"buffer_load_dwordx4 {vr(R2+16*u+4*j,4)}, {vr(V_OFFB)}, s[56:59], s76 offen offset:{j*1024}{NT_KV}")
        if u < nt - 1:
            a(f"s_add_u32 s76, s76, {STEP()}")
    a(f"""
    s_cmp_eq_u32 s11, 0
    s_cbranch_scc1 {L}_poll
    """)
    wo_loads(a)
    a.stamp(3)
    a(f"s_branch {L}_bar2")
    a.label(f"{L}_poll")
    if NOQ:
        a(f"s_branch {L}_bar2")
    a(f"""
    v_lshlrev_b32 v8, 4, {vr(V_LANE)}
    s_mov_b64 exec, 0xffffffff
    """)
    a.label(f"{L}_fok")
    for k in range(2):
        a(f"buffer_load_dwordx4 v[{20+4*k}:{23+4*k}], v8, s[88:91], 0 offen offset:{k*512} sc1")
    a(f"""
    s_cmp_eq_u32 s12, 0
    s_cbranch_scc1 {L}_pA
    """)
    for k in range(2, 6):
        a(f"buffer_load_dwordx4 v[{20+4*k}:{23+4*k}], v8, s[88:91], 0 offen offset:{k*512} sc1")
    a("s_waitcnt vmcnt(0)")
    chk(a, "v7", [20 + 4 * k for k in range(6)], 44)
    a(f"""
    s_cbranch_vccz {L}_qokB
    s_sleep {QSLEEP}
    s_branch {L}_fok
    """)
    a.label(f"{L}_qokB")
    for r in range(4):
        a(f"""
        v_add_f32 v{20+r}, v{20+r}, v{24+r}
        v_add_f32 v{28+r}, v{28+r}, v{32+r}
        v_add_f32 v{36+r}, v{36+r}, v{40+r}
        """)
    for r in range(4):
        a(f"""
        v_add_f32 v{20+r}, v{20+r}, v{28+r}
        """)
    for r in range(4):
        a(f"""
        v_add_f32 v{20+r}, v{20+r}, v{36+r}
        """)
    a(f"s_branch {L}_qsum")
    a.label(f"{L}_pA")
    a("s_waitcnt vmcnt(0)")
    chk(a, "v7", [20, 24], 44)
    a(f"""
    s_cbranch_vccz {L}_qokA
    s_sleep {QSLEEP}
    s_branch {L}_fok
    """)
    a.label(f"{L}_qokA")
    for r in range(4):
        a(f"v_add_f32 v{20+r}, v{20+r}, v{24+r}")
    a.label(f"{L}_qsum")
    a(f"""
    v_cvt_pk_bf16_f32 v20, v20, v21
    v_cvt_pk_bf16_f32 v22, v22, v23
    v_lshrrev_b32 v6, 3, {vr(V_LANE)}
    v_lshlrev_b32 v6, 6, v6
    v_and_b32 v7, 7, {vr(V_LANE)}
    v_lshl_add_u32 v6, v7, 1, v6
    ds_write_b16 v6, v20 offset:{QBUF}
    ds_write_b16_d16_hi v6, v20 offset:{QBUF+16}
    ds_write_b16 v6, v22 offset:{QBUF+32}
    ds_write_b16_d16_hi v6, v22 offset:{QBUF+48}
    s_mov_b64 exec, -1
    s_waitcnt lgkmcnt(0)
    """)
    a.stamp(3)
    a.label(f"{L}_bar2")
    a(f"""
    s_barrier
    v_and_b32 {vr(V_T0)}, 3, {vr(V_N)}
    v_lshl_add_u32 {vr(V_T0)}, {vr(V_G)}, 2, {vr(V_T0)}
    v_lshlrev_b32 {vr(V_T0)}, 4, {vr(V_T0)}
    ds_read_b128 {vr(V_QF,4)}, {vr(V_T0)} offset:{QBUF}
    s_cmp_lg_u32 s11, 0
    s_cbranch_scc1 {L}_wodone
    """)
    wo_loads(a)
    a.label(f"{L}_wodone")
    a("s_waitcnt lgkmcnt(0)")
    a.stamp(4)
    def qk_reduce(u):
        a("s_nop 1")
        for j in range(4):
            a(f"v_mov_b32_dpp {vr(V_SC+4*u+j)}, {vr(V_DL[j])} quad_perm:[0,0,0,0] row_mask:0xf bank_mask:0xf")
        for r in range(1, 4):
            for j in range(4):
                a(f"v_add_f32_dpp {vr(V_SC+4*u+j)}, {vr(V_DL[j]+r)}, {vr(V_SC+4*u+j)} quad_perm:[{r},{r},{r},{r}] row_mask:0xf bank_mask:0xf")
    a("s_mov_b32 s76, s83")
    for u in range(nt):
        a(f"s_waitcnt vmcnt({4*(nt-1-u)+nC+5*NWO+4*u})")
        for j in range(4):
            a(f"v_mfma_f32_16x16x32_bf16 {vr(V_DL[j],4)}, {vr(R2+16*u+4*j,4)}, {vr(V_QF,4)}, 0")
        for r in range(4):
            a(f"buffer_load_dwordx4 {vr(R2+16*u+4*r,4)}, {vr(V_OFFC)}, s[60:63], s76 offen offset:{r*1024}{NT_KV}")
        qk_reduce(u)
        if u < nt - 1:
            a(f"s_add_u32 s76, s76, {STEP()}")
    a.stamp(5)
    n = 4 * nt
    a(f"v_max3_f32 {vr(V_T0)}, {vr(V_SC)}, {vr(V_SC+1)}, {vr(V_SC+2)}")
    k = 3
    while k < n:
        if k + 1 < n:
            a(f"v_max3_f32 {vr(V_T0)}, {vr(V_T0)}, {vr(V_SC+k)}, {vr(V_SC+k+1)}")
            k += 2
        else:
            a(f"v_max_f32 {vr(V_T0)}, {vr(V_T0)}, {vr(V_SC+k)}")
            k += 1
    a(f"""
    s_nop 0
    v_readlane_b32 s76, {vr(V_T0)}, 0
    v_readlane_b32 s77, {vr(V_T0)}, 16
    v_readlane_b32 s78, {vr(V_T0)}, 32
    v_readlane_b32 s79, {vr(V_T0)}, 48
    s_nop 1
    v_mov_b32 {vr(V_T0)}, s76
    v_max_f32 {vr(V_T0)}, s77, {vr(V_T0)}
    v_max_f32 {vr(V_T0)}, s78, {vr(V_T0)}
    v_max_f32 {vr(V_T0)}, s79, {vr(V_T0)}
    s_lshl_b32 s76, s11, 2
    v_mov_b32 {vr(V_T0+1)}, s76
    ds_write_b32 {vr(V_T0+1)}, {vr(V_T0)} offset:{MBUF}
    s_waitcnt lgkmcnt(0)
    s_barrier
    v_mov_b32 {vr(V_T0+1)}, 0
    ds_read_b128 {vr(V_QF,4)}, {vr(V_T0+1)} offset:{MBUF}
    ds_read_b128 {vr(V_QF+4,4)}, {vr(V_T0+1)} offset:{MBUF+16}
    s_waitcnt lgkmcnt(0)
    v_max3_f32 {vr(V_T0)}, {vr(V_QF)}, {vr(V_QF+1)}, {vr(V_QF+2)}
    v_max3_f32 {vr(V_T0)}, {vr(V_T0)}, {vr(V_QF+3)}, {vr(V_QF+4)}
    v_max3_f32 {vr(V_T0)}, {vr(V_T0)}, {vr(V_QF+5)}, {vr(V_QF+6)}
    v_max_f32 {vr(V_T0)}, {vr(V_T0)}, {vr(V_QF+7)}
    v_mul_f32 {vr(V_MC)}, s82, {vr(V_T0)}
    """)
    for k in range(n):
        a(f"v_fma_f32 {vr(V_SC+k)}, {vr(V_SC+k)}, s82, -{vr(V_MC)}")
    for k in range(n):
        a(f"v_exp_f32 {vr(V_SC+k)}, {vr(V_SC+k)}")
    a("s_nop 0")
    a(f"v_add_f32 {vr(V_L)}, {vr(V_SC)}, {vr(V_SC+1)}")
    for k in range(2, n):
        a(f"v_add_f32 {vr(V_L)}, {vr(V_L)}, {vr(V_SC+k)}")
    a(f"""
    s_lshl_b32 s76, s11, 4
    v_lshlrev_b32 {vr(V_T0)}, 2, {vr(V_G)}
    v_add_u32 {vr(V_T0)}, s76, {vr(V_T0)}
    s_mov_b64 exec, s[84:85]
    ds_write_b32 {vr(V_T0)}, {vr(V_L)} offset:{LBUF}
    s_mov_b64 exec, -1
    """)
    for k in range(0, n, 2):
        a(f"v_cvt_pk_bf16_f32 {vr(V_SC+k)}, {vr(V_SC+k)}, {vr(V_SC+k+1)}")
    a(f"""
    s_waitcnt lgkmcnt(0)
    s_barrier
    v_lshlrev_b32 v4, 2, {vr(V_LANE)}
    v_and_b32 v4, 127, v4
    ds_read_b32 v5, v4 offset:{LBUF}
    s_waitcnt lgkmcnt(0)
    s_nop 1
    v_add_f32_dpp v5, v5, v5 quad_perm:[1,0,3,2] row_mask:0xf bank_mask:0xf
    s_nop 1
    v_add_f32_dpp v5, v5, v5 quad_perm:[2,3,0,1] row_mask:0xf bank_mask:0xf
    s_nop 1
    v_add_f32_dpp v5, v5, v5 row_half_mirror row_mask:0xf bank_mask:0xf
    s_nop 1
    v_add_f32_dpp v5, v5, v5 row_mirror row_mask:0xf bank_mask:0xf
    s_nop 1
    v_readlane_b32 s76, v5, 16
    s_nop 1
    v_add_f32 v5, s76, v5
    v_mov_b32 {vr(V_ML)}, {vr(V_MC)}
    v_mov_b32 {vr(V_ML+1)}, v5
    v_mov_b32 {vr(V_ML+2)}, s42
    v_mov_b32 {vr(V_ML+3)}, s43
    """)
    a.stamp(6)
    def psrc(u, r):
        return V_SC + 4 * u + (r // 2) * 2, r % 2
    seq = [(u, r) for u in range(nt) for r in range(4)]
    s0, h0 = psrc(*seq[0])
    buildB(V_B0, s0, h0)
    nV = 4 * nt
    for idx, (u, r) in enumerate(seq):
        cur = V_B0 if idx % 2 == 0 else V_B1
        nxt = V_B1 if idx % 2 == 0 else V_B0
        if idx + 1 < len(seq):
            s1, h1 = psrc(*seq[idx + 1])
            buildB(nxt, s1, h1)
        else:
            a("s_nop 1")
        a(f"s_waitcnt vmcnt({nV-1-idx})")
        c = "0" if idx == 0 else vr(V_ACC, 4)
        a(f"v_mfma_f32_16x16x32_bf16 {vr(V_ACC,4)}, {vr(R2+16*u+4*r,4)}, {vr(cur,4)}, {c}")
    a.stamp(7)
    a("s_branch L_tail")

def gen():
    a = A()
    a(f"""
    s_cmp_ge_u32 s2, 256
    s_cbranch_scc1 L_end2
    s_load_dwordx16 s[16:31], s[0:1], 0
    s_load_dwordx8 s[32:39], s[0:1], 64
    s_load_dwordx2 s[40:41], s[0:1], 96
    PROF_T0
    s_and_b32 s3, s2, 7
    s_lshr_b32 s4, s2, 3
    v_lshrrev_b32 v1, 6, v0
    v_and_b32 v0, 0x3ff, v0
    v_readfirstlane_b32 s11, v1
    v_and_b32 {vr(V_LANE)}, 63, v0
    v_and_b32 {vr(V_N)}, 15, {vr(V_LANE)}
    v_lshrrev_b32 {vr(V_G)}, 4, {vr(V_LANE)}
    s_mul_i32 s5, s4, 43
    s_lshr_b32 s5, s5, 8
    s_mul_i32 s6, s5, 6
    s_sub_u32 s6, s4, s6
    s_cmp_lt_u32 s6, 4
    s_cselect_b32 s7, 43, 42
    s_mul_i32 s8, s6, 43
    s_max_u32 s76, s6, 4
    s_sub_u32 s76, s76, 4
    s_sub_u32 s8, s8, s76
    s_lshl_b32 s8, s8, 4
    s_sub_u32 s77, s4, 24
    s_lshr_b32 s78, s77, 1
    s_and_b32 s79, s77, 1
    s_lshl_b32 s80, s79, 9
    s_add_u32 s80, s80, {0 if ACOLD else 3072}
    s_cmp_lt_u32 s4, 24
    s_cselect_b32 s5, s5, s78
    s_cselect_b32 s6, s6, s79
    s_cselect_b32 s7, s7, 32
    s_cselect_b32 s8, s8, s80
    s_cselect_b32 s12, 1, 0
    s_add_u32 s9, s3, {XROT}
    s_and_b32 s9, s9, 7
    HMAPBLK
    s_mul_i32 s10, s9, 6
    s_add_u32 s10, s10, s6
    s_lshl_b32 s76, s9, 1
    s_add_u32 s76, s76, s6
    s_add_u32 s76, s76, 192
    s_cmp_eq_u32 s12, 1
    s_cselect_b32 s10, s10, s76
    s_and_b32 s15, s6, 3
    s_lshl_b32 s77, s6, 1
    s_cmp_eq_u32 s12, 1
    s_cselect_b32 s15, s15, s77
    s_cselect_b32 s94, 48, 16
    s_cselect_b32 s96, 5, 1
    s_lshl_b32 s14, s94, 15
    s_lshl_b32 s94, s94, 3
    s_sub_u32 s95, s10, s6
    {"" if ROT else "s_mov_b32 s15, 0"}
    s_sub_u32 s99, s2, {RBASE}
    REVENBLK
    s_mov_b32 s80, 0x00ff00ff
    s_mov_b32 s81, 0x00ff00ff
    s_mov_b32 s82, 0x{f32bits(C_SCALE):08x}
    s_mov_b32 s84, 0x00010001
    s_mov_b32 s85, 0x00010001
    s_mov_b32 s55, 0x00020000
    s_mov_b32 s59, 0x00020000
    s_mov_b32 s63, 0x00020000
    s_mov_b32 s67, 0x00020000
    s_mov_b32 s71, 0x00020000
    s_mov_b32 s75, 0x00020000
    s_mov_b32 s70, 1280
    s_mov_b32 s66, 163840
    s_mov_b32 s74, {WS_BYTES}
    s_lshl_b32 s58, s7, 12
    s_mov_b32 s62, s58
    s_lshl_b32 s76, s6, 3
    s_add_u32 s76, s76, s11
    s_lshl_b32 s77, s76, 3
    v_lshlrev_b32 v10, 1, {vr(V_G)}
    v_add_u32 v10, s77, v10
    s_lshl_b32 s76, s76, 15
    v_lshlrev_b32 {vr(V_OFFA)}, 13, {vr(V_G)}
    v_lshl_add_u32 {vr(V_OFFA)}, {vr(V_N)}, 4, {vr(V_OFFA)}
    v_add_u32 {vr(V_OFFA)}, s76, {vr(V_OFFA)}
    s_lshl_b32 s78, s9, 8
    s_sub_u32 s54, {640*8192}, s78
    RHOBLK
    v_lshrrev_b32 {vr(V_OFFB)}, 2, {vr(V_N)}
    v_lshlrev_b32 {vr(V_OFFB)}, 8, {vr(V_OFFB)}
    v_lshl_add_u32 {vr(V_OFFB)}, {vr(V_G)}, 6, {vr(V_OFFB)}
    v_and_b32 {vr(V_OFFC)}, 3, {vr(V_N)}
    v_lshl_add_u32 {vr(V_OFFB)}, {vr(V_OFFC)}, 4, {vr(V_OFFB)}
    s_lshl_b32 s78, s9, 8
    s_waitcnt lgkmcnt(0)
    s_cmp_eq_u32 s12, 1
    s_cselect_b64 s[48:49], s[32:33], s[22:23]
    s_cselect_b64 s[68:69], s[26:27], s[16:17]
    s_cselect_b64 s[44:45], s[28:29], s[18:19]
    s_cselect_b64 s[46:47], s[30:31], s[20:21]
    s_cselect_b64 s[50:51], s[34:35], s[24:25]
    s_add_u32 s52, s48, s78
    s_addc_u32 s53, s49, 0
    s_mov_b32 s72, s40
    s_mov_b32 s73, s41
    s_load_dword s42, s[40:41], {E_OFF}
    s_mov_b32 s76, 0
    """)
    def wq_load(i):
        a(f"buffer_load_dwordx4 {vr(R1+4*i,4)}, {vr(V_OFFA)}, s[52:55], s76 offen{NT_W}")
        a("s_add_u32 s76, s76, s14")
    for i in range(4): wq_load(i)
    a("s_branch L_wq4" if AQ4 else "s_cmp_eq_u32 s12, 1\ns_cbranch_scc1 L_wq4")
    for i in range(4, 10): wq_load(i)
    a.label("L_wq4")
    a("s_mov_b32 s76, 0")
    def x_load(i):
        a(f"buffer_load_ushort {vr(V_X+i)}, v10, s[68:71], s76 offen")
        a("s_add_u32 s76, s76, s94")
    if NOX: a("s_branch L_x4")
    for i in range(4): x_load(i)
    a("s_cmp_eq_u32 s12, 1\ns_cbranch_scc1 L_x4")
    for i in range(4, 10): x_load(i)
    a.label("L_x4")
    a(f"""
    s_lshl_b32 s76, s9, 20
    s_lshl_b32 s77, s8, 8
    s_add_u32 s76, s76, s77
    s_add_u32 s56, s44, s76
    s_addc_u32 s57, s45, 0
    s_add_u32 s60, s46, s76
    s_addc_u32 s61, s47, 0
    s_mul_i32 s76, s9, 163840
    s_add_u32 s64, s50, s76
    s_addc_u32 s65, s51, 0
    s_lshl_b32 s76, s95, 9
    s_add_u32 s76, s76, {QX_OFF}
    s_add_u32 s88, s40, s76
    s_addc_u32 s89, s41, 0
    s_add_u32 s90, s96, 1
    s_lshl_b32 s90, s90, 9
    s_mov_b32 s91, 0x00020000
    PROF_CLR
    PRIOBLK
    BAR0
    s_mov_b32 s76, s83
    s_cmp_ge_u32 s11, {EKW}
    s_cbranch_scc1 L_noek
    """)
    for u in range(EK):
        for j in range(4):
            a(f"buffer_load_dwordx4 {vr(R2+16*u+4*j,4)}, {vr(V_OFFB)}, s[56:59], s76 offen offset:{j*1024}{NT_KV}")
        if u < EK - 1:
            a(f"s_add_u32 s76, s76, {STEP()}")
    a.label("L_noek")
    a(f"""
    v_lshlrev_b32 {vr(V_OFFC)}, 4, {vr(V_LANE)}
    s_mul_i32 s76, s11, {4*1280}
    v_mul_u32_u24 {vr(V_OFFD)}, 1280, {vr(V_G)}
    v_lshl_add_u32 {vr(V_OFFD)}, {vr(V_N)}, 4, {vr(V_OFFD)}
    v_add_u32 {vr(V_OFFD)}, s76, {vr(V_OFFD)}
    """)
    a.stamp(1)
    a(f"""
    v_and_b32 {vr(V_T0+8)}, 1, {vr(V_N)}
    v_cmp_eq_u32 vcc, 1, {vr(V_T0+8)}
    v_mov_b32 {vr(V_B0+1)}, 0x0c0c0100
    v_mov_b32 {vr(V_B0+2)}, 0x01000c0c
    v_mov_b32 {vr(V_B0+3)}, 0x0c0c0302
    v_mov_b32 {vr(V_B0+4)}, 0x03020c0c
    v_cndmask_b32 {vr(V_B0+1)}, {vr(V_B0+1)}, {vr(V_B0+2)}, vcc
    v_cndmask_b32 {vr(V_B0+3)}, {vr(V_B0+3)}, {vr(V_B0+4)}, vcc
    v_lshrrev_b32 {vr(V_B0)}, 1, {vr(V_N)}
    v_mov_b32 {vr(V_B0+2)}, 0x0c0c0c0c
    """)
    for c in range(4):
        a(f"""
        v_cmp_eq_u32 vcc, {c}, {vr(V_B0)}
        s_nop 1
        v_cndmask_b32 {vr(V_SELLO+c)}, {vr(V_B0+2)}, {vr(V_B0+1)}, vcc
        v_cndmask_b32 {vr(V_SELHI+c)}, {vr(V_B0+2)}, {vr(V_B0+3)}, vcc
        """)
    a(f"""
    v_and_b32 {vr(V_B0)}, 7, {vr(V_N)}
    v_mul_u32_u24 {vr(V_B0)}, {OSTR}, {vr(V_B0)}
    v_lshl_add_u32 {vr(V_B0)}, {vr(V_G)}, 2, {vr(V_B0)}
    s_lshl_b32 s76, s11, 4
    v_add_u32 {vr(V_B0)}, s76, {vr(V_B0)}
    """)
    for t in range(4):
        a(f"""
        s_add_u32 s76, s15, {t}
        s_and_b32 s76, s76, 3
        s_lshl_b32 s76, s76, 7
        v_add_u32 {vr(V_OA+t)}, s76, {vr(V_B0)}
        """)
    a(f"""
    s_cmp_ge_u32 s11, {EKW}
    s_cbranch_scc1 L_w0
    s_waitcnt vmcnt({4*EK})
    s_branch L_w1
    """)
    a.label("L_w0")
    a("s_waitcnt vmcnt(0)")
    a.label("L_w1")
    def buildBq(dst, src):
        for c in range(4):
            a(f"v_perm_b32 {vr(dst+c)}, {vr(src)}, {vr(src)}, {vr(V_SELLO+c)}")
    buildBq(V_B0, V_X)
    for t in range(10):
        cur = V_B0 if t % 2 == 0 else V_B1
        nxt = V_B1 if t % 2 == 0 else V_B0
        if t == 3:
            a("s_nop 1")
            a(f"v_mfma_f32_16x16x32_bf16 {vr(V_ACC,4)}, {vr(R1+4*t,4)}, {vr(cur,4)}, {vr(V_ACC,4)}")
            a("s_cmp_eq_u32 s12, 1\ns_cbranch_scc1 L_q4")
            buildBq(nxt, V_X + t + 1)
            a("s_nop 1")
            continue
        if t < 9:
            buildBq(nxt, V_X + t + 1)
        else:
            a("s_nop 1")
        c = "0" if t == 0 else vr(V_ACC, 4)
        a(f"v_mfma_f32_16x16x32_bf16 {vr(V_ACC,4)}, {vr(R1+4*t,4)}, {vr(cur,4)}, {c}")
    a.label("L_q4")
    a.stamp(2)
    a(f"""
    s_waitcnt lgkmcnt(0)
    s_add_u32 s42, s42, 1
    s_not_b32 s43, s42
    s_and_b32 s94, s42, 0xfff
    s_bfe_u32 s95, s42, 0xc000c
    s_lshr_b32 s96, s42, 24
    s_lshl_b32 s98, s42, 8
    s_or_b32 s96, s96, s98
    s_and_b32 s96, s96, 0xfff
    s_xor_b32 s98, s42, 0x5a5
    s_and_b32 s98, s98, 0xfff
    v_lshlrev_b32 {vr(V_T0)}, 3, {vr(V_G)}
    v_add_u32 {vr(V_T0)}, {vr(V_T0)}, {vr(V_N)}
    v_lshlrev_b32 {vr(V_T0)}, 4, {vr(V_T0)}
    s_lshl_b32 s76, s11, 9
    v_add_u32 {vr(V_T0)}, s76, {vr(V_T0)}
    s_nop 4
    s_mov_b64 exec, s[80:81]
    ds_write_b128 {vr(V_T0)}, {vr(V_ACC,4)} offset:{QPART}
    s_mov_b64 exec, -1
    s_waitcnt lgkmcnt(0)
    s_barrier
    s_cmp_lg_u32 s11, 0
    s_cbranch_scc1 L_nopart
    v_lshlrev_b32 v8, 4, {vr(V_LANE)}
    v_mov_b32 v11, 0xfff
    s_mov_b64 exec, 0xffffffff
    """)
    for w in range(8):
        a(f"ds_read_b128 v[{20+4*w}:{23+4*w}], v8 offset:{QPART+w*512}")
    a("s_waitcnt lgkmcnt(0)")
    for r in range(4):
        a(f"""
        v_add_f32 v{20+r}, v{20+r}, v{24+r}
        v_add_f32 v{28+r}, v{28+r}, v{32+r}
        v_add_f32 v{36+r}, v{36+r}, v{40+r}
        v_add_f32 v{44+r}, v{44+r}, v{48+r}
        """)
    for r in range(4):
        a(f"""
        v_add_f32 v{20+r}, v{20+r}, v{28+r}
        v_add_f32 v{36+r}, v{36+r}, v{44+r}
        """)
    for r in range(4):
        a(f"v_add_f32 v{20+r}, v{20+r}, v{36+r}")
    tag(a, 20)
    a(f"""
    s_lshl_b32 s76, s10, 9
    s_add_u32 s76, s76, {QX_OFF}
    buffer_store_dwordx4 v[20:23], v8, s[72:75], s76 offen sc1
    s_mov_b64 exec, -1
    """)
    a.label("L_nopart")
    a("""
    s_cmp_eq_u32 s97, 6
    s_cbranch_scc1 L6_start
    s_cmp_eq_u32 s97, 5
    s_cbranch_scc1 L5_start
    """)
    for nt in (4, 5, 6):
        a.label(f"L{nt}_start")
        body(a, nt)
    a.label("L_tail")
    if NOTAIL == 1: a("s_branch L_end")
    def buildB(dst, src, hi):
        sel = V_SELHI if hi else V_SELLO
        for c in range(4):
            a(f"v_perm_b32 {vr(dst+c)}, {vr(src)}, {vr(src)}, {vr(sel+c)}")
    a(f"""
    v_lshlrev_b32 {vr(V_T0)}, 5, {vr(V_G)}
    v_add_u32 {vr(V_T0)}, {vr(V_T0)}, {vr(V_N)}
    v_lshlrev_b32 {vr(V_T0)}, 2, {vr(V_T0)}
    s_mul_i32 s76, s11, {OSTR}
    v_add_u32 {vr(V_T0)}, s76, {vr(V_T0)}
    s_nop 4
    s_mov_b64 exec, s[80:81]
    """)
    for r in range(4):
        a(f"ds_write_b32 {vr(V_T0)}, {vr(V_ACC+r)} offset:{OPART+r*32}")
    a(f"""
    s_mov_b64 exec, -1
    s_cmp_lg_u32 s11, 7
    s_cbranch_scc1 L_nomlst
    MLST
    s_add_u32 s76, s76, {ML_OFF}
    {"s_mov_b32 exec_hi, 0xff" if MLFULL else f"s_mov_b64 exec, {(1<<NREP)-1}"}
    {"" if NOTAIL == 2 else f"buffer_store_dwordx4 {vr(V_ML,4)}, v9, s[72:75], s76 offen sc1"}
    s_mov_b64 exec, -1
L_nomlst:
    """)
    a.label("L_nopre")
    a("s_waitcnt lgkmcnt(0)")
    a("s_barrier")
    for t in range(4):
        a(f"ds_read_b32 {vr(V_T0+4+t)}, {vr(V_OA+t)} offset:{OPART}")
    a("s_waitcnt lgkmcnt(0)")
    for dpp in ["quad_perm:[1,0,3,2]", "quad_perm:[2,3,0,1]", "row_half_mirror"]:
        for t in range(4):
            a(f"v_add_f32_dpp {vr(V_T0+4+t)}, {vr(V_T0+4+t)}, {vr(V_T0+4+t)} {dpp} row_mask:0xf bank_mask:0xf")
    a(f"""
    v_cvt_pk_bf16_f32 {vr(V_T0+4)}, {vr(V_T0+4)}, {vr(V_T0+5)}
    v_cvt_pk_bf16_f32 {vr(V_T0+6)}, {vr(V_T0+6)}, {vr(V_T0+7)}
    """)
    VB = 20
    VY = 36
    for t in range(4):
        buildB(VB + 4 * t, V_T0 + 4 + (t // 2) * 2, t % 2)
    for t in range(4):
        for cb in range(5):
            c = "0" if t == 0 else vr(VY + 4 * cb, 4)
            a(f"v_mfma_f32_16x16x32_bf16 {vr(VY+4*cb,4)}, {vr(R1+4*(t*5+cb),4)}, {vr(VB+4*t,4)}, {c}")
    a(f"""
    v_lshlrev_b32 {vr(V_T0)}, 3, {vr(V_G)}
    v_add_u32 {vr(V_T0)}, {vr(V_T0)}, {vr(V_N)}
    v_lshlrev_b32 {vr(V_T0)}, 4, {vr(V_T0)}
    s_mul_i32 s76, s11, 2560
    v_add_u32 {vr(V_T0)}, s76, {vr(V_T0)}
    s_nop 4
    s_mov_b64 exec, s[80:81]
    """)
    for cb in range(5):
        a(f"ds_write_b128 {vr(V_T0)}, {vr(VY+4*cb,4)} offset:{YPART+cb*512}")
    a(f"""
    s_mov_b64 exec, -1
    s_waitcnt lgkmcnt(0)
    s_barrier
    """)
    a.stamp(8)
    a(f"""
    s_cmp_gt_u32 s11, 2
    s_cbranch_scc1 L_after_store
    v_cmp_gt_u32 vcc, 160, v0
    s_and_saveexec_b64 s[86:87], vcc
    s_cbranch_execz L_tail_y_done
    v_lshlrev_b32 v4, 4, v0
    v_lshrrev_b32 v5, {3 if YFULL else 2}, v0
    v_and_b32 v6, {7 if YFULL else 3}, v0
    v_lshlrev_b32 v6, 4, v6
    v_lshl_add_u32 v5, v5, {15 if YFULL else 14}, v6
    """)
    for w in range(8):
        a(f"ds_read_b128 {vr(20+4*w,4)}, v4 offset:{YPART+w*2560}")
    a("s_waitcnt lgkmcnt(0)")
    for r in range(4):
        a(f"v_add_f32 v{20+r}, v{20+r}, v{24+r}")
        a(f"v_add_f32 v{28+r}, v{28+r}, v{32+r}")
        a(f"v_add_f32 v{36+r}, v{36+r}, v{40+r}")
        a(f"v_add_f32 v{44+r}, v{44+r}, v{48+r}")
    for r in range(4):
        a(f"v_add_f32 v{20+r}, v{20+r}, v{28+r}")
        a(f"v_add_f32 v{36+r}, v{36+r}, v{44+r}")
    for r in range(4):
        a(f"v_add_f32 v{20+r}, v{20+r}, v{36+r}")
    a("v_mov_b32 v11, 0xfff")
    tag(a, 20)
    a(f"""
    s_lshl_b32 s76, s10, {7 if YFULL else 6}
    {"" if NOTAIL == 2 else "buffer_store_dwordx4 v[20:23], v5, s[72:75], s76 offen sc1"}
    """)
    a.label("L_tail_y_done")
    a("s_mov_b64 exec, s[86:87]")
    a.label("L_after_store")
    a.stamp(9)
    a(f"""
    s_cmp_ge_u32 s99, {0 if NOTAIL == 2 else NRED}
    s_cbranch_scc1 L_end
    """)
    a.label("L_clr_ok")
    a(f"""
    v_lshlrev_b32 v4, 4, v0
    v_lshlrev_b32 v12, {7 if MLFULL else 4}, v0
    YRD
    """)
    a(f"""
    s_cmp_gt_u32 s11, 3
    s_cbranch_scc1 L_ml_done
    v_lshlrev_b32 v9, 3, v0
    s_mul_i32 s76, s99, 52
    s_lshr_b32 s76, s76, 8
    s_mul_i32 s76, s76, 5
    s_sub_u32 s76, s99, s76
    s_lshl_b32 s76, s76, {15 if MLFULL else 12}
    s_add_u32 s77, s76, {ML_OFF}
    """)
    MLS = 160
    def ml_issue(k):
        a(f"buffer_load_dwordx4 v[{MLS+4*k}:{MLS+3+4*k}], v12, s[72:75], s77 offen sc1")
    def ml_check(k):
        a(f"""
        v_xor_b32 v7, s42, v{MLS+4*k+2}
        v_xor_b32 v8, s43, v{MLS+4*k+3}
        v_or_b32 v7, v7, v8
        v_cmp_ne_u32 vcc, 0, v7
        """)
    def ml_take(k):
        a(f"ds_write_b64 v9, v[{MLS+4*k}:{MLS+1+4*k}] offset:{MLBUF}")
    ppoll(a, "L_mlp", 1, ml_issue, ml_check, ml_take)
    a("s_waitcnt lgkmcnt(0)")
    a.label("L_ml_done")
    def weightB(vslot, dst):
        a(f"""
        v_mul_u32_u24 v6, 171, {vr(vslot)}
        v_lshrrev_b32 v6, 10, v6
        v_mul_u32_u24 v6, 48, v6
        v_lshlrev_b32 v7, 3, {vr(vslot)}
        ds_read_b128 v[28:31], v6 offset:{MLBUF}
        ds_read_b128 v[32:35], v6 offset:{MLBUF+16}
        ds_read_b128 v[36:39], v6 offset:{MLBUF+32}
        ds_read_b32 v24, v7 offset:{MLBUF}
        s_waitcnt lgkmcnt(0)
        v_max3_f32 v7, v28, v30, v32
        v_max3_f32 v7, v7, v34, v36
        v_max_f32 v7, v7, v38
        v_sub_f32 v28, v28, v7
        v_sub_f32 v30, v30, v7
        v_sub_f32 v32, v32, v7
        v_sub_f32 v34, v34, v7
        v_sub_f32 v36, v36, v7
        v_sub_f32 v38, v38, v7
        v_sub_f32 v24, v24, v7
        v_exp_f32 v28, v28
        v_exp_f32 v30, v30
        v_exp_f32 v32, v32
        v_exp_f32 v34, v34
        v_exp_f32 v36, v36
        v_exp_f32 v38, v38
        v_exp_f32 v24, v24
        s_nop 0
        v_mul_f32 v8, v28, v29
        v_fmac_f32 v8, v30, v31
        v_fmac_f32 v8, v32, v33
        v_fmac_f32 v8, v34, v35
        v_fmac_f32 v8, v36, v37
        v_fmac_f32 v8, v38, v39
        v_rcp_f32 v8, v8
        s_nop 0
        v_mul_f32 {vr(dst)}, v24, v8
        """)
    YS = 176
    def y_issue(k):
        a(f"buffer_load_dwordx4 v[{YS+8*k}:{YS+3+8*k}], v4, s[72:75], s78 offen sc1")
        a(f"buffer_load_dwordx4 v[{YS+4+8*k}:{YS+7+8*k}], v4, s[72:75], s79 offen sc1")
    a(f"""
    s_barrier
    """)
    ppoll_first(a, 0, y_issue)
    a(f"""
    v_lshrrev_b32 v10, 2, v0
    v_add_u32 v11, 128, v10
    """)
    weightB(10, V_W1)
    ppoll_first(a, 1, y_issue)
    a("""
    s_cmp_gt_u32 s11, 3
    s_cbranch_scc1 L_wA
    """)
    weightB(11, V_W2)
    a("s_branch L_wdone")
    a.label("L_wA")
    a(f"""
    v_and_b32 v6, 0x1fe, v11
    v_lshlrev_b32 v6, 3, v6
    v_lshlrev_b32 v7, 3, v11
    ds_read_b128 v[28:31], v6 offset:{MLBUF}
    ds_read_b32 v24, v7 offset:{MLBUF}
    s_waitcnt lgkmcnt(0)
    v_max_f32 v7, v28, v30
    v_sub_f32 v28, v28, v7
    v_sub_f32 v30, v30, v7
    v_sub_f32 v24, v24, v7
    v_exp_f32 v28, v28
    v_exp_f32 v30, v30
    v_exp_f32 v24, v24
    s_nop 0
    v_mul_f32 v8, v28, v29
    v_fmac_f32 v8, v30, v31
    v_rcp_f32 v8, v8
    s_nop 0
    v_mul_f32 {vr(V_W2)}, v24, v8
    """)
    a.label("L_wdone")
    def y_check(k):
        chk(a, "v7", [YS + 8 * k, YS + 4 + 8 * k], 24)
    def y_take(k):
        for r in range(4):
            a(f"v_mul_f32 v{56+r}, v{YS+8*k+r}, {vr(V_W1)}")
        for r in range(4):
            a(f"v_mul_f32 v{60+r}, v{YS+8*k+4+r}, {vr(V_W2)}")
    ppoll(a, "L_yp", 2, y_issue, y_check, y_take, k0=min(2, PD))
    a.label("L_gotY")
    a.stamp(10)
    for r in range(4):
        a(f"v_mov_b32 v{20+r}, v{56+r}")
    for r in range(4):
        a(f"v_mov_b32 v{24+r}, v{60+r}")
    a("""
    s_cmp_gt_u32 s11, 3
    s_cbranch_scc1 L_redA
    """)
    for r in range(4):
        a(f"v_add_f32 v{20+r}, v{20+r}, v{24+r}")
    a("s_nop 1")
    for dpp in ("row_shr:4", "row_shr:8"):
        for r in range(4):
            a(f"v_add_f32_dpp v{20+r}, v{20+r}, v{20+r} {dpp} row_mask:0xf bank_mask:0xf bound_ctrl:0")
    a("s_branch L_redW")
    a.label("L_redA")
    for dpp in ("row_shr:4", "row_shr:8"):
        for r in range(8):
            a(f"v_add_f32_dpp v{20+r}, v{20+r}, v{20+r} {dpp} row_mask:0xf bank_mask:0xf bound_ctrl:0")
    a.label("L_redW")
    a(f"""
    v_and_b32 v5, 3, {vr(V_LANE)}
    v_mul_u32_u24 v5, {4*SB}, v5
    v_lshl_add_u32 v5, {vr(V_G)}, 2, v5
    s_lshl_b32 s76, s11, 4
    v_add_u32 v5, s76, v5
    s_mov_b32 s78, 0xf000f000
    s_mov_b32 s79, 0xf000f000
    s_mov_b64 exec, s[78:79]
    """)
    for r in range(4):
        a(f"ds_write_b32 v5, v{20+r} offset:{FINB+r*SB}")
    a("""
    s_cmp_lt_u32 s11, 4
    s_cbranch_scc1 L_noA
    """)
    a(f"""
    v_and_b32 v6, 3, {vr(V_LANE)}
    v_mul_u32_u24 v6, {4*SA}, v6
    v_lshl_add_u32 v6, {vr(V_G)}, 2, v6
    s_lshl_b32 s76, s11, 4
    s_sub_u32 s76, s76, 64
    v_add_u32 v6, s76, v6
    """)
    for r in range(4):
        a(f"ds_write_b32 v6, v{24+r} offset:{FINA+r*SA}")
    a.label("L_noA")
    a(f"""
    s_mov_b64 exec, -1
    s_waitcnt lgkmcnt(0)
    s_barrier
    s_cmp_lg_u32 s11, 2
    s_cbranch_scc1 L_noeupd
    s_cmp_lg_u32 s99, 0
    s_cbranch_scc1 L_noeupd
    v_mov_b32 v4, s42
    v_mov_b32 v5, 0
    s_mov_b32 s76, {E_OFF}
    s_mov_b64 exec, 1
    buffer_store_dword v4, v5, s[72:75], s76 offen sc1
    s_mov_b64 exec, -1
L_noeupd:
    s_cmp_gt_u32 s11, 1
    s_cbranch_scc1 L_end
    s_mov_b32 s88, s36
    s_mov_b32 s89, s37
    s_mov_b32 s90, 2560
    s_mov_b32 s91, 0x00020000
    v_lshrrev_b32 v5, 2, {vr(V_LANE)}
    v_and_b32 v6, 3, {vr(V_LANE)}
    s_cmp_eq_u32 s11, 1
    s_cbranch_scc1 L_finA
    v_mul_u32_u24 v4, {SB}, v5
    v_lshl_add_u32 v4, v6, 5, v4
    ds_read_b128 v[20:23], v4 offset:{FINB}
    ds_read_b128 v[24:27], v4 offset:{FINB+16}
    s_movk_i32 s79, 1280
    OUTADDR
    s_waitcnt lgkmcnt(0)
    v_add_f32 v20, v20, v21
    v_add_f32 v22, v22, v23
    v_add_f32 v24, v24, v25
    v_add_f32 v26, v26, v27
    v_add_f32 v20, v20, v22
    v_add_f32 v24, v24, v26
    v_add_f32 v20, v20, v24
    s_branch L_fsum
    """)
    a.label("L_finA")
    a(f"""
    v_mul_u32_u24 v4, {SA}, v5
    v_lshl_add_u32 v4, v6, 4, v4
    ds_read_b128 v[20:23], v4 offset:{FINA}
    s_movk_i32 s79, 0
    OUTADDR
    s_waitcnt lgkmcnt(0)
    v_add_f32 v20, v20, v21
    v_add_f32 v22, v22, v23
    v_add_f32 v20, v20, v22
    """)
    a.label("L_fsum")
    a("""
    s_nop 1
    v_add_f32_dpp v20, v20, v20 quad_perm:[1,0,3,2] row_mask:0xf bank_mask:0xf
    s_nop 1
    v_add_f32_dpp v20, v20, v20 quad_perm:[2,3,0,1] row_mask:0xf bank_mask:0xf
    s_mov_b32 s76, 0x11111111
    s_mov_b32 s77, 0x11111111
    s_mov_b64 exec, s[76:77]
    """)
    a("""
    v_cvt_pk_bf16_f32 v20, v20, v20
    buffer_store_short v20, v9, s[88:91], s79 offen
    """)
    a.label("L_end")
    if PROF:
        a.stamp(11)
        a(f"""
        s_mov_b64 exec, 1
        s_lshl_b32 s76, s2, 3
        s_add_u32 s76, s76, s11
        s_lshl_b32 s76, s76, 6
        s_add_u32 s76, s76, {4<<20}
        s_add_u32 s92, s40, s76
        s_addc_u32 s93, s41, 0
        v_mov_b32 v4, 0
        """)
        a("v_mov_b32 v20, s13")
        for i in range(1, 12):
            a(f"v_mov_b32 v{20+i}, s{16+i}")
        if DBG:
            a(f"""
            s_cmp_lg_u32 s76, {4<<20}
            s_cbranch_scc1 L_end2
            """)
            for q in range(3):
                a(f"global_store_dwordx4 v4, v[{20+4*q}:{23+4*q}], s[38:39] offset:{16*q}")
        else:
          for q in range(3):
            a(f"global_store_dwordx4 v4, v[{20+4*q}:{23+4*q}], s[92:93] offset:{16*q}")
    a.label("L_end2")
    a("s_endpgm")

    hdr = open("cdna_kernels/" + NAME + ".s.ref").read().split("\n")
    head = []
    for ln in hdr:
        if ln.startswith("; @launch"):
            head.append(f"; @launch grid=(256,1,1) block=(512,1,1) lds={LDS_BYTES}")
            break
        head.append(ln)
    out = "\n".join(head) + "\n"
    out += f""".amdgcn_target "amdgcn-amd-amdhsa--gfx950"
.text
.globl {NAME}_kernel
.p2align 8
.type {NAME}_kernel,@function
{NAME}_kernel:
"""
    t0 = "s_memrealtime s[92:93]\n    s_waitcnt lgkmcnt(0)\n    s_mov_b32 s13, s92" if PROF else ""
    prio = ""
    if PRIO == 1: prio = "s_cmp_lt_u32 s11, 4\n    s_cbranch_scc1 L_noprio\n    s_setprio 1\nL_noprio:"
    if PRIO == 2: prio = "s_and_b32 s77, s11, 1\n    s_cmp_eq_u32 s77, 0\n    s_cbranch_scc1 L_noprio\n    s_setprio 1\nL_noprio:"
    OUTADDR = """v_lshrrev_b32 v8, 2, v5
    s_lshl_b32 s76, s99, 2
    v_add_u32 v8, s76, v8
    v_lshrrev_b32 v9, 5, v8
    v_lshlrev_b32 v9, 7, v9
    v_bfe_u32 v7, v8, 3, 2
    v_lshl_add_u32 v9, v7, 5, v9
    v_and_b32 v7, 7, v8
    v_add_u32 v9, v9, v7
    v_and_b32 v7, 3, v5
    v_lshl_add_u32 v9, v7, 3, v9
    v_lshlrev_b32 v9, 1, v9"""
    YRD = """s_lshr_b32 s78, s99, 1
    s_lshl_b32 s78, s78, 15
    s_and_b32 s79, s99, 1
    s_lshl_b32 s79, s79, 6
    s_add_u32 s78, s78, s79
    s_add_u32 s79, s78, 16384
    v_lshrrev_b32 v5, 2, v0
    v_and_b32 v4, 3, v0
    v_lshlrev_b32 v4, 4, v4
    v_lshl_add_u32 v4, v5, 7, v4""" if YFULL else """s_lshl_b32 s78, s99, 14
    s_add_u32 s79, s78, 8192"""
    MLST = """v_lshrrev_b32 v9, 3, v1
    v_lshlrev_b32 v9, 15, v9
    v_and_b32 v10, 7, v1
    v_lshl_add_u32 v9, v10, 4, v9
    s_lshl_b32 s76, s10, 7""" if MLFULL else """v_lshlrev_b32 v9, 12, v1
    s_lshl_b32 s76, s10, 4"""
    REVENBLK = """s_lshr_b32 s99, s2, 1
    s_bitcmp1_b32 s2, 0
    s_cselect_b32 s99, 255, s99""" if REVEN else ""
    HMAPBLK = {0: "s_lshl_b32 s9, s9, 2\n    s_add_u32 s9, s9, s5",
               1: "s_lshl_b32 s76, s5, 3\n    s_add_u32 s9, s9, s76",
               2: "s_lshl_b32 s9, s9, 1\n    s_and_b32 s76, s5, 1\n    s_add_u32 s9, s9, s76\n    s_lshr_b32 s76, s5, 1\n    s_lshl_b32 s76, s76, 4\n    s_add_u32 s9, s9, s76"}.get(HMAP)
    if HMAPBLK is None:
        code = ["s_mov_b32 s77, s9", "s_mov_b32 s9, 0"]
        for k, ch in enumerate(HMAP):
            src, bit = ("s5", "ab".index(ch)) if ch in "ab" else ("s77", int(ch))
            code += [f"s_bfe_u32 s76, {src}, {bit | (1 << 16)}", f"s_lshl_b32 s76, s76, {k}", "s_or_b32 s9, s9, s76"]
        HMAPBLK = "\n    ".join(code)
    out += a.text().replace("HMAPBLK", HMAPBLK).replace("REVENBLK", REVENBLK).replace("MLST", MLST).replace("YRD", YRD).replace("OUTADDR", OUTADDR).replace("offen sc1", "offen @@").replace("PRIOBLK", prio).replace("RHOBLK", rhoblk()).replace("BAR0", "" if NOBAR0 else "s_barrier").replace("PROF_T0", t0).replace("PROF_CLR", "\n    ".join(f"s_mov_b32 s{16+i}, 0" for i in range(1,12)) if PROF else "")
    out += f""".section .rodata,"a"
.p2align 6
.amdhsa_kernel {NAME}_kernel
  .amdhsa_next_free_vgpr 256
  .amdhsa_next_free_sgpr 102
  .amdhsa_accum_offset 256
  .amdhsa_group_segment_fixed_size 0
  .amdhsa_kernarg_size 104
  .amdhsa_user_sgpr_count 2
  .amdhsa_user_sgpr_kernarg_segment_ptr 1
  .amdhsa_system_sgpr_workgroup_id_x 1
.end_amdhsa_kernel
"""
    import re
    lines = out.split("\n")
    for i, ln in enumerate(lines):
        if "@@" in ln:
            lines[i] = ln.replace("@@", STF if "buffer_store" in ln else LDF)
    out = "\n".join(lines)
    return out

if __name__ == "__main__":
    for o in sys.argv[2:]:
        if o == "prof": PROF = True
        elif o == "dbg": PROF = True; DBG = True
        elif o == "wnt": NT_W = " nt"
        elif o == "kvplain": NT_KV = ""
        elif o == "norot": ROT = False
        elif o.startswith("sleep"): POLL_SLEEP = int(o[5:])
        elif o.startswith("prio"): PRIO = int(o[4:])
        elif o == "nobar0": NOBAR0 = True
        elif o.startswith("nwq"): NWQ = int(o[3:])
        elif o.startswith("nwo"): NWO = int(o[3:])
        elif o == "acold": ACOLD = True
        elif o in ("ct", "il", "cb"): ASSIGN = o
        elif o.startswith("bw"): BW0 = int(o[2:])
        elif o.startswith("rho"): RHO = o[3:]
        elif o.startswith("ek") and not o.startswith("ekw"): EK = int(o[2:])
        elif o.startswith("xrot"): XROT = int(o[4:])
        elif o == "noclr": NOCLR = True
        elif o == "nosync": NOSYNC = True; NOCLR = True; NOQ = True
        elif o == "nox": NOX = True
        elif o.startswith("hmap"): HMAP = int(o[4:]) if len(o) == 5 else o[4:]
        elif o.startswith("notail"): NOTAIL = int(o[6:])
        elif o == "reven": REVEN = True
        elif o == "yfull": YFULL = True
        elif o == "mlfull": MLFULL = True
        elif o == "st01": STF = "sc0 sc1"
        elif o == "stnt": STF = "sc1 nt"
        elif o == "ld01": LDF = "sc0 sc1"
        elif o == "ldnt": LDF = "sc1 nt"
        elif o.startswith("pd"): PD = int(o[2:])
        elif o.startswith("stag"): PSTAG = int(o[4:])
        elif o == "noflag": NOFLAG = True
        elif o == "aq4": AQ4 = True
        elif o.startswith("ekw"): EKW = int(o[3:])
        elif o == "noq": NOQ = True
        elif o.startswith("clrw"): CLRW = int(o[4:])
        elif o.startswith("qsleep"): QSLEEP = int(o[6:])
        elif o.startswith("rbase"): RBASE = int(o[5:])
    path = sys.argv[1] if len(sys.argv) > 1 else "cdna_kernels/" + NAME + ".s"
    open(path, "w").write(gen())
```
